```python
import torch

def _softmax(x, axis=-1):
    return torch.softmax(x, dim=axis)

def _gelu(x):
    return torch.nn.functional.gelu(x, approximate='tanh')

def _silu(x):
    return torch.nn.functional.silu(x)

def _sigmoid(x):
    return torch.sigmoid(x)

def _layernorm(x, axis=-1, eps=1e-05):
    m = x.mean(dim=axis, keepdim=True)
    v = x.var(dim=axis, keepdim=True, unbiased=False)
    return (x - m) / torch.sqrt(v + eps)

def _scatter_add(tgt, idx, src, axis=0):
    return tgt.clone().index_add_(axis, idx, src)

def _segment_sum(src, seg, n):
    out = torch.zeros((n,) + src.shape[1:], dtype=src.dtype)
    return out.index_add_(0, seg, src)

def _pad(x, pw):
    flat = tuple((v for pair in reversed(pw) for v in pair))
    return torch.nn.functional.pad(x, flat)
kernel_name = 'interleave_layers__memory_aug_recurrent_mem_tr__dense_activation_gelu__prompt'

def setup_inputs():

    _w = lambda a: (lambda t: t.to(torch.bfloat16) if t.is_floating_point() else t)(torch.as_tensor(a))

    def _A_setup():
        B, S, Dm = (1, 2048, 512)
        H, Dh = (32, 128)
        M, seg = (8, 32)
        seg = min(seg, S)
        S = S // seg * seg
        return {'x': _w((lambda *s: torch.randn(*s, dtype=torch.bfloat16) * 0.05)(B, S, Dm)), 'mem0': _w((lambda *s: torch.randn(*s, dtype=torch.bfloat16) * 0.2)(B, M, Dm)), 'Wq': _w((lambda *s: torch.randn(*s, dtype=torch.bfloat16) * 1.6)(Dm, H, Dh) * Dm ** (-0.5)), 'Wk': _w((lambda *s: torch.randn(*s, dtype=torch.bfloat16) * 1.6)(Dm, H, Dh) * Dm ** (-0.5)), 'Wv': _w((lambda *s: torch.randn(*s, dtype=torch.bfloat16) * 0.2)(Dm, H, Dh) * Dm ** (-0.5)), 'Wo': _w((lambda *s: torch.randn(*s, dtype=torch.bfloat16) * 0.2)(H, Dh, Dm) * (H * Dh) ** (-0.5)), 'seg_len': seg}
    _A_in = _A_setup()

    def _B_setup():
        B, S, D, F = (1, 2048, 512, 1376)
        return {'x': _w((lambda *s: torch.randn(*s, dtype=torch.bfloat16) * 0.05)(B, S, D)), 'w1': _w((lambda *s: torch.randn(*s, dtype=torch.bfloat16) * 0.4)(D, F) * D ** (-0.5)), 'b1': _w((lambda *s: torch.randn(*s, dtype=torch.bfloat16) * 12.8)(F) * 0.01), 'w2': _w((lambda *s: torch.randn(*s, dtype=torch.bfloat16) * 0.1)(F, D) * F ** (-0.5)), 'b2': _w((lambda *s: torch.randn(*s, dtype=torch.bfloat16) * 0.8)(D) * 0.01)}
    _B_in = _B_setup()
    return {'A_x': _A_in['x'], 'A_mem0': _A_in['mem0'], 'A_Wq': _A_in['Wq'], 'A_Wk': _A_in['Wk'], 'A_Wv': _A_in['Wv'], 'A_Wo': _A_in['Wo'], 'A_seg_len': _A_in['seg_len'], 'B_x': _B_in['x'], 'B_w1': _B_in['w1'], 'B_b1': _B_in['b1'], 'B_w2': _B_in['w2'], 'B_b2': _B_in['b2']}

def reference(A_x, A_mem0, A_Wq, A_Wk, A_Wv, A_Wo, A_seg_len, B_x, B_w1, B_b1, B_w2, B_b2):

    def _A_ref(x, mem0, Wq, Wk, Wv, Wo, seg_len):
        B, S, Dm = x.shape
        H, Dh = (Wq.shape[1], Wq.shape[2])
        M = mem0.shape[1]
        scale = Dh ** (-0.5)
        n_seg = S // seg_len
        L = M + seg_len
        idx = torch.arange(L)
        mask = (idx[:, None] < M) | (idx[:, None] >= idx[None, :])
        mem = mem0
        outs = []
        for s in range(n_seg):
            xs = x[:, s * seg_len:(s + 1) * seg_len, :].clone()
            h = torch.concatenate([mem, xs], axis=1)
            q = torch.einsum('btd,dhe->bhte', h, Wq)
            k = torch.einsum('btd,dhe->bhte', h, Wk)
            v = torch.einsum('btd,dhe->bhte', h, Wv)
            scores = torch.einsum('bhqe,bhke->bhqk', q, k) * scale
            scores = torch.where(mask[None, None], scores, -1000000000.0)
            p = _softmax(scores, axis=-1)
            o = torch.einsum('bhqk,bhke->bhqe', p, v)
            o = torch.einsum('bhte,hed->btd', o, Wo)
            mem = o[:, :M, :].clone()
            outs.append(o[:, M:, :])
        return torch.concatenate(outs, axis=1)

    def _B_ref(x, w1, b1, w2, b2):
        h = torch.einsum('bsd,df->bsf', x, w1) + b1
        h = _gelu(h)
        return torch.einsum('bsf,fd->bsd', h, w2) + b2
    x = A_x
    x = x + _A_ref(_layernorm(x, axis=-1), A_mem0, A_Wq, A_Wk, A_Wv, A_Wo, A_seg_len)
    x = x + _B_ref(_layernorm(x, axis=-1), B_w1, B_b1, B_w2, B_b2)
    x = x + _A_ref(_layernorm(x, axis=-1), A_mem0, A_Wq, A_Wk, A_Wv, A_Wo, A_seg_len)
    x = x + _B_ref(_layernorm(x, axis=-1), B_w1, B_b1, B_w2, B_b2)
    return x
```

```python
import re

TRANS = ('v_exp_f32', 'v_log_f32', 'v_rcp_f32', 'v_rsq_f32', 'v_sqrt_f32', 'v_sin_f32', 'v_cos_f32',
         'v_rcp_iflag_f32')

_reg_re = re.compile(r'^(-|abs\()?([vas])(\d+)\)?$')
_rng_re = re.compile(r'^(-)?([vas])\[(\d+):(\d+)\]$')


def regs_of(op):
    op = op.strip()
    if op.startswith('|') and op.endswith('|'):
        op = op[1:-1]
    if op.startswith('-|'):
        op = op[2:-1]
    m = _reg_re.match(op)
    if m:
        return [(m.group(2), int(m.group(3)))]
    m = _rng_re.match(op)
    if m:
        return [(m.group(2), i) for i in range(int(m.group(3)), int(m.group(4)) + 1)]
    if op in ('vcc', 'vcc_lo', 'vcc_hi'):
        return [('vcc', 0)]
    if op in ('exec', 'exec_lo', 'exec_hi'):
        return [('exec', 0)]
    if op == 'm0':
        return [('m0', 0)]
    return []


def split_ops(s):
    ops, depth, cur = [], 0, ''
    for ch in s:
        if ch in '[(':
            depth += 1
        if ch in '])':
            depth -= 1
        if ch == ',' and depth == 0:
            ops.append(cur.strip())
            cur = ''
        else:
            cur += ch
    if cur.strip():
        ops.append(cur.strip())
    return ops


def mfma_passes(mn):
    if '32x32x16' in mn or '32x32x8' in mn or '32x32x32' in mn:
        return 8
    if '16x16x32' in mn or '16x16x16' in mn or '16x16x64' in mn:
        return 4
    raise ValueError(mn)


class Ins:
    __slots__ = ('text', 'mn', 'kind', 'dst', 'src', 'srcc', 'passes', 'dpp', 'states', 'wide_store', 'sdst')

    def __init__(self, text):
        self.text = text
        t = text.split(';')[0].strip()
        parts = t.split(None, 1)
        mn = parts[0]
        rest = parts[1] if len(parts) > 1 else ''
        self.mn = mn
        self.dst, self.src, self.srcc = [], [], []
        self.passes = 0
        self.dpp = False
        self.states = 1
        self.wide_store = []
        ops = split_ops(rest)
        mods = ''
        if ops:
            last = ops[-1].split(None, 1)
            if len(last) > 1:
                ops[-1] = last[0]
                mods = last[1]
        if 'quad_perm' in mods or 'row_' in mods or 'wave_' in mods or mn.endswith('_dpp'):
            self.dpp = True
        R = lambda o: regs_of(o)
        if mn.startswith('v_mfma') or mn.startswith('v_smfmac'):
            self.kind = 'mfma'
            self.passes = mfma_passes(mn)
            self.dst = R(ops[0])
            self.src = R(ops[1]) + R(ops[2])
            if mn.startswith('v_smfmac'):
                self.srcc = R(ops[0])
                self.src += R(ops[3])
            else:
                self.srcc = R(ops[3])
        elif mn.startswith('v_'):
            self.kind = 'trans' if mn.replace('_e32', '').replace('_e64', '') in TRANS else 'valu'
            if mn.startswith('v_nop'):
                pass
            elif mn.startswith('v_permlane') and 'swap' in mn:
                self.dst = R(ops[0]) + R(ops[1])
                self.src = R(ops[0]) + R(ops[1])
            elif mn.startswith('v_cmp'):
                self.dst = R(ops[0])
                self.src = sum((R(o) for o in ops[1:]), [])
                if mn.startswith('v_cmpx'):
                    self.dst += [('exec', 0)]
            elif '_co_' in mn:
                self.dst = R(ops[0]) + R(ops[1])
                self.src = sum((R(o) for o in ops[2:]), [])
            else:
                self.dst = R(ops[0])
                self.src = sum((R(o) for o in ops[1:]), [])
                if mn.startswith('v_fmac') or mn.startswith('v_pk_fmac') or mn.startswith('v_writelane') or self.dpp \
                        or 'op_sel' in mods or 'dst_sel' in mods:
                    self.src += R(ops[0])
                if mn.startswith('v_cndmask') and len(ops) == 3:
                    self.src += [('vcc', 0)]
        elif mn.startswith('ds_'):
            self.kind = 'ds'
            if mn.startswith('ds_read') or mn.startswith('ds_bpermute') or mn.startswith('ds_permute') or mn.startswith('ds_swizzle'):
                self.dst = R(ops[0])
                self.src = sum((R(o) for o in ops[1:]), [])
            else:
                self.src = sum((R(o) for o in ops), [])
        elif mn.startswith('global_') or mn.startswith('buffer_') or mn.startswith('flat_'):
            self.kind = 'vmem'
            if 'lds' in mn or ' lds' in (' ' + mods):
                self.src = sum((R(o) for o in ops), []) + [('m0', 0)]
            elif '_load' in mn:
                self.dst = R(ops[0])
                self.src = sum((R(o) for o in ops[1:]), [])
            elif 'atomic' in mn and ('sc0' in mods.split()):
                self.dst = R(ops[0])
                self.src = sum((R(o) for o in ops[1:]), [])
            else:
                self.src = sum((R(o) for o in ops), [])
                if 'x4' in mn or 'x3' in mn:
                    d = ops[1] if mn.startswith('global_') or mn.startswith('flat_') else ops[0]
                    self.wide_store = R(d)
        elif mn.startswith('s_'):
            self.kind = 'salu'
            if mn == 's_nop':
                self.states = int(ops[0], 0) + 1
            elif mn.startswith('s_cmp') or mn.startswith('s_cbranch') or mn in ('s_branch', 's_barrier', 's_waitcnt', 's_endpgm', 's_sleep', 's_setprio'):
                self.src = sum((R(o) for o in ops), [])
            else:
                if ops:
                    self.dst = R(ops[0])
                    self.src = sum((R(o) for o in ops[1:]), [])
                if 'saveexec' in mn:
                    self.dst += [('exec', 0)]
        else:
            raise ValueError('unknown instruction: ' + text)


class Asm:
    def __init__(self):
        self.lines = []
        self.t = 0
        self.valu_w = {}
        self.trans_w = {}
        self.mfma_w = {}
        self.mfma_c = {}
        self.store_r = {}
        self.salu_m0 = -100
        self.nnop = 0

    def raw(self, text):
        self.lines.append(text)

    def comment(self, text):
        self.lines.append('    ; ' + text)

    def _pad(self, n):
        while n > 0:
            k = min(n, 16)
            self.lines.append('    s_nop %d' % (k - 1))
            self.t += k
            self.nnop += k
            n -= k

    def need(self, ins):
        t = self.t
        req = t

        def after(state, ws):
            nonlocal req
            req = max(req, state + 1 + ws)
        k = ins.kind
        allr = ins.src + ins.srcc
        if k == 'mfma':
            for r in allr:
                if r in self.valu_w:
                    after(self.valu_w[r], 2)
            for r in ins.src:
                if r in self.mfma_w:
                    s, p, d = self.mfma_w[r]
                    after(s, {2: 5, 4: 8, 8: 12, 16: 20}[p])
            for r in ins.srcc:
                if r in self.mfma_w:
                    s, p, d = self.mfma_w[r]
                    if tuple(ins.srcc) == d and p == ins.passes:
                        ws = 2 if p == 2 else 0
                    else:
                        ws = {2: 4, 4: 6, 8: 10, 16: 18}[p]
                    after(s, ws)
            for r in ins.dst:
                if r in self.mfma_w and r not in ins.srcc:
                    s, p, d = self.mfma_w[r]
                    after(s, {2: 4, 4: 6, 8: 10, 16: 18}[p])
            if ('exec', 0) in self.valu_w:
                after(self.valu_w[('exec', 0)], 4)
        else:
            touched = allr + ins.dst
            if k in ('valu', 'trans', 'vmem', 'ds'):
                for r in touched:
                    if r in self.mfma_w:
                        s, p, d = self.mfma_w[r]
                        after(s, {2: 5, 4: 8, 8: 12, 16: 20}[p])
            if k in ('valu', 'trans'):
                for r in ins.dst:
                    if r in self.mfma_c:
                        s, p = self.mfma_c[r]
                        after(s, {2: 1, 4: 3, 8: 7, 16: 15}[p])
                    if r in self.store_r:
                        after(self.store_r[r], 2)
                for r in ins.src:
                    if r in self.trans_w and k != 'trans':
                        after(self.trans_w[r], 1)
                    if r in self.trans_w and k == 'trans':
                        after(self.trans_w[r], 1)
                    if r in self.valu_w:
                        if r[0] in ('s', 'vcc', 'exec'):
                            ws = 2
                            if ins.mn.startswith('v_readlane') or ins.mn.startswith('v_writelane'):
                                ws = 4
                            after(self.valu_w[r], ws)
                        else:
                            if ins.mn.startswith('v_permlane') or ins.dpp:
                                after(self.valu_w[r], 2)
                            if ins.mn.startswith('v_readlane') or ins.mn.startswith('v_readfirstlane'):
                                after(self.valu_w[r], 1)
                if ins.dpp and ('exec', 0) in self.valu_w:
                    after(self.valu_w[('exec', 0)], 5)
            if k in ('vmem', 'ds'):
                for r in ins.src:
                    if r[0] == 's' and r in self.valu_w:
                        after(self.valu_w[r], 5)
                for r in ins.dst:
                    if r in self.store_r:
                        after(self.store_r[r], 1)
                if ('m0', 0) in ins.src:
                    after(self.salu_m0, 1)
            if k == 'salu':
                for r in ins.src:
                    if r in self.valu_w and r[0] in ('s', 'vcc'):
                        after(self.valu_w[r], 1)
                if ins.mn.startswith('s_cbranch_vcc') and ('vcc', 0) in self.valu_w:
                    after(self.valu_w[('vcc', 0)], 1)
        return req

    def __call__(self, text):
        for line in text.strip('\n').split('\n'):
            line = line.strip()
            if not line:
                continue
            if line.startswith(';'):
                self.lines.append('    ' + line)
                continue
            if line.endswith(':'):
                self.label(line[:-1])
                continue
            self.emit(line)

    def emit(self, text):
        ins = Ins(text)
        if ins.mn.startswith('s_cbranch') or ins.mn == 's_branch':
            self.fence()
        req = self.need(ins)
        if req > self.t:
            self._pad(req - self.t)
        self.lines.append('    ' + text)
        t = self.t
        k = ins.kind
        for r in ins.dst:
            self.valu_w.pop(r, None)
            self.trans_w.pop(r, None)
            self.mfma_w.pop(r, None)
        if k in ('valu', 'trans'):
            for r in ins.dst:
                self.valu_w[r] = t
                if k == 'trans':
                    self.trans_w[r] = t
        elif k == 'mfma':
            for r in ins.dst:
                self.mfma_w[r] = (t, ins.passes, tuple(ins.dst))
            for r in ins.srcc:
                self.mfma_c[r] = (t, ins.passes)
        elif k == 'salu':
            if ('m0', 0) in ins.dst:
                self.salu_m0 = t
        for r in ins.wide_store:
            self.store_r[r] = t
        self.t += ins.states

    def fence(self):
        req = self.t
        for r, s in self.valu_w.items():
            ws = 5 if r[0] in ('s', 'vcc', 'exec') else 2
            req = max(req, s + 1 + ws)
        for r, (s, p, d) in self.mfma_w.items():
            req = max(req, s + 1 + {2: 5, 4: 8, 8: 12, 16: 20}[p])
        for r, (s, p) in self.mfma_c.items():
            req = max(req, s + 1 + {2: 1, 4: 3, 8: 7, 16: 15}[p])
        for r, s in self.store_r.items():
            req = max(req, s + 3)
        req = max(req, self.salu_m0 + 2)
        if req > self.t:
            self._pad(req - self.t)
        self.valu_w.clear(); self.trans_w.clear(); self.mfma_w.clear(); self.mfma_c.clear(); self.store_r.clear()

    def label(self, name):
        self.fence()
        self.lines.append(name + ':')

    def text(self):
        return '\n'.join(self.lines) + '\n'


def vr(b, n=1):
    return 'v%d' % b if n == 1 else 'v[%d:%d]' % (b, b + n - 1)


def ar(b, n=1):
    return 'a%d' % b if n == 1 else 'a[%d:%d]' % (b, b + n - 1)


def sr(b, n=1):
    return 's%d' % b if n == 1 else 's[%d:%d]' % (b, b + n - 1)
```

```python
import sys, math, struct
from asmb import Asm, vr, ar, sr
from layout import *

KNAME = "interleave_layers__memory_aug_recurrent_mem_tr__dense_activation_gelu__prompt_kernel"
HEADER = open('interleave_layers__memory_aug_recurrent_mem_tr__dense_activation_gelu__prompt.s.ref').read().split('; Override launch')[0]

def f32hex(x):
    return '0x%08x' % struct.unpack('<I', struct.pack('<f', x))[0]

L_W = 0
WPW = 28672
L_KV = 114688
L_FB = 114688
L_MEMS = 147456
L_QK = 155648
L_OX = 159744
L_RED = 161792
L_X1 = 147456
LDS_BYTES = 163840

REGS = [('v', 112 + 8 * i) for i in range(18)] + [('a', 8 * i) for i in range(32)]

def make_homes_r():
    lds_ops = [('qkv', 4, 7), ('qkv', 5, 7), ('qkv', 4, 6), ('qkv', 5, 6), ('qkv', 4, 5), ('qkv', 5, 5), ('qkv', 5, 4),
               ('wo', 7, 1), ('wo', 6, 1), ('wo', 5, 1), ('wo', 4, 1), ('wo', 3, 1), ('wo', 2, 1), ('wo', 1, 1)]
    homes = {}
    for i, o in enumerate(lds_ops):
        homes[o] = ('lds', i)
    regs = list(REGS)
    for t in range(6):
        for ks in range(8):
            o = ('qkv', t, ks)
            if o not in homes:
                homes[o] = regs.pop(0)
    for ct in range(8):
        for ks in range(2):
            o = ('wo', ct, ks)
            if o not in homes:
                homes[o] = regs.pop(0)
    assert not regs
    return homes

def make_homes_x():
    homes = {}
    i = 0
    for t in (5, 7):
        for ks in range(1, 8):
            homes[('qkv', t, ks)] = ('lds', i); i += 1
    regs = list(REGS)
    for t in range(8):
        for ks in range(8):
            o = ('qkv', t, ks)
            if o not in homes:
                homes[o] = regs.pop(0)
    assert not regs
    return homes

def rr(kind, b, n):
    return vr(b, n) if kind == 'v' else ar(b, n)

S_WS = 4
S_TEAM = 6
S_RANK = 7
S_STEP = 8
S_WAVE = 9
S_DBG = 10
S_P0 = 12
S_P1 = 14
S_P2 = 16
S_P3 = 18
S_TS = 20
S_T0 = 38
S_T1 = 39
S_T2 = 40
S_SPIN = 41
S_GRANK = 47
S_ST = 48
S_STAMP0 = 64

SPIN_MAX = 1 << 21

def add64(a, dst, src, off):
    a(f"s_add_u32 s{dst}, s{src}, {off}")
    a(f"s_addc_u32 s{dst+1}, s{src+1}, 0")

class LdsQ:
    def __init__(self, a):
        self.a = a
        self.q = []
    def issue(self, text, tag=None):
        self.a(text)
        self.q.append(tag)
    def wait(self, tag):
        idx = max(i for i, t in enumerate(self.q) if t == tag) if tag in self.q else -1
        if idx < 0:
            return
        n = len(self.q) - 1 - idx
        self.a(f"s_waitcnt lgkmcnt({min(n, 15)})")
        if n <= 15:
            self.q = self.q[idx + 1:]
        else:
            self.q = self.q[len(self.q) - 15:]
    def all(self):
        self.a("s_waitcnt lgkmcnt(0)")
        self.q = []

class GenBase:
    def __init__(self, stamps=False):
        self.a = Asm()
        self.stamps = stamps
        self.nlab = 0
        self.nstamp = 0
        self.sc = ''
        self.end = 'L_end'

    def lab(self, base):
        self.nlab += 1
        return f"L_{base}_{self.nlab}"

    def stamp(self):
        if not self.stamps:
            return
        i = self.nstamp
        self.nstamp += 1
        assert i < 18
        self.a(f"s_memtime s[{S_STAMP0+2*i}:{S_STAMP0+1+2*i}]")

    def flush_stamps(self, t0, t1):
        a = self.a
        if not self.stamps:
            return
        a("s_waitcnt lgkmcnt(0)")
        for i in range(self.nstamp):
            a(f"v_mov_b32 v{t0}, s{S_STAMP0+2*i}")
            a(f"v_mov_b32 v{t1}, {4*i}")
            a(f"global_store_dword v{t1}, v{t0}, s[{S_ST}:{S_ST+1}]")
        add64(a, S_ST, S_ST, 128)

    def spin_dec(self):
        a = self.a
        a(f"s_sub_u32 s{S_SPIN}, s{S_SPIN}, 1")
        a(f"s_cmp_eq_u32 s{S_SPIN}, 0")
        a(f"s_cbranch_scc1 {self.end}")

    def dbg_atomic(self, idx_text, ret):
        a = self.a
        a(f"v_mov_b32 v1, {idx_text}")
        a("v_mov_b32 v2, 1")
        a("s_mov_b64 exec, 1")
        if ret:
            a(f"global_atomic_add v3, v1, v2, s[{S_DBG}:{S_DBG+1}] sc0 sc1")
        else:
            a(f"global_atomic_add v1, v2, s[{S_DBG}:{S_DBG+1}] sc1")
        a("s_mov_b64 exec, -1")

    def wait_dbg(self, off, target):
        a = self.a
        lw = self.lab('dw')
        a(f"v_mov_b32 v17, {off}")
        a(f"s_mov_b32 s{S_SPIN}, {SPIN_MAX}")
        a.label(lw)
        a(f"global_load_dword v18, v17, s[{S_DBG}:{S_DBG+1}] sc1")
        a("s_waitcnt vmcnt(0)")
        a(f"v_readfirstlane_b32 s{S_T0}, v18")
        self.spin_dec()
        a(f"s_cmp_lt_u32 s{S_T0}, {target}")
        a(f"s_cbranch_scc1 {lw}")

    def load_weights(self, kind, HOMES):
        a = self.a
        a(f"s_load_dwordx2 s[{S_P0}:{S_P0+1}], s[0:1], 16")
        a(f"s_load_dwordx2 s[{S_P1}:{S_P1+1}], s[0:1], 24")
        a(f"s_load_dwordx2 s[{S_P2}:{S_P2+1}], s[0:1], 32")
        a(f"s_load_dwordx2 s[{S_P3}:{S_P3+1}], s[0:1], 40")
        a("v_lshrrev_b32 v1, 4, v0")
        a("v_and_b32 v2, 15, v0")
        a("v_lshlrev_b32 v3, 13, v1")
        a("v_lshl_add_u32 v3, v2, 4, v3")
        a(f"s_lshl_b32 s{S_T0}, s{S_RANK}, 8")
        a(f"v_add_u32 v3, s{S_T0}, v3")
        if kind == 'r':
            a("v_lshlrev_b32 v4, 10, v1")
            a("v_lshrrev_b32 v5, 2, v2")
            a("v_lshl_add_u32 v4, v5, 8, v4")
            a("v_and_b32 v5, 3, v2")
            a("v_lshl_add_u32 v4, v5, 4, v4")
            a(f"s_lshl_b32 s{S_T0}, s{S_RANK}, 17")
            a(f"v_add_u32 v4, s{S_T0}, v4")
        else:
            a("v_lshlrev_b32 v4, 10, v1")
            a("v_lshl_add_u32 v4, v2, 4, v4")
            a(f"s_lshr_b32 s{S_T0}, s{S_RANK}, 2")
            a(f"s_lshl_b32 s{S_T0}, s{S_T0}, 19")
            a(f"s_and_b32 s{S_T1}, s{S_RANK}, 3")
            a(f"s_lshl_b32 s{S_T1}, s{S_T1}, 8")
            a(f"s_add_u32 s{S_T0}, s{S_T0}, s{S_T1}")
            a(f"v_add_u32 v4, s{S_T0}, v4")
        a("v_and_b32 v5, 3, v1")
        a("v_lshlrev_b32 v5, 5, v5")
        a("v_bfe_u32 v6, v1, 3, 1")
        a("v_lshlrev_b32 v6, 7, v6")
        a("v_xor_b32 v5, v5, v6")
        a("v_lshlrev_b32 v6, 4, v2")
        a("v_xor_b32 v5, v5, v6")
        a("v_lshl_add_u32 v5, v1, 8, v5")
        a(f"v_add_u32 v5, {L_KV}, v5")
        a("v_and_b32 v6, 63, v0")
        a("v_lshrrev_b32 v7, 4, v6")
        a("v_bfe_u32 v8, v6, 2, 2")
        a("v_and_b32 v9, 3, v6")
        a("v_lshl_add_u32 v10, v7, 3, v8")
        a("v_lshlrev_b32 v10, 8, v10")
        a(f"v_add_u32 v10, {L_KV}, v10")
        a("v_lshlrev_b32 v8, 5, v8")
        a("v_and_b32 v7, 1, v7")
        a("v_lshlrev_b32 v7, 7, v7")
        a("v_xor_b32 v8, v8, v7")
        a(f"s_lshl_b32 s{S_T0}, s{S_WAVE}, 6")
        a("v_lshlrev_b32 v12, 3, v9")
        a(f"v_add_u32 v12, s{S_T0}, v12")
        a("v_xor_b32 v12, v12, v8")
        a("v_add_u32 v6, v10, v12")
        a("v_xor_b32 v12, 32, v12")
        a("v_add_u32 v7, v10, v12")
        if kind == 'x':
            a("v_lshlrev_b32 v12, 4, v9")
            a(f"v_add_u32 v12, s{S_T0}, v12")
            a("v_xor_b32 v12, v12, v8")
            a("v_add_u32 v13, v10, v12")
            a("v_add_u32 v14, 8, v13")
        a("v_and_b32 v8, 63, v0")
        a("v_lshlrev_b32 v8, 4, v8")
        a(f"s_mul_i32 s{S_T0}, s{S_WAVE}, {WPW}")
        a(f"v_add_u32 v8, s{S_T0}, v8")
        a("s_waitcnt lgkmcnt(0)")
        if kind == 'r':
            chunks = [('qkv', m, ks) for m in (1, 2, 0) for ks in range(8)] + [('wo', j, ks) for ks in range(2) for j in range(4)]
        else:
            chunks = [('qkv', m, ks) for m in (1, 2, 0, 3) for ks in range(8)]
        DEPTH = 5
        LAND = 16
        TMP = 96
        def issue(ci):
            knd, x, ks = chunks[ci]
            base = LAND + 16 * (ci % DEPTH)
            for i in range(4):
                if knd == 'qkv' and x < 3:
                    sp = [S_P0, S_P1, S_P2][x]
                    off = (64 * ks + 16 * i) * 8192
                    src = 3
                elif knd == 'qkv':
                    sp = S_P3
                    off = (64 * ks + 16 * i) * 1024
                    src = 4
                else:
                    sp = S_P3
                    off = (64 * ks + 16 * i) * 1024 + x * 64
                    src = 4
                a(f"v_add_u32 v11, {off}, v{src}") if off else a(f"v_mov_b32 v11, v{src}")
                a(f"global_load_dwordx4 {vr(base+4*i,4)}, v11, s[{sp}:{sp+1}]")
        for ci in range(DEPTH):
            issue(ci)
        n = len(chunks)
        for ci in range(n):
            knd, x, ks = chunks[ci]
            base = LAND + 16 * (ci % DEPTH)
            sb = (ci & 1) * 16384
            inflight = min(DEPTH, n - ci)
            a(f"s_waitcnt vmcnt({4*(inflight-1)})")
            for i in range(4):
                a(f"ds_write_b128 v5, {vr(base+4*i,4)} offset:{sb + 4096*i}")
            a("s_waitcnt lgkmcnt(0)")
            if ci + DEPTH < n:
                issue(ci + DEPTH)
            a("s_barrier")
            for tt in range(2):
                op = (knd, 2 * x + tt, ks)
                hk, hb = HOMES[op]
                dk, db = (('v', TMP) if hk == 'lds' else (hk, hb))
                areg = (13 + tt) if (kind == 'x' and x == 3) else (6 + tt)
                for hbk in range(2):
                    for u in range(2):
                        off = sb + (32 * hbk + 4 * u) * 256
                        a(f"ds_read_b64_tr_b16 {rr(dk, db + 4*hbk + 2*u, 2)}, v{areg} offset:{off}")
                if hk == 'lds':
                    a("s_waitcnt lgkmcnt(0)")
                    a(f"ds_write_b128 v8, {vr(TMP,4)} offset:{hb*2048}")
                    a(f"ds_write_b128 v8, {vr(TMP+4,4)} offset:{hb*2048+1024}")
            a("s_waitcnt lgkmcnt(0)")
        a("s_barrier")

    def finish(self, launch_lines):
        body = self.a.text()
        s = HEADER + launch_lines + '\n'
        s += '.amdgcn_target "amdgcn-amd-amdhsa--gfx950"\n.text\n'
        s += f'.globl {KNAME}\n.p2align 8\n.type {KNAME},@function\n{KNAME}:\n'
        s += body
        s += 'L_end:\n    s_endpgm\n'
        s += f'''.section .rodata,"a"
.p2align 6
.amdhsa_kernel {KNAME}
  .amdhsa_next_free_vgpr 512
  .amdhsa_next_free_sgpr 102
  .amdhsa_accum_offset 256
  .amdhsa_group_segment_fixed_size 0
  .amdhsa_kernarg_size 120
  .amdhsa_user_sgpr_count 2
  .amdhsa_user_sgpr_kernarg_segment_ptr 1
  .amdhsa_system_sgpr_workgroup_id_x 1
.end_amdhsa_kernel
'''
        return s
```

```python
from gcommon import *

HOMES = make_homes_r()

S_MCUR = 22
S_MNXT = 24
S_MRST = 26
S_PART = 28
S_KVG = 30
S_KVM = 32
S_FKV = 34
S_FKVM = 36
S_HI = 42
S_C = 44
S_LAYER = 45
S_KVL = 46

L16, T16, IDX, QKW, TRA, OWA, WLA, PST, KMO, VMO, PUB = 1, 2, 3, 4, 5, 6, 7, 8, 9, 10, 11
SENT = 12
MA, ACC, WB = 16, 48, 72
FLG = 104
POLL = 105
PRD = 106
RDW = 107
RDR = 108
TRK = 109
NEG = 110
TMPV = 111

class GenR:
    def r_init(self):
        a = self.a
        sc = self.sc
        a(f"s_mov_b32 s{S_LAYER}, s{S_TEAM}")
        a(f"s_lshl_b32 s{S_T0}, s{S_LAYER}, 25")
        a(f"s_lshl_b32 s{S_T1}, s{S_RANK}, 14")
        a(f"s_add_u32 s{S_T0}, s{S_T0}, s{S_T1}")
        add64(a, S_KVG, S_WS, f"s{S_T0}")
        a(f"s_lshl_b32 s{S_T0}, s{S_LAYER}, 23")
        a(f"s_lshl_b32 s{S_T1}, s{S_RANK}, 12")
        a(f"s_add_u32 s{S_T0}, s{S_T0}, s{S_T1}")
        a(f"s_add_u32 s{S_T0}, s{S_T0}, {KVM_OFF[0]}")
        add64(a, S_KVM, S_WS, f"s{S_T0}")
        a(f"s_lshl_b32 s{S_T0}, s{S_LAYER}, 13")
        a(f"s_lshl_b32 s{S_T1}, s{S_RANK}, 2")
        a(f"s_add_u32 s{S_T0}, s{S_T0}, s{S_T1}")
        a(f"s_add_u32 s{S_T1}, s{S_T0}, {FKV_OFF[0]}")
        add64(a, S_FKV, S_WS, f"s{S_T1}")
        a(f"s_add_u32 s{S_T1}, s{S_T0}, {FKVM_OFF[0]}")
        add64(a, S_FKVM, S_WS, f"s{S_T1}")
        add64(a, S_MCUR, S_TS, R_MEMB)
        add64(a, S_MNXT, S_TS, R_MEMB + 8192)
        add64(a, S_MRST, S_TS, R_MEMB + 16384)
        add64(a, S_PART, S_TS, R_PART)
        a(f"s_mov_b32 s{S_HI}, 0")
        a(f"s_mov_b32 s{S_HI+1}, -1")
        import math
        c = (128 ** -0.5) * math.log2(math.e)
        import struct
        a(f"s_mov_b32 s{S_C}, 0x{struct.unpack('<I', struct.pack('<f', c))[0]:08x}")
        if self.stamps:
            a(f"s_lshl_b32 s{S_T0}, s{S_RANK}, 13")
            a(f"s_lshl_b32 s{S_T1}, s{S_LAYER}, 18")
            a(f"s_add_u32 s{S_T0}, s{S_T0}, s{S_T1}")
            a(f"s_add_u32 s{S_T0}, s{S_T0}, {STAMP_OFF}")
            add64(a, S_ST, S_WS, f"s{S_T0}")

        a("v_and_b32 v16, 63, v0")
        a(f"v_lshlrev_b32 v{L16}, 4, v16")
        a(f"v_lshlrev_b32 v{T16}, 4, v0")
        for i in range(4):
            a(f"v_mov_b32 v{SENT+i}, -1")
        a(f"s_lshl_b32 s{S_T0}, s{S_RANK}, 14")
        a(f"s_lshl_b32 s{S_T1}, s{S_WAVE}, 12")
        a(f"s_add_u32 s{S_T0}, s{S_T0}, s{S_T1}")
        a(f"v_add_u32 v{PRD}, s{S_T0}, v{L16}")
        a(f"v_add_u32 v17, {512*1024}, v{PRD}")
        for j in range(4):
            a(f"global_store_dwordx4 v{PRD}, {vr(SENT,4)}, s[{S_PART}:{S_PART+1}] offset:{1024*j}{sc}")
            a(f"global_store_dwordx4 v17, {vr(SENT,4)}, s[{S_PART}:{S_PART+1}] offset:{1024*j}{sc}")
        a(f"s_lshl_b32 s{S_T0}, s{S_RANK}, 8")
        a(f"v_lshlrev_b32 v{PUB}, 2, v16")
        a(f"v_add_u32 v{PUB}, s{S_T0}, v{PUB}")
        lskip = self.lab('minit')
        a(f"s_cmp_lg_u32 s{S_WAVE}, 0")
        a(f"s_cbranch_scc1 {lskip}")
        a(f"s_load_dwordx2 s[{S_P0}:{S_P0+1}], s[0:1], 8")
        a("v_bfe_u32 v17, v16, 2, 3")
        a("v_lshlrev_b32 v17, 10, v17")
        a("v_and_b32 v18, 3, v16")
        a("v_lshl_add_u32 v17, v18, 3, v17")
        a("v_lshrrev_b32 v18, 5, v16")
        a("v_lshl_add_u32 v17, v18, 2, v17")
        a(f"s_lshl_b32 s{S_T0}, s{S_RANK}, 5")
        a(f"v_add_u32 v17, s{S_T0}, v17")
        a("s_waitcnt lgkmcnt(0)")
        a(f"global_load_dword v18, v17, s[{S_P0}:{S_P0+1}]")
        a(f"global_store_dword v{PUB}, v{SENT}, s[{S_MNXT}:{S_MNXT+1}]{sc}")
        a(f"global_store_dword v{PUB}, v{SENT}, s[{S_MRST}:{S_MRST+1}]{sc}")
        a("s_waitcnt vmcnt(0)")
        a("v_min_u32 v18, -2, v18")
        a(f"global_store_dword v{PUB}, v18, s[{S_MCUR}:{S_MCUR+1}]{sc}")
        a.label(lskip)
        a("s_waitcnt vmcnt(0)")
        a("s_barrier")

    def r_consts(self):
        a = self.a
        a("v_and_b32 v16, 63, v0")
        a(f"v_lshlrev_b32 v{L16}, 4, v16")
        a(f"v_lshlrev_b32 v{T16}, 4, v0")
        for i in range(4):
            a(f"v_mov_b32 v{SENT+i}, -1")
        a(f"v_mov_b32 v{NEG}, 0xff800000")
        a(f"s_lshl_b32 s{S_T0}, s{S_RANK}, 14")
        a(f"s_lshl_b32 s{S_T1}, s{S_WAVE}, 12")
        a(f"s_add_u32 s{S_T0}, s{S_T0}, s{S_T1}")
        a(f"v_add_u32 v{PRD}, s{S_T0}, v{L16}")
        a(f"s_lshl_b32 s{S_T0}, s{S_RANK}, 8")
        a(f"v_lshlrev_b32 v{PUB}, 2, v16")
        a(f"v_add_u32 v{PUB}, s{S_T0}, v{PUB}")
        a("v_and_b32 v17, 8, v16")
        a("v_cmp_ne_u32 vcc, 0, v17")
        a("v_mov_b32 v17, 0x4444")
        a("v_mov_b32 v18, 0xeeee")
        a(f"v_cndmask_b32 v{IDX}, v17, v18, vcc")
        a(f"s_lshl_b32 s{S_T0}, s{S_WAVE}, 11")
        a(f"v_add_u32 v{POLL}, s{S_T0}, v{L16}")
        a("v_lshrrev_b32 v17, 5, v16")
        a("v_lshlrev_b32 v17, 4, v17")
        a("v_and_b32 v18, 15, v16")
        a("v_add_u32 v17, v17, v18")
        a("v_lshlrev_b32 v17, 4, v17")
        a("v_bfe_u32 v18, v16, 4, 1")
        a("v_lshl_add_u32 v17, v18, 3, v17")
        a(f"s_lshl_b32 s{S_T0}, s{S_WAVE}, 9")
        a(f"s_add_u32 s{S_T0}, s{S_T0}, {L_QK}")
        a(f"v_add_u32 v{QKW}, s{S_T0}, v17")
        a("v_lshrrev_b32 v17, 4, v16")
        a("v_lshlrev_b32 v17, 2, v17")
        a("v_bfe_u32 v18, v16, 2, 2")
        a("v_add_u32 v17, v17, v18")
        a("v_lshlrev_b32 v17, 4, v17")
        a("v_and_b32 v18, 1, v16")
        a("v_lshl_add_u32 v17, v18, 3, v17")
        a(f"v_add_u32 v{TRA}, {L_QK}, v17")
        a(f"s_lshl_b32 s{S_T0}, s{S_WAVE}, 9")
        a(f"v_add_u32 v{TRK}, s{S_T0}, v{TRA}")
        a("v_and_b32 v17, 7, v16")
        a("v_lshlrev_b32 v17, 4, v17")
        a("v_lshrrev_b32 v18, 4, v16")
        a("v_lshl_add_u32 v17, v18, 2, v17")
        a(f"s_lshl_b32 s{S_T0}, s{S_WAVE}, 9")
        a(f"s_add_u32 s{S_T0}, s{S_T0}, {L_OX}")
        a(f"v_add_u32 v{OWA}, s{S_T0}, v17")
        a(f"s_mul_i32 s{S_T0}, s{S_WAVE}, {WPW}")
        a(f"v_add_u32 v{WLA}, s{S_T0}, v{L16}")
        a("v_lshrrev_b32 v17, 5, v16")
        a("v_lshlrev_b32 v17, 14, v17")
        a("v_and_b32 v18, 31, v16")
        a("v_lshl_add_u32 v17, v18, 4, v17")
        a(f"s_lshl_b32 s{S_T0}, s{S_WAVE}, 17")
        a(f"s_lshl_b32 s{S_T1}, s{S_RANK}, 9")
        a(f"s_add_u32 s{S_T0}, s{S_T0}, s{S_T1}")
        a(f"v_add_u32 v{PST}, s{S_T0}, v17")
        a("v_lshrrev_b32 v17, 4, v16")
        a("v_lshlrev_b32 v17, 7, v17")
        a("v_and_b32 v18, 7, v16")
        a("v_lshl_add_u32 v17, v18, 4, v17")
        a(f"s_lshl_b32 s{S_T0}, s{S_WAVE}, 9")
        a(f"v_add_u32 v{KMO}, s{S_T0}, v17")
        a("v_and_b32 v17, 15, v16")
        a("v_lshlrev_b32 v17, 4, v17")
        a("v_bfe_u32 v18, v16, 4, 1")
        a("v_lshl_add_u32 v17, v18, 3, v17")
        a(f"s_lshl_b32 s{S_T0}, s{S_WAVE}, 9")
        a(f"s_add_u32 s{S_T0}, s{S_T0}, 2048")
        a(f"v_add_u32 v{VMO}, s{S_T0}, v17")
        a("v_bfe_u32 v17, v16, 4, 1")
        a("v_lshlrev_b32 v17, 2, v17")
        a("v_lshrrev_b32 v18, 5, v16")
        a("v_add_u32 v17, v17, v18")
        a("v_lshlrev_b32 v17, 6, v17")
        a("v_and_b32 v18, 15, v16")
        a("v_lshl_add_u32 v17, v18, 2, v17")
        a(f"s_lshl_b32 s{S_T0}, s{S_WAVE}, 9")
        a(f"s_add_u32 s{S_T0}, s{S_T0}, {L_RED}")
        a(f"v_add_u32 v{RDW}, s{S_T0}, v17")
        a("v_bfe_u32 v17, v16, 2, 3")
        a("v_lshlrev_b32 v17, 6, v17")
        a("v_and_b32 v18, 3, v16")
        a("v_lshl_add_u32 v17, v18, 4, v17")
        a("v_lshrrev_b32 v18, 5, v16")
        a("v_lshl_add_u32 v17, v18, 3, v17")
        a(f"v_add_u32 v{RDR}, {L_RED}, v17")


    def r_main(self, use_flags=True):
        a = self.a
        sc = self.sc
        a(f"v_mov_b32 v{TMPV}, 0")
        def wait_flag():
            lok = self.lab('fok'); lsp = self.lab('fsp')
            a(f"v_readfirstlane_b32 s{S_T0}, v{FLG}")
            a(f"s_cmp_lg_u32 s{S_T0}, 0")
            a(f"s_cbranch_scc1 {lok}")
            a(f"s_mov_b32 s{S_SPIN}, {SPIN_MAX}")
            a.label(lsp)
            a(f"global_load_dword v{FLG}, v{TMPV}, s[{S_FKV}:{S_FKV+1}] sc1")
            a("s_waitcnt vmcnt(0)")
            a(f"v_readfirstlane_b32 s{S_T0}, v{FLG}")
            a(f"s_sub_u32 s{S_SPIN}, s{S_SPIN}, 1")
            a(f"s_cmp_eq_u32 s{S_SPIN}, 0")
            a(f"s_cbranch_scc1 {self.end}")
            a(f"s_cmp_eq_u32 s{S_T0}, 0")
            a(f"s_cbranch_scc1 {lsp}")
            a.label(lok)
        def kv_dma(lds_sreg):
            a(f"s_lshl_b32 s{S_T0}, s{S_WAVE}, 12")
            a(f"v_add_u32 v{WB}, s{S_T0}, v{L16}")
            a(f"s_add_u32 m0, s{S_T0}, s{lds_sreg}")
            for j in range(4):
                a(f"global_load_lds_dwordx4 v{WB}, s[{S_KVG}:{S_KVG+1}] offset:{1024*j} sc1")
        a(f"v_mov_b32 v{FLG}, 0")
        if use_flags:
            wait_flag()
        a(f"s_mov_b32 s{S_KVL}, {L_KV}")
        kv_dma(S_KVL)
        add64(a, S_KVG, S_KVG, 512 * 1024)
        add64(a, S_FKV, S_FKV, 128)
        if use_flags:
            a(f"global_load_dword v{FLG}, v{TMPV}, s[{S_FKV}:{S_FKV+1}] sc1")
        a("s_waitcnt vmcnt(0)")
        a("s_barrier")
        a(f"s_mov_b32 s{S_STEP}, 0")

        lloop = self.lab('rstep')
        a.label(lloop)
        self.nstamp = 0
        self.stamp()
        for i in range(24):
            a(f"v_mov_b32 v{ACC+i}, 0")
        lp = self.lab('pa')
        a(f"s_mov_b32 s{S_SPIN}, {SPIN_MAX}")
        a.label(lp)
        a(f"global_load_dwordx4 {vr(WB,4)}, v{POLL}, s[{S_MCUR}:{S_MCUR+1}] sc1")
        a(f"global_load_dwordx4 {vr(WB+4,4)}, v{POLL}, s[{S_MCUR}:{S_MCUR+1}] offset:1024 sc1")
        a(f"s_sub_u32 s{S_SPIN}, s{S_SPIN}, 1")
        a(f"s_cmp_eq_u32 s{S_SPIN}, 0")
        a(f"s_cbranch_scc1 {self.end}")
        a("s_waitcnt vmcnt(0)")
        a(f"v_max3_u32 v{WB+8}, v{WB}, v{WB+1}, v{WB+2}")
        a(f"v_max3_u32 v{WB+9}, v{WB+3}, v{WB+4}, v{WB+5}")
        a(f"v_max3_u32 v{WB+8}, v{WB+8}, v{WB+6}, v{WB+7}")
        a(f"v_max_u32 v{WB+8}, v{WB+8}, v{WB+9}")
        a(f"v_cmp_eq_u32 vcc, -1, v{WB+8}")
        a(f"s_cbranch_vccnz {lp}")
        a(f"ds_write_b128 v{POLL}, {vr(WB,4)} offset:{L_MEMS - 131072}") if False else None
        a(f"v_add_u32 v{WB+8}, {L_MEMS}, v{POLL}")
        a(f"ds_write_b128 v{WB+8}, {vr(WB,4)}")
        a(f"ds_write_b128 v{WB+8}, {vr(WB+4,4)} offset:1024")
        self.stamp()
        lnopf = self.lab('nopf')
        a(f"s_cmp_ge_u32 s{S_STEP}, {NSEG-1}")
        a(f"s_cbranch_scc1 {lnopf}")
        if use_flags:
            wait_flag()
        a(f"s_xor_b32 s{S_T2}, s{S_KVL}, {L_KV ^ (L_KV + 16384)}")
        kv_dma2 = S_T2
        a(f"s_lshl_b32 s{S_T0}, s{S_WAVE}, 12")
        a(f"v_add_u32 v{WB+9}, s{S_T0}, v{L16}")
        a(f"s_add_u32 m0, s{S_T0}, s{S_T2}")
        for j in range(4):
            a(f"global_load_lds_dwordx4 v{WB+9}, s[{S_KVG}:{S_KVG+1}] offset:{1024*j} sc1")
        add64(a, S_KVG, S_KVG, 512 * 1024)
        add64(a, S_FKV, S_FKV, 128)
        if use_flags:
            a(f"global_load_dword v{FLG}, v{TMPV}, s[{S_FKV}:{S_FKV+1}] sc1")
        a.label(lnopf)
        a("s_waitcnt lgkmcnt(0)")
        a("s_barrier")
        a(f"v_add_u32 v{WB+8}, {L_MEMS}, v{L16}")
        for ks in range(8):
            a(f"ds_read_b128 {vr(MA+4*ks,4)}, v{WB+8} offset:{1024*ks}")
        for ks in range(8):
            a(f"s_waitcnt lgkmcnt({7-ks})")
            for t in range(4):
                hk, hb = HOMES[('qkv', t, ks)]
                assert hk != 'lds'
                a(f"v_smfmac_f32_16x16x64_bf16 {vr(ACC+4*t,4)}, {vr(MA+4*ks,4)}, {rr(hk,hb,8)}, v{IDX}")
        self.stamp()
        vops = [('qkv', t, ks) for ks in range(8) for t in (4, 5)]
        lds_v = [o for o in vops if HOMES[o][0] == 'lds']
        bufmap = {}
        def lds_fetch(o, slot):
            hb = HOMES[o][1]
            a(f"ds_read_b128 {vr(WB+8*slot,4)}, v{WLA} offset:{hb*2048}")
            a(f"ds_read_b128 {vr(WB+8*slot+4,4)}, v{WLA} offset:{hb*2048+1024}")
            bufmap[o] = WB + 8 * slot
        for i, o in enumerate(lds_v[:4]):
            lds_fetch(o, i)
        for o in vops:
            if HOMES[o][0] == 'lds':
                continue
            _, t, ks = o
            hk, hb = HOMES[o]
            a(f"v_smfmac_f32_16x16x64_bf16 {vr(ACC+4*t,4)}, {vr(MA+4*ks,4)}, {rr(hk,hb,8)}, v{IDX}")
        for p in range(2):
            b0, b1 = ACC + 8 * p, ACC + 8 * p + 4
            for i in range(4):
                a(f"v_permlane32_swap_b32 v{b0+i}, v{b1+i}")
            for i in range(4):
                a(f"v_add_f32 v{b0+i}, v{b0+i}, v{b1+i}")
            a(f"v_cvt_pk_bf16_f32 v{b1}, v{b0}, v{b0+1}")
            a(f"v_cvt_pk_bf16_f32 v{b1+1}, v{b0+2}, v{b0+3}")
            a(f"ds_write_b64 v{QKW}, {vr(b1,2)} offset:{2048*p}")
        a("s_waitcnt lgkmcnt(0)")
        for i, o in enumerate(lds_v[:4]):
            _, t, ks = o
            a(f"v_smfmac_f32_16x16x64_bf16 {vr(ACC+4*t,4)}, {vr(MA+4*ks,4)}, {vr(bufmap[o],8)}, v{IDX}")
        for i, o in enumerate(lds_v[4:]):
            lds_fetch(o, i)
        a("s_waitcnt lgkmcnt(0)")
        for i, o in enumerate(lds_v[4:]):
            _, t, ks = o
            a(f"v_smfmac_f32_16x16x64_bf16 {vr(ACC+4*t,4)}, {vr(MA+4*ks,4)}, {vr(bufmap[o],8)}, v{IDX}")
        a("s_barrier")
        self.stamp()
        QF, KF, KXF, VXF = MA, MA + 16, WB, ACC
        KMT = ACC + 8
        SM, SX0, SX1 = ACC + 12, None, None
        for ks in range(4):
            for u in range(2):
                a(f"ds_read_b64_tr_b16 {vr(QF+4*ks+2*u,2)}, v{TRA} offset:{ks*512+u*256}")
        for ks in range(4):
            for u in range(2):
                a(f"ds_read_b64_tr_b16 {vr(KF+4*ks+2*u,2)}, v{TRA} offset:{2048+ks*512+u*256}")
        a(f"v_add_u32 v{TMPV}, s{S_KVL}, v{L16}")
        for f in range(8):
            a(f"ds_read_b128 {vr(KXF+4*f,4)}, v{TMPV} offset:{1024*f}")
        a(f"s_lshl_b32 s{S_T0}, s{S_WAVE}, 11")
        a(f"v_add_u32 v{TMPV}, s{S_T0}, v{TMPV}")
        for t in range(2):
            a(f"ds_read_b128 {vr(VXF+4*t,4)}, v{TMPV} offset:{8192+1024*t}")
        for u in range(2):
            a(f"ds_read_b64_tr_b16 {vr(KMT+2*u,2)}, v{TRK} offset:{2048+u*256}")
        a(f"v_mov_b32 v{TMPV}, 0")
        for t in range(2):
            b = ACC + 16 + 4 * t
            for i in range(4):
                a(f"v_mov_b32 v{SM+i}, v{b+i}")
            for i in range(4):
                a(f"v_permlane32_swap_b32 v{SM+i}, v{b+i}")
            for i in range(4):
                a(f"v_add_f32 v{b+i}, v{b+i}, v{SM+i}")
            a(f"v_cvt_pk_bf16_f32 v{b}, v{b}, v{b+1}")
            a(f"v_cvt_pk_bf16_f32 v{b+1}, v{b+2}, v{b+3}")
            a(f"global_store_dwordx2 v{VMO}, {vr(b,2)}, s[{S_KVM}:{S_KVM+1}] offset:{256*t} sc1")
        VMF = [ACC + 16, ACC + 20]
        SX0, SX1 = ACC + 18, ACC + 22
        a("s_waitcnt lgkmcnt(0)")
        a(f"global_store_dwordx4 v{KMO}, {vr(KMT,4)}, s[{S_KVM}:{S_KVM+1}] sc1")
        a(f"v_mov_b32 v{ACC+18}, v{ACC+20}")
        a(f"v_mov_b32 v{ACC+19}, v{ACC+21}")
        VMF = [ACC + 16, ACC + 18]
        SX0 = ACC + 20
        SX1 = KMT
        for ks in range(4):
            c0 = '0' if ks == 0 else vr(SM, 4)
            a(f"v_mfma_f32_16x16x32_bf16 {vr(SM,4)}, {vr(KF+4*ks,4)}, {vr(QF+4*ks,4)}, {c0}")
            c0 = '0' if ks == 0 else vr(SX0, 4)
            a(f"v_mfma_f32_16x16x32_bf16 {vr(SX0,4)}, {vr(KXF+4*ks,4)}, {vr(QF+4*ks,4)}, {c0}")
            c0 = '0' if ks == 0 else vr(SX1, 4)
            a(f"v_mfma_f32_16x16x32_bf16 {vr(SX1,4)}, {vr(KXF+16+4*ks,4)}, {vr(QF+4*ks,4)}, {c0}")
        self.stamp()
        wo_lds = [o for o in [('wo', ct, ks) for ks in range(2) for ct in range(8)] if HOMES[o][0] == 'lds']
        a("s_nop 7")
        for i, o in enumerate(wo_lds[:4]):
            lds_fetch(o, i)
        T = MA
        S = [SM + i for i in range(4)] + [SX0 + i for i in range(4)] + [SX1 + i for i in range(4)]
        for i in range(4):
            a(f"v_cndmask_b32 v{SM+i}, v{SM+i}, v{NEG}, s[{S_HI}:{S_HI+1}]")
        a(f"v_max3_f32 v{T}, v{S[0]}, v{S[1]}, v{S[2]}")
        a(f"v_max3_f32 v{T+1}, v{S[3]}, v{S[4]}, v{S[5]}")
        a(f"v_max3_f32 v{T+2}, v{S[6]}, v{S[7]}, v{S[8]}")
        a(f"v_max3_f32 v{T+3}, v{S[9]}, v{S[10]}, v{S[11]}")
        a(f"v_max3_f32 v{T}, v{T}, v{T+1}, v{T+2}")
        a(f"v_max_f32 v{T}, v{T}, v{T+3}")
        for sw in ('16', '32'):
            a(f"v_mov_b32 v{T+1}, v{T}")
            a(f"v_permlane{sw}_swap_b32 v{T+1}, v{T}")
            a(f"v_max_f32 v{T}, v{T}, v{T+1}")
        a(f"v_mul_f32 v{T}, s{S_C}, v{T}")
        for i in range(12):
            a(f"v_fma_f32 v{S[i]}, v{S[i]}, s{S_C}, -v{T}")
        for i in range(12):
            a(f"v_exp_f32 v{S[i]}, v{S[i]}")
        a(f"v_add_f32 v{T}, v{S[0]}, v{S[1]}")
        a(f"v_add_f32 v{T+1}, v{S[2]}, v{S[3]}")
        a(f"v_add_f32 v{T+2}, v{S[4]}, v{S[5]}")
        a(f"v_add_f32 v{T+3}, v{S[6]}, v{S[7]}")
        a(f"v_add_f32 v{T+4}, v{S[8]}, v{S[9]}")
        a(f"v_add_f32 v{T+5}, v{S[10]}, v{S[11]}")
        a(f"v_add_f32 v{T}, v{T}, v{T+1}")
        a(f"v_add_f32 v{T+2}, v{T+2}, v{T+3}")
        a(f"v_add_f32 v{T+4}, v{T+4}, v{T+5}")
        a(f"v_add_f32 v{T}, v{T}, v{T+2}")
        a(f"v_add_f32 v{T}, v{T}, v{T+4}")
        for sw in ('16', '32'):
            a(f"v_mov_b32 v{T+1}, v{T}")
            a(f"v_permlane{sw}_swap_b32 v{T+1}, v{T}")
            a(f"v_add_f32 v{T}, v{T}, v{T+1}")
        a(f"v_rcp_f32 v{T}, v{T}")
        for i in range(12):
            a(f"v_mul_f32 v{S[i]}, v{S[i]}, v{T}")
        PM, PX = T + 2, T + 4
        a(f"v_cvt_pk_bf16_f32 v{PM}, v{S[0]}, v{S[1]}")
        a(f"v_cvt_pk_bf16_f32 v{PM+1}, v{S[2]}, v{S[3]}")
        for i in range(4):
            a(f"v_cvt_pk_bf16_f32 v{PX+i}, v{S[4+2*i]}, v{S[5+2*i]}")
        self.stamp()
        O = [MA + 8, MA + 12]
        for t in range(2):
            a(f"v_mfma_f32_16x16x32_bf16 {vr(O[t],4)}, {vr(VXF+4*t,4)}, {vr(PX,4)}, 0")
        for t in range(2):
            a(f"v_mfma_f32_16x16x16_bf16 {vr(O[t],4)}, {vr(VMF[t],2)}, {vr(PM,2)}, {vr(O[t],4)}")
        WA = [MA + 16 + 4 * i for i in range(4)] + [ACC + 8 + 4 * i for i in range(4)]
        for b in WA[:4]:
            for i in range(4):
                a(f"v_mov_b32 v{b+i}, 0")
        for t in range(2):
            a(f"v_cvt_pk_bf16_f32 v{O[t]}, v{O[t]}, v{O[t]+1}")
            a(f"v_cvt_pk_bf16_f32 v{O[t]+1}, v{O[t]+2}, v{O[t]+3}")
            a(f"ds_write2_b32 v{OWA}, v{O[t]}, v{O[t]+1} offset0:{64*t} offset1:{64*t+32}")
        for b in WA[4:]:
            for i in range(4):
                a(f"v_mov_b32 v{b+i}, 0")
        a("s_waitcnt lgkmcnt(0)")
        a("s_barrier")
        OA = MA
        a(f"v_add_u32 v{ACC}, {L_OX}, v{L16}")
        a(f"ds_read_b128 {vr(OA,4)}, v{ACC}")
        a(f"ds_read_b128 {vr(OA+4,4)}, v{ACC} offset:1024")
        a("s_waitcnt lgkmcnt(0)")
        self.stamp()
        def wo_mm(o, breg):
            _, ct, ks = o
            a(f"v_smfmac_f32_16x16x64_bf16 {vr(WA[ct],4)}, {vr(OA+4*ks,4)}, {breg}, v{IDX}")
        for o in wo_lds[:3]:
            wo_mm(o, vr(bufmap[o], 8))
        a("s_nop 3")
        for i, o in enumerate(wo_lds[4:]):
            lds_fetch(o, i)
        wo_mm(wo_lds[3], vr(bufmap[wo_lds[3]], 8))
        for o in [('wo', ct, ks) for ks in range(2) for ct in range(8)]:
            if HOMES[o][0] != 'lds':
                wo_mm(o, rr(HOMES[o][0], HOMES[o][1], 8))
        a("s_waitcnt lgkmcnt(0)")
        for o in wo_lds[4:]:
            wo_mm(o, vr(bufmap[o], 8))
        self.stamp()
        for j in range(4):
            b0, b1 = WA[2 * j], WA[2 * j + 1]
            for i in range(4):
                a(f"v_permlane32_swap_b32 v{b0+i}, v{b1+i}")
            for i in range(4):
                a(f"v_add_f32 v{b0+i}, v{b0+i}, v{b1+i}")
            if j == 0:
                a(f"global_store_dwordx4 v{PST}, {vr(b0,4)}, s[{S_PART}:{S_PART+1}]{sc}")
            else:
                a(f"v_add_u32 v{ACC+j}, {32768*j}, v{PST}")
                a(f"global_store_dwordx4 v{ACC+j}, {vr(b0,4)}, s[{S_PART}:{S_PART+1}]{sc}")
        self.stamp()
        lp = self.lab('pk')
        a(f"s_mov_b32 s{S_SPIN}, {SPIN_MAX}")
        a.label(lp)
        for j in range(4):
            a(f"global_load_dwordx4 {vr(WB+4*j,4)}, v{PRD}, s[{S_PART}:{S_PART+1}] offset:{1024*j} sc1")
        a(f"s_sub_u32 s{S_SPIN}, s{S_SPIN}, 1")
        a(f"s_cmp_eq_u32 s{S_SPIN}, 0")
        a(f"s_cbranch_scc1 {self.end}")
        a("s_waitcnt vmcnt(0)")
        X = WB + 16
        a(f"v_max3_u32 v{X}, v{WB}, v{WB+1}, v{WB+2}")
        a(f"v_max3_u32 v{X+1}, v{WB+3}, v{WB+4}, v{WB+5}")
        a(f"v_max3_u32 v{X+2}, v{WB+6}, v{WB+7}, v{WB+8}")
        a(f"v_max3_u32 v{X+3}, v{WB+9}, v{WB+10}, v{WB+11}")
        a(f"v_max3_u32 v{X+4}, v{WB+12}, v{WB+13}, v{WB+14}")
        a(f"v_max3_u32 v{X}, v{X}, v{X+1}, v{X+2}")
        a(f"v_max3_u32 v{X+3}, v{X+3}, v{X+4}, v{WB+15}")
        a(f"v_max_u32 v{X}, v{X}, v{X+3}")
        a(f"v_cmp_eq_u32 vcc, -1, v{X}")
        a(f"s_cbranch_vccnz {lp}")
        self.stamp()
        for i in range(4):
            a(f"v_add_f32 v{WB+i}, v{WB+i}, v{WB+4+i}")
            a(f"v_add_f32 v{WB+8+i}, v{WB+8+i}, v{WB+12+i}")
        for i in range(4):
            a(f"v_add_f32 v{WB+i}, v{WB+i}, v{WB+8+i}")
        a(f"v_permlane32_swap_b32 v{WB}, v{WB+1}")
        a(f"v_permlane32_swap_b32 v{WB+2}, v{WB+3}")
        a(f"v_add_f32 v{WB}, v{WB}, v{WB+1}")
        a(f"v_add_f32 v{WB+2}, v{WB+2}, v{WB+3}")
        a(f"ds_write2_b32 v{RDW}, v{WB}, v{WB+2} offset0:0 offset1:32")
        for j in range(4):
            a(f"global_store_dwordx4 v{PRD}, {vr(SENT,4)}, s[{S_PART}:{S_PART+1}] offset:{1024*j}{sc}")
        a("s_waitcnt lgkmcnt(0)")
        a("s_barrier")
        l1 = self.lab('w1'); l2 = self.lab('w2')
        a(f"s_cmp_lg_u32 s{S_WAVE}, 0")
        a(f"s_cbranch_scc1 {l1}")
        for w in range(4):
            a(f"ds_read_b64 {vr(WB+2*w,2)}, v{RDR} offset:{512*w}")
        a("s_waitcnt lgkmcnt(0)")
        a(f"v_add_f32 v{WB}, v{WB}, v{WB+2}")
        a(f"v_add_f32 v{WB+1}, v{WB+1}, v{WB+3}")
        a(f"v_add_f32 v{WB+4}, v{WB+4}, v{WB+6}")
        a(f"v_add_f32 v{WB+5}, v{WB+5}, v{WB+7}")
        a(f"v_add_f32 v{WB}, v{WB}, v{WB+4}")
        a(f"v_add_f32 v{WB+1}, v{WB+1}, v{WB+5}")
        a(f"v_cvt_pk_bf16_f32 v{WB}, v{WB}, v{WB+1}")
        a(f"v_min_u32 v{WB}, -2, v{WB}")
        a(f"global_store_dword v{PUB}, v{WB}, s[{S_MNXT}:{S_MNXT+1}]{sc}")
        self.stamp()
        if self.stamps:
            a("s_waitcnt lgkmcnt(0)")
            for i in range(self.nstamp):
                a(f"v_mov_b32 v{WB+2}, s{S_STAMP0+2*i}")
                a(f"v_mov_b32 v{WB+3}, {4*i}")
                a(f"global_store_dword v{WB+3}, v{WB+2}, s[{S_ST}:{S_ST+1}]")
            add64(a, S_ST, S_ST, 128)
        a(f"s_branch {l2}")
        a.label(l1)
        a(f"s_cmp_lg_u32 s{S_WAVE}, 1")
        a(f"s_cbranch_scc1 {l2}")
        a(f"global_store_dword v{PUB}, v{SENT}, s[{S_MCUR}:{S_MCUR+1}]{sc}")
        a(f"v_mov_b32 v{WB}, 1")
        a("s_mov_b64 exec, 1")
        a(f"global_store_dword v{TMPV}, v{WB}, s[{S_FKVM}:{S_FKVM+1}] sc1")
        a("s_mov_b64 exec, -1")
        a.label(l2)
        a(f"s_mov_b64 s[{S_T0}:{S_T0+1}], s[{S_MCUR}:{S_MCUR+1}]")
        a(f"s_mov_b64 s[{S_MCUR}:{S_MCUR+1}], s[{S_MNXT}:{S_MNXT+1}]")
        a(f"s_mov_b64 s[{S_MNXT}:{S_MNXT+1}], s[{S_MRST}:{S_MRST+1}]")
        a(f"s_mov_b64 s[{S_MRST}:{S_MRST+1}], s[{S_T0}:{S_T0+1}]")
        a(f"s_and_b32 s{S_T0}, s{S_STEP}, 1")
        a(f"s_xor_b32 s{S_T0}, s{S_T0}, 1")
        a(f"s_lshl_b32 s{S_T0}, s{S_T0}, 19")
        a(f"s_add_u32 s{S_T0}, s{S_T0}, {R_PART}")
        add64(a, S_PART, S_TS, f"s{S_T0}")
        a(f"s_xor_b32 s{S_KVL}, s{S_KVL}, {L_KV ^ (L_KV + 16384)}")
        add64(a, S_KVM, S_KVM, 128 * 1024)
        add64(a, S_FKVM, S_FKVM, 128)
        a(f"s_add_u32 s{S_STEP}, s{S_STEP}, 1")
        a(f"s_cmp_lt_u32 s{S_STEP}, {NSEG}")
        a(f"s_cbranch_scc1 {lloop}")
```

```python
from gcommon import *

HX = make_homes_x()

S_XT = 22
S_K = 23
S_TAG = 24
S_SEG = 25
S_A = 26
S_B = 27
S_Q0 = 28
S_Q1 = 30
S_Q2 = 32
S_Q3 = 34
S_TI = 36
S_C = 44
S_X = 50
S_OUT = 52
S_B1 = 54
S_B2 = 56
S_PSB = 58
S_MSK = 60
S_SA, S_SB = 62, 63

L16, GW, FR0, FL, WLA, GL0, GL1, PSV, PSV1, SENT = 1, 2, 3, 7, 8, 9, 10, 11, 12, 13
ZERO = 14
W0 = 16

class GenX:
    def x_consts(self):
        a = self.a
        T = W0
        a(f"v_and_b32 v{T}, 63, v0")
        a(f"v_lshlrev_b32 v{L16}, 4, v{T}")
        a(f"v_and_b32 v{T+1}, 15, v{T}")
        a(f"v_lshrrev_b32 v{T+2}, 4, v{T}")
        a(f"s_and_b32 s{S_T0}, s{S_WAVE}, 1")
        a(f"s_lshl_b32 s{S_T0}, s{S_T0}, 3")
        a(f"v_xor_b32 v{T+3}, s{S_T0}, v{T+1}")
        a(f"v_lshlrev_b32 v{T+3}, 4, v{T+3}")
        a(f"v_lshl_add_u32 v{T+3}, v{T}, 8, v{T+3}")
        a(f"s_lshr_b32 s{S_T0}, s{S_WAVE}, 1")
        a(f"s_lshl_b32 s{S_T0}, s{S_T0}, 14")
        a(f"s_add_u32 s{S_T0}, s{S_T0}, {L_FB}")
        a(f"v_add_u32 v{GW}, s{S_T0}, v{T+3}")
        a(f"v_xor_b32 v{T+3}, v{T+1}, v{T+2}")
        a(f"v_lshlrev_b32 v{T+3}, 4, v{T+3}")
        a(f"v_lshl_add_u32 v{T+3}, v{T+2}, 8, v{T+3}")
        a(f"v_add_u32 v{FR0}, {L_FB}, v{T+3}")
        for m in range(1, 4):
            a(f"v_xor_b32 v{FR0+m}, {64*m}, v{FR0}")
        a(f"v_add_u32 v{FL}, {L_FB}, v{L16}")
        a(f"s_mul_i32 s{S_T0}, s{S_WAVE}, {WPW}")
        a(f"v_add_u32 v{WLA}, s{S_T0}, v{L16}")
        a(f"s_lshl_b32 s{S_T0}, s{S_WAVE}, 13")
        a(f"v_add_u32 v{GL0}, s{S_T0}, v{L16}")
        a(f"v_add_u32 v{GL1}, 4096, v{GL0}")
        a(f"v_lshlrev_b32 v{PSV}, 14, v{T+1}")
        a(f"v_lshl_add_u32 v{PSV}, v{T+2}, 4, v{PSV}")
        a(f"v_add_u32 v{PSV}, s{S_PSB}, v{PSV}")
        a(f"v_add_u32 v{PSV1}, {16*16384}, v{PSV}")
        a(f"v_mov_b32 v{SENT}, -1")
        a(f"v_mov_b32 v{ZERO}, 0")

    def x_sconsts(self):
        a = self.a
        a(f"s_sub_u32 s{S_XT}, s{S_TEAM}, 2")
        a(f"s_lshr_b32 s{S_A}, s{S_RANK}, 2")
        a(f"s_and_b32 s{S_B}, s{S_RANK}, 3")
        a(f"s_mul_i32 s{S_TI}, s{S_B}, 3")
        a(f"s_add_u32 s{S_TI}, s{S_TI}, s{S_WAVE}")
        a(f"s_cmp_eq_u32 s{S_WAVE}, 3")
        a(f"s_cselect_b32 s{S_TI}, 15, s{S_TI}")
        a(f"s_lshl_b32 s{S_PSB}, s{S_A}, 11")
        a(f"s_lshl_b32 s{S_T0}, s{S_B}, 8")
        a(f"s_add_u32 s{S_PSB}, s{S_PSB}, s{S_T0}")
        a(f"s_lshl_b32 s{S_T0}, s{S_WAVE}, 6")
        a(f"s_add_u32 s{S_PSB}, s{S_PSB}, s{S_T0}")
        c = (128 ** -0.5) * math.log2(math.e)
        a(f"s_mov_b32 s{S_C}, {f32hex(c)}")
        a(f"s_mov_b32 s{S_C+1}, {f32hex(c)}")
        a(f"s_load_dwordx2 s[{S_X}:{S_X+1}], s[0:1], 0")
        a(f"s_load_dwordx2 s[{S_OUT}:{S_OUT+1}], s[0:1], 96")
        a(f"s_load_dwordx2 s[{S_B1}:{S_B1+1}], s[0:1], 72")
        a(f"s_load_dwordx2 s[{S_B2}:{S_B2+1}], s[0:1], 88")
        a("s_waitcnt lgkmcnt(0)")

    def allreduce(self, s, t):
        a = self.a
        D = "row_mask:0xf bank_mask:0xf"
        a(f"v_add_f32_dpp v{t}, v{s}, v{s} quad_perm:[1,0,3,2] {D}")
        a(f"v_add_f32_dpp v{s}, v{t}, v{t} quad_perm:[2,3,0,1] {D}")
        a(f"v_add_f32_dpp v{t}, v{s}, v{s} row_half_mirror {D}")
        a(f"v_add_f32_dpp v{s}, v{t}, v{t} row_mirror {D}")
        for sw in ('16', '32'):
            a(f"v_mov_b32 v{t}, v{s}")
            a(f"v_permlane{sw}_swap_b32 v{t}, v{s}")
            a(f"v_add_f32 v{s}, v{s}, v{t}")

    def unpack8(self, dst, src):
        a = self.a
        for i in range(4):
            a(f"v_lshlrev_b32 v{dst+2*i}, 16, v{src+i}")
            a(f"v_and_b32 v{dst+2*i+1}, 0xffff0000, v{src+i}")

    def pack8(self, dst, src):
        a = self.a
        for i in range(4):
            a(f"v_cvt_pk_bf16_f32 v{dst+i}, v{src+2*i}, v{src+2*i+1}")

    def bf16r(self, r):
        a = self.a
        a(f"v_cvt_pk_bf16_f32 v{r}, v{r}, v{r}")
        a(f"v_and_b32 v{r}, 0xffff0000, v{r}")

    def layernorm(self, X, D, P, T):
        a = self.a
        a(f"v_pk_add_f32 {vr(D,2)}, {vr(X,2)}, {vr(X+2,2)}")
        a(f"v_pk_add_f32 {vr(D+2,2)}, {vr(X+4,2)}, {vr(X+6,2)}")
        a(f"v_pk_add_f32 {vr(D,2)}, {vr(D,2)}, {vr(D+2,2)}")
        a(f"v_add_f32 v{T}, v{D}, v{D+1}")
        self.allreduce(T, T + 1)
        a(f"v_mul_f32 v{T}, {f32hex(1.0/512)}, v{T}")
        for i in range(4):
            a(f"v_pk_add_f32 {vr(D+2*i,2)}, {vr(X+2*i,2)}, {vr(T,2)} op_sel_hi:[1,0] neg_lo:[0,1] neg_hi:[0,1]")
        a(f"v_pk_mul_f32 {vr(T+2,2)}, {vr(D,2)}, {vr(D,2)}")
        for i in range(1, 4):
            a(f"v_pk_fma_f32 {vr(T+2,2)}, {vr(D+2*i,2)}, {vr(D+2*i,2)}, {vr(T+2,2)}")
        a(f"v_add_f32 v{T+2}, v{T+2}, v{T+3}")
        self.allreduce(T + 2, T + 3)
        a(f"v_mul_f32 v{T+2}, {f32hex(1.0/512)}, v{T+2}")
        self.bf16r(T)
        self.bf16r(T + 2)
        a(f"v_add_f32 v{T+2}, {f32hex(1e-5)}, v{T+2}")
        self.bf16r(T + 2)
        a(f"v_sqrt_f32 v{T+2}, v{T+2}")
        self.bf16r(T + 2)
        a(f"v_rcp_f32 v{T+2}, v{T+2}")
        for i in range(4):
            a(f"v_pk_add_f32 {vr(D+2*i,2)}, {vr(X+2*i,2)}, {vr(T,2)} op_sel_hi:[1,0] neg_lo:[0,1] neg_hi:[0,1]")
        self.pack8(P, D)
        self.unpack8(D, P)
        for i in range(4):
            a(f"v_pk_mul_f32 {vr(D+2*i,2)}, {vr(D+2*i,2)}, {vr(T+2,2)} op_sel_hi:[1,0]")
        self.pack8(P, D)
        a(f"v_min_u32 v{P}, -2, v{P}")

    def x_init(self):
        a = self.a
        sc = self.sc
        a("v_and_b32 v16, 63, v0")
        a("v_lshlrev_b32 v1, 4, v16")
        a("v_lshlrev_b32 v2, 4, v0")
        for i in range(4):
            a(f"v_mov_b32 v{4+i}, -1")
            a(f"v_mov_b32 v{8+i}, 0")
        a(f"s_lshl_b32 s{S_T0}, s{S_RANK}, 13")
        a(f"s_add_u32 s{S_T0}, s{S_T0}, {X_OB}")
        a(f"v_add_u32 v3, s{S_T0}, v2")
        for slot in range(2):
            for hh in range(2):
                a(f"v_add_u32 v12, {slot*256*KB + hh*4096}, v3")
                a(f"global_store_dwordx4 v12, v[4:7], s[{S_TS}:{S_TS+1}]{sc}")
        a(f"s_lshl_b32 s{S_T0}, s{S_RANK}, 14")
        a(f"s_add_u32 s{S_T0}, s{S_T0}, {X_PART}")
        a(f"v_add_u32 v3, s{S_T0}, v2")
        for bq in range(4):
            for hh in range(4):
                a(f"v_add_u32 v12, {bq*512*KB + hh*4096}, v3")
                a(f"global_store_dwordx4 v12, v[8:11], s[{S_TS}:{S_TS+1}]{sc}")
        a(f"s_lshl_b32 s{S_T0}, s{S_WAVE}, 15")
        a(f"s_lshl_b32 s{S_T1}, s{S_RANK}, 10")
        a(f"s_add_u32 s{S_T0}, s{S_T0}, s{S_T1}")
        a(f"s_add_u32 s{S_T0}, s{S_T0}, {X_XB}")
        a(f"v_add_u32 v12, s{S_T0}, v1")
        a(f"global_store_dwordx4 v12, v[4:7], s[{S_TS}:{S_TS+1}]{sc}")
        lsk = self.lab('hbi')
        a(f"s_cmp_eq_u32 s{S_WAVE}, 3")
        a(f"s_cbranch_scc1 {lsk}")
        a(f"s_mul_i32 s{S_T0}, s{S_A}, {12*KB}")
        a(f"s_lshl_b32 s{S_T1}, s{S_TI}, 10")
        a(f"s_add_u32 s{S_T0}, s{S_T0}, s{S_T1}")
        a(f"s_add_u32 s{S_T0}, s{S_T0}, {X_HB}")
        a(f"v_add_u32 v12, s{S_T0}, v1")
        a(f"global_store_dwordx4 v12, v[4:7], s[{S_TS}:{S_TS+1}]{sc}")
        a(f"v_add_u32 v12, {96*KB}, v12")
        a(f"global_store_dwordx4 v12, v[4:7], s[{S_TS}:{S_TS+1}]{sc}")
        a.label(lsk)
        for it in range(3):
            lsk = self.lab('ln0')
            a(f"s_add_u32 s{S_T2}, s{S_WAVE}, {4*it}")
            a(f"s_mul_i32 s{S_T0}, s{S_T2}, {NX}")
            a(f"s_add_u32 s{S_T0}, s{S_T0}, s{S_XT}")
            a(f"s_cmp_ge_u32 s{S_T0}, {NSEG}")
            a(f"s_cbranch_scc1 {lsk}")
            a(f"s_lshl_b32 s{S_T0}, s{S_T0}, 5")
            a(f"s_add_u32 s{S_T0}, s{S_T0}, s{S_RANK}")
            a(f"s_lshl_b32 s{S_T0}, s{S_T0}, 10")
            a(f"v_add_u32 v12, s{S_T0}, v1")
            a(f"global_load_dwordx4 v[16:19], v12, s[{S_X}:{S_X+1}]")
            a("s_waitcnt vmcnt(0)")
            self.unpack8(20, 16)
            self.layernorm(20, 28, 36, 40)
            a(f"s_lshl_b32 s{S_T0}, s{S_T2}, 5")
            a(f"s_add_u32 s{S_T0}, s{S_T0}, s{S_RANK}")
            a(f"s_lshl_b32 s{S_T0}, s{S_T0}, 10")
            if X_XN0:
                a(f"s_add_u32 s{S_T0}, s{S_T0}, {X_XN0}")
            a(f"v_add_u32 v12, s{S_T0}, v1")
            a(f"global_store_dwordx4 v12, v[36:39], s[{S_TS}:{S_TS+1}]{sc}")
            a.label(lsk)
        a("s_waitcnt vmcnt(0)")
        a("s_barrier")

    def x_ffn_transform(self):
        a = self.a
        R0, R1 = W0, W0 + 48
        A1, A2, A3 = W0 + 92, W0 + 93, W0 + 94
        a("s_barrier")
        a(f"s_load_dwordx2 s[{S_Q0}:{S_Q0+1}], s[0:1], 64")
        a(f"s_load_dwordx2 s[{S_Q1}:{S_Q1+1}], s[0:1], 80")
        a(f"s_mul_i32 s{S_T2}, s{S_WAVE}, {12*KB}")
        a(f"s_add_u32 s{S_T2}, s{S_T2}, {L_FB}")
        a(f"v_add_u32 v{A2}, s{S_T2}, v{L16}")
        a(f"s_lshl_b32 s{S_T0}, s{S_RANK}, 2")
        a(f"s_add_u32 s{S_T0}, s{S_T0}, s{S_WAVE}")
        a(f"s_lshl_b32 s{S_T1}, s{S_T0}, 14")
        a(f"s_add_u32 s{S_T1}, s{S_T1}, {X_FW1}")
        add64(a, S_Q2, S_TS, f"s{S_T1}")
        a(f"s_mul_i32 s{S_T1}, s{S_T0}, {12*KB}")
        a(f"s_add_u32 s{S_T1}, s{S_T1}, {X_FW2}")
        add64(a, S_Q3, S_TS, f"s{S_T1}")
        a("s_waitcnt lgkmcnt(0)")
        lskip = self.lab('f1s'); lzero = self.lab('f1z'); ldone = self.lab('f1d')
        a(f"s_cmp_ge_u32 s{S_TI}, 11")
        a(f"s_cbranch_scc1 {lskip}")
        a(f"s_mul_i32 s{S_T0}, s{S_A}, 11")
        a(f"s_add_u32 s{S_T0}, s{S_T0}, s{S_TI}")
        a(f"s_cmp_ge_u32 s{S_T0}, 86")
        a(f"s_cbranch_scc1 {lzero}")
        a(f"v_lshrrev_b32 v{A1}, 5, v{L16}")
        a(f"v_mul_u32_u24 v{A1}, 2752, v{A1}")
        a(f"v_and_b32 v{A3}, 16, v{L16}")
        a(f"v_add_u32 v{A1}, v{A1}, v{A3}")
        a(f"s_lshl_b32 s{S_T0}, s{S_T0}, 5")
        a(f"v_add_u32 v{A1}, s{S_T0}, v{A1}")
        a(f"v_lshrrev_b32 v{A3}, 8, v{L16}")
        a(f"v_lshlrev_b32 v{A3}, 8, v{A3}")
        a(f"v_bfe_u32 v{R1}, v{L16}, 6, 2")
        a(f"v_lshl_add_u32 v{A3}, v{R1}, 5, v{A3}")
        a(f"v_bfe_u32 v{R1}, v{L16}, 4, 2")
        a(f"v_lshl_add_u32 v{A3}, v{R1}, 3, v{A3}")
        a(f"v_add_u32 v{A3}, s{S_T2}, v{A3}")
        for half in range(2):
            for i in range(8):
                a(f"global_load_dwordx4 {vr(R0+4*i,4)}, v{A1}, s[{S_Q0}:{S_Q0+1}]")
                a(f"v_add_u32 v{A1}, {32*2752}, v{A1}")
            a("s_waitcnt vmcnt(0)")
            for i in range(8):
                a(f"ds_write_b128 v{A2}, {vr(R0+4*i,4)} offset:{1024*i}")
            a("s_waitcnt lgkmcnt(0)")
            for i in range(8):
                for u in range(2):
                    a(f"ds_read_b64_tr_b16 {vr(R1+4*i+2*u,2)}, v{A3} offset:{1024*i+128*u}")
            a("s_waitcnt lgkmcnt(0)")
            for i in range(8):
                ks = 8 * half + i
                if ks % 4 == 0 and ks:
                    add64(a, S_Q2, S_Q2, 4096)
                a(f"global_store_dwordx4 v{L16}, {vr(R1+4*i,4)}, s[{S_Q2}:{S_Q2+1}] offset:{1024*(ks%4)}")
        a(f"s_branch {lskip}")
        a.label(lzero)
        for i in range(4):
            a(f"v_mov_b32 v{R1+i}, 0")
        for ks in range(16):
            if ks % 4 == 0 and ks:
                add64(a, S_Q2, S_Q2, 4096)
            a(f"global_store_dwordx4 v{L16}, {vr(R1,4)}, s[{S_Q2}:{S_Q2+1}] offset:{1024*(ks%4)}")
        a.label(lskip)
        a("s_waitcnt vmcnt(0)")
        a(f"v_lshrrev_b32 v{A1}, 6, v{L16}")
        a(f"v_lshlrev_b32 v{A1}, 10, v{A1}")
        a(f"v_and_b32 v{A3}, 48, v{L16}")
        a(f"v_add_u32 v{A1}, v{A1}, v{A3}")
        a(f"s_mul_i32 s{S_T0}, s{S_A}, {176*1024}")
        a(f"s_lshl_b32 s{S_T1}, s{S_B}, 8")
        a(f"s_add_u32 s{S_T0}, s{S_T0}, s{S_T1}")
        a(f"s_lshl_b32 s{S_T1}, s{S_WAVE}, 6")
        a(f"s_add_u32 s{S_T0}, s{S_T0}, s{S_T1}")
        a(f"v_add_u32 v{A1}, s{S_T0}, v{A1}")
        for i in range(9):
            a(f"global_load_dwordx4 {vr(R0+4*i,4)}, v{A1}, s[{S_Q1}:{S_Q1+1}]")
            a(f"v_add_u32 v{A1}, {16*1024}, v{A1}")
        for i in range(8):
            a(f"v_mov_b32 v{R0+36+i}, 0")
        l7 = self.lab('f2z')
        a(f"s_cmp_eq_u32 s{S_A}, 7")
        a(f"s_cbranch_scc1 {l7}")
        for i in range(9, 11):
            a(f"global_load_dwordx4 {vr(R0+4*i,4)}, v{A1}, s[{S_Q1}:{S_Q1+1}]")
            a(f"v_add_u32 v{A1}, {16*1024}, v{A1}")
        a.label(l7)
        a(f"v_lshrrev_b32 v{A3}, 8, v{L16}")
        a(f"v_lshlrev_b32 v{A3}, 8, v{A3}")
        a(f"v_bfe_u32 v{A1}, v{L16}, 6, 2")
        a(f"v_lshl_add_u32 v{A3}, v{A1}, 6, v{A3}")
        a(f"v_bfe_u32 v{A1}, v{L16}, 4, 2")
        a(f"v_lshl_add_u32 v{A3}, v{A1}, 4, v{A3}")
        a(f"v_add_u32 v{A3}, s{S_T2}, v{A3}")
        a("s_waitcnt vmcnt(0)")
        for i in range(11):
            a(f"ds_write_b128 v{A2}, {vr(R0+4*i,4)} offset:{1024*i}")
        a("s_waitcnt lgkmcnt(0)")
        for p in range(5):
            for ct in range(2):
                for u in range(2):
                    a(f"ds_read_b64_tr_b16 {vr(R1+4*(2*p+ct)+2*u,2)}, v{A3} offset:{(2*p+u)*1024+8*ct}")
        for ct in range(2):
            a(f"ds_read_b64_tr_b16 {vr(R1+40+2*ct,2)}, v{A3} offset:{10*1024+8*ct}")
        a("s_waitcnt lgkmcnt(0)")
        for i in range(11):
            if i % 4 == 0 and i:
                add64(a, S_Q3, S_Q3, 4096)
            a(f"global_store_dwordx4 v{L16}, {vr(R1+4*i,4)}, s[{S_Q3}:{S_Q3+1}] offset:{1024*(i%4)}")
        a("s_waitcnt vmcnt(0)")
        a("s_barrier")

    def poll8(self, LD, base, check=True):
        a = self.a
        lp = self.lab('p8')
        t = LD + 32
        if check:
            a(f"s_mov_b32 s{S_SPIN}, {SPIN_MAX}")
            a.label(lp)
        for i in range(8):
            a(f"global_load_dwordx4 {vr(LD+4*i,4)}, v{GL0 if i < 4 else GL1}, s[{base}:{base+1}] offset:{1024*(i%4)} sc1")
        if check:
            self.spin_dec()
        a("s_waitcnt vmcnt(0)")
        if check:
            a(f"v_max3_u32 v{t}, v{LD}, v{LD+4}, v{LD+8}")
            a(f"v_max3_u32 v{t+1}, v{LD+12}, v{LD+16}, v{LD+20}")
            a(f"v_max3_u32 v{t}, v{t}, v{LD+24}, v{LD+28}")
            a(f"v_max_u32 v{t}, v{t}, v{t+1}")
            a(f"v_cmp_eq_u32 vcc, -1, v{t}")
            a(f"s_cbranch_vccnz {lp}")

    def gather_rows(self, LD, base, check=True):
        a = self.a
        self.poll8(LD, base, check)
        a("s_barrier")
        t = LD + 32
        for i in range(8):
            if i:
                a(f"v_xor_b32 v{t+(i&1)}, {16*i}, v{GW}")
                a(f"ds_write_b128 v{t+(i&1)}, {vr(LD+4*i,4)}")
            else:
                a(f"ds_write_b128 v{GW}, {vr(LD,4)}")
        a("s_waitcnt lgkmcnt(0)")
        a("s_barrier")

    def gather_frags(self, LD, base):
        a = self.a
        self.poll8(LD, base)
        a("s_barrier")
        t = LD + 32
        a(f"s_lshl_b32 s{S_T0}, s{S_WAVE}, 12")
        a(f"v_add_u32 v{t}, s{S_T0}, v{FL}")
        for i in range(8):
            a(f"ds_write_b128 v{t}, {vr(LD+4*i,4)} offset:{(i>>2)*16384 + (i&3)*1024}")
        a("s_waitcnt lgkmcnt(0)")
        a("s_barrier")

    def gemm_res(self, tiles, ACC, XF, WBUF, swz):
        a = self.a
        q = LdsQ(a)
        def xread(ks):
            b = XF + 8 * (ks % 3)
            ar_ = (FR0 + (ks & 3)) if swz else FL
            for rt in range(2):
                q.issue(f"ds_read_b128 {vr(b+4*rt,4)}, v{ar_} offset:{rt*16384+ks*1024}", ('x', ks))
        def wread(k64):
            for t in tiles:
                hk, hb = HX[('qkv', t, k64)]
                if hk == 'lds':
                    b = WBUF + 8 * (k64 & 1)
                    q.issue(f"ds_read_b128 {vr(b,4)}, v{WLA} offset:{hb*2048}", ('w', k64))
                    q.issue(f"ds_read_b128 {vr(b+4,4)}, v{WLA} offset:{hb*2048+1024}", ('w', k64))
        xread(0); xread(1)
        for ks in range(16):
            k64 = ks >> 1
            if ks + 2 < 16:
                xread(ks + 2)
            if (ks & 1) == 0 and k64 + 1 < 8:
                wread(k64 + 1)
            q.wait(('x', ks))
            q.wait(('w', k64))
            xb = XF + 8 * (ks % 3)
            for ti, t in enumerate(tiles):
                hk, hb = HX[('qkv', t, k64)]
                if hk == 'lds':
                    hk, hb = 'v', WBUF + 8 * (k64 & 1)
                w = rr(hk, hb + 4 * (ks & 1), 4)
                for rt in range(2):
                    d = vr(ACC + (ti * 2 + rt) * 4, 4)
                    c = '0' if ks == 0 else d
                    x = vr(xb + 4 * rt, 4)
                    if t in (4, 5):
                        a(f"v_mfma_f32_16x16x32_bf16 {d}, {x}, {w}, {c}")
                    else:
                        a(f"v_mfma_f32_16x16x32_bf16 {d}, {w}, {x}, {c}")

    def store_partials(self, ACC, part_off, rts=(0, 1), accmap=None):
        a = self.a
        for rt in rts:
            for ct in range(2):
                b = accmap(ct, rt) if accmap else ACC + (ct * 2 + rt) * 4
                a(f"v_and_or_b32 v{b}, v{b}, -2, s{S_TAG}")
                a(f"global_store_dwordx4 v{PSV1 if rt else PSV}, {vr(b,4)}, s[{S_Q3}:{S_Q3+1}] offset:{1024*ct}{self.sc}")

    def warm(self, base, off_sreg, nchunks, shift=7, t=W0 + 90):
        a = self.a
        a(f"v_lshlrev_b32 v{t}, {shift-4}, v{L16}")
        a(f"v_add_u32 v{t}, s{off_sreg}, v{t}")
        for c in range(nchunks):
            if c:
                a(f"v_add_u32 v{t}, {64 << shift}, v{t}")
            a(f"global_load_dword v0, v{t}, s[{base}:{base+1}]")

    def warm_xn0(self):
        a = self.a
        l = self.lab('wx')
        a(f"s_add_u32 s{S_T0}, s{S_SA}, {2*NX}")
        a(f"s_cmp_ge_u32 s{S_T0}, {NSEG}")
        a(f"s_cbranch_scc1 {l}")
        a(f"s_add_u32 s{S_T0}, s{S_K}, 2")
        a(f"s_lshl_b32 s{S_T0}, s{S_T0}, 15")
        a(f"s_lshl_b32 s{S_T1}, s{S_WAVE}, 13")
        a(f"s_add_u32 s{S_T0}, s{S_T0}, s{S_T1}")
        if X_XN0:
            a(f"s_add_u32 s{S_T0}, s{S_T0}, {X_XN0}")
        self.warm(S_TS, S_T0, 1)
        a.label(l)

    def warm_next(self):
        a = self.a
        for slot in range(2):
            l = self.lab('wn'); l3 = self.lab('wn3')
            a(f"s_add_u32 s{S_T2}, s{S_SA}, {NX - slot*NX*self.DB}") if slot == 0 else a(f"s_sub_u32 s{S_T2}, s{S_SA}, {NX*self.DB - NX}")
            a(f"s_cmp_ge_u32 s{S_T2}, {NSEG}")
            a(f"s_cbranch_scc1 {l}")
            a(f"s_lshl_b32 s{S_T2}, s{S_T2}, 5")
            a(f"s_add_u32 s{S_T2}, s{S_T2}, s{S_RANK}")
            a(f"s_cmp_eq_u32 s{S_WAVE}, 3")
            a(f"s_cbranch_scc1 {l3}")
            a(f"s_lshl_b32 s{S_T0}, s{S_T2}, 14")
            a(f"s_lshl_b32 s{S_T1}, s{S_WAVE}, 13")
            a(f"s_add_u32 s{S_T0}, s{S_T0}, s{S_T1}")
            if KV_OFF[slot]:
                a(f"s_add_u32 s{S_T0}, s{S_T0}, {KV_OFF[slot]}")
            a(f"s_lshl_b32 s{S_T1}, s{S_T2}, 13")
            a(f"s_add_u32 s{S_T1}, s{S_T1}, {Q_OFF[slot]}")
            a(f"s_cmp_eq_u32 s{S_WAVE}, 2")
            a(f"s_cselect_b32 s{S_T0}, s{S_T1}, s{S_T0}")
            self.warm(S_WS, S_T0, 1)
            a(f"s_branch {l}")
            a.label(l3)
            a(f"s_lshl_b32 s{S_T0}, s{S_T2}, 12")
            a(f"s_add_u32 s{S_T0}, s{S_T0}, {KVM_OFF[slot]}")
            self.warm(S_WS, S_T0, 1, shift=6)
            a(f"s_lshl_b32 s{S_T0}, s{S_T2}, 2")
            a(f"s_add_u32 s{S_T0}, s{S_T0}, {FKVM_OFF[slot]}")
            a(f"v_mov_b32 v{W0+90}, s{S_T0}")
            a(f"global_load_dword v0, v{W0+90}, s[{S_WS}:{S_WS+1}]")
            if slot == 0:
                a(f"s_lshl_b32 s{S_T0}, s{S_T2}, 10")
                self.warm(S_X, S_T0, 1, shift=4)
            else:
                a(f"s_add_u32 s{S_T0}, s{S_K}, {1 - self.DB}") if self.DB <= 1 else a(f"s_sub_u32 s{S_T0}, s{S_K}, {self.DB - 1}")
                a(f"s_lshl_b32 s{S_T0}, s{S_T0}, 5")
                a(f"s_add_u32 s{S_T0}, s{S_T0}, s{S_RANK}")
                a(f"s_lshl_b32 s{S_T0}, s{S_T0}, 10")
                a(f"s_add_u32 s{S_T0}, s{S_T0}, {X_X2}")
                self.warm(S_TS, S_T0, 1, shift=4)
            a.label(l)

    def warm_fw1(self):
        a = self.a
        l = self.lab('wf')
        a(f"s_cmp_ge_u32 s{S_TI}, 11")
        a(f"s_cbranch_scc1 {l}")
        a(f"s_lshl_b32 s{S_T0}, s{S_RANK}, 2")
        a(f"s_add_u32 s{S_T0}, s{S_T0}, s{S_WAVE}")
        a(f"s_lshl_b32 s{S_T0}, s{S_T0}, 14")
        a(f"s_add_u32 s{S_T0}, s{S_T0}, {X_FW1}")
        self.warm(S_TS, S_T0, 2)
        a.label(l)

    def warm_fw2(self):
        a = self.a
        l = self.lab('wg')
        a(f"s_cmp_eq_u32 s{S_WAVE}, 3")
        a(f"s_cbranch_scc1 {l}")
        a(f"s_mul_i32 s{S_T0}, s{S_RANK}, {48*KB}")
        a(f"s_lshl_b32 s{S_T1}, s{S_WAVE}, 14")
        a(f"s_add_u32 s{S_T0}, s{S_T0}, s{S_T1}")
        a(f"s_add_u32 s{S_T0}, s{S_T0}, {X_FW2}")
        self.warm(S_TS, S_T0, 2, t=W0)
        a.label(l)

    def st_qkv(self, layer, src_off_sgpr_or_imm, check, hook=None):
        a = self.a
        add64(a, S_Q0, S_TS, src_off_sgpr_or_imm)
        self.gather_rows(W0, S_Q0, check)
        ACC, XF, WB = W0, W0 + 48, W0 + 72
        if hook:
            hook()
        self.gemm_res([0, 1, 2, 3, 4, 5], ACC, XF, WB, True)
        a(f"s_lshl_b32 s{S_T0}, s{S_SEG}, 5")
        a(f"s_add_u32 s{S_T0}, s{S_T0}, s{S_RANK}")
        a(f"s_lshl_b32 s{S_T1}, s{S_T0}, 14")
        if KV_OFF[layer]:
            a(f"s_add_u32 s{S_T1}, s{S_T1}, {KV_OFF[layer]}")
        add64(a, S_Q0, S_WS, f"s{S_T1}")
        a(f"s_lshl_b32 s{S_T1}, s{S_T0}, 13")
        a(f"s_add_u32 s{S_T1}, s{S_T1}, {Q_OFF[layer]}")
        add64(a, S_Q1, S_WS, f"s{S_T1}")
        a(f"s_lshl_b32 s{S_T1}, s{S_T0}, 2")
        a(f"s_add_u32 s{S_T1}, s{S_T1}, {FKV_OFF[layer]}")
        add64(a, S_Q2, S_WS, f"s{S_T1}")
        A1, A2 = XF + 24 - 2, XF + 24 - 1
        P = XF
        a(f"s_lshl_b32 s{S_T0}, s{S_WAVE}, 10")
        a(f"v_add_u32 v{WB}, s{S_T0}, v{L16}")
        a(f"v_add_u32 v{WB+1}, 4096, v{WB}")
        a(f"s_lshl_b32 s{S_T0}, s{S_WAVE}, 11")
        a(f"s_add_u32 s{S_T0}, s{S_T0}, 8192")
        a(f"v_add_u32 v{WB+2}, s{S_T0}, v{L16}")
        acc = lambda ti, rt: ACC + (ti * 2 + rt) * 4
        n = 0
        for m, ptr, scx in ((1, S_Q0, ' sc1'), ):
            for rt in range(2):
                p = P + 4 * n; n += 1
                for tt in range(2):
                    b = acc(2 * m + tt, rt)
                    a(f"v_cvt_pk_bf16_f32 v{p+2*tt}, v{b}, v{b+1}")
                    a(f"v_cvt_pk_bf16_f32 v{p+2*tt+1}, v{b+2}, v{b+3}")
                a(f"global_store_dwordx4 v{WB+rt}, {vr(p,4)}, s[{ptr}:{ptr+1}]{scx}")
        for tt in range(2):
            p = P + 4 * n; n += 1
            for rt in range(2):
                b = acc(4 + tt, rt)
                a(f"v_cvt_pk_bf16_f32 v{p+2*rt}, v{b}, v{b+1}")
                a(f"v_cvt_pk_bf16_f32 v{p+2*rt+1}, v{b+2}, v{b+3}")
            a(f"global_store_dwordx4 v{WB+2}, {vr(p,4)}, s[{S_Q0}:{S_Q0+1}] offset:{1024*tt} sc1")
        for rt in range(2):
            p = P + 4 * n; n += 1
            for tt in range(2):
                b = acc(tt, rt)
                a(f"v_cvt_pk_bf16_f32 v{p+2*tt}, v{b}, v{b+1}")
                a(f"v_cvt_pk_bf16_f32 v{p+2*tt+1}, v{b+2}, v{b+3}")
            a(f"global_store_dwordx4 v{WB+rt}, {vr(p,4)}, s[{S_Q1}:{S_Q1+1}]")
        a("s_waitcnt vmcnt(0)")
        a("s_barrier")
        lsk = self.lab('fl')
        a(f"s_cmp_lg_u32 s{S_WAVE}, 0")
        a(f"s_cbranch_scc1 {lsk}")
        a(f"v_mov_b32 v{W0}, 1")
        a("s_mov_b64 exec, 1")
        a(f"global_store_dword v{ZERO}, v{W0}, s[{S_Q2}:{S_Q2+1}] sc1")
        a("s_mov_b64 exec, -1")
        a.label(lsk)

    def st_attn(self, slot):
        a = self.a
        layer = slot
        a(f"s_lshl_b32 s{S_T0}, s{S_SEG}, 5")
        a(f"s_add_u32 s{S_T0}, s{S_T0}, s{S_RANK}")
        a(f"s_lshl_b32 s{S_T1}, s{S_T0}, 14")
        if KV_OFF[layer]:
            a(f"s_add_u32 s{S_T1}, s{S_T1}, {KV_OFF[layer]}")
        add64(a, S_Q0, S_WS, f"s{S_T1}")
        a(f"s_lshl_b32 s{S_T1}, s{S_T0}, 13")
        a(f"s_add_u32 s{S_T1}, s{S_T1}, {Q_OFF[layer]}")
        add64(a, S_Q1, S_WS, f"s{S_T1}")
        a(f"s_lshl_b32 s{S_T1}, s{S_T0}, 2")
        a(f"s_add_u32 s{S_T1}, s{S_T1}, {FKVM_OFF[layer]}")
        add64(a, S_Q2, S_WS, f"s{S_T1}")
        a(f"s_lshl_b32 s{S_T1}, s{S_T0}, 12")
        a(f"s_add_u32 s{S_T1}, s{S_T1}, {KVM_OFF[layer]}")
        add64(a, S_Q3, S_WS, f"s{S_T1}")
        QF, KM, KX, S = W0, W0 + 16, W0 + 32, W0 + 64
        T = W0 + 76
        a("s_barrier")
        a(f"s_lshl_b32 s{S_T0}, s{S_WAVE}, 12")
        a(f"v_add_u32 v{T}, s{S_T0}, v{L16}")
        a(f"s_add_u32 m0, s{S_T0}, {L_FB}")
        for j in range(4):
            a(f"global_load_lds_dwordx4 v{T}, s[{S_Q0}:{S_Q0+1}] offset:{1024*j} sc1")
        a(f"s_lshl_b32 s{S_T0}, s{S_WAVE}, 11")
        a(f"v_add_u32 v{T+1}, s{S_T0}, v{L16}")
        a(f"s_add_u32 m0, s{S_T0}, {L_FB+16384}")
        for j in range(2):
            a(f"global_load_lds_dwordx4 v{T+1}, s[{S_Q1}:{S_Q1+1}] offset:{1024*j} sc1")
        LN, L15, G = T + 2, T + 3, T + 4
        QA, KMA, VXA, VMA, THR, NEG = T + 5, T + 6, T + 7, T + 8, T + 9, T + 10
        a(f"v_lshrrev_b32 v{LN}, 4, v{L16}")
        a(f"v_and_b32 v{L15}, 15, v{LN}")
        a(f"v_lshrrev_b32 v{G}, 4, v{LN}")
        a(f"s_and_b32 s{S_T0}, s{S_WAVE}, 1")
        a(f"s_lshl_b32 s{S_T1}, s{S_T0}, 12")
        a(f"v_add_u32 v{QA}, s{S_T1}, v{FL}")
        a(f"s_lshl_b32 s{S_T1}, s{S_T0}, 4")
        a(f"v_add_u32 v{THR}, s{S_T1}, v{L15}")
        a(f"v_lshlrev_b32 v{T+11}, 2, v{G}")
        a(f"v_sub_u32 v{THR}, v{THR}, v{T+11}")
        a(f"v_and_b32 v{KMA}, 7, v{LN}")
        a(f"v_lshlrev_b32 v{KMA}, 4, v{KMA}")
        a(f"v_lshl_add_u32 v{KMA}, v{G}, 7, v{KMA}")
        a(f"v_add_u32 v{KMA}, {L_FB+24576}, v{KMA}")
        a(f"v_lshrrev_b32 v{VXA}, 3, v{L15}")
        a(f"v_lshlrev_b32 v{VXA}, 10, v{VXA}")
        a(f"v_lshl_add_u32 v{VXA}, v{G}, 8, v{VXA}")
        a(f"v_bfe_u32 v{T+11}, v{L15}, 2, 1")
        a(f"v_lshl_add_u32 v{VXA}, v{T+11}, 7, v{VXA}")
        a(f"v_and_b32 v{T+11}, 3, v{L15}")
        a(f"v_lshl_add_u32 v{VXA}, v{T+11}, 4, v{VXA}")
        a(f"s_lshr_b32 s{S_T1}, s{S_WAVE}, 1")
        a(f"s_lshl_b32 s{S_T2}, s{S_T1}, 12")
        a(f"s_add_u32 s{S_T2}, s{S_T2}, {L_FB+8192}")
        a(f"v_add_u32 v{VXA}, s{S_T2}, v{VXA}")
        a(f"v_lshrrev_b32 v{VMA}, 2, v{L15}")
        a(f"v_lshlrev_b32 v{VMA}, 7, v{VMA}")
        a(f"v_lshl_add_u32 v{VMA}, v{T+11}, 4, v{VMA}")
        a(f"v_and_b32 v{T+11}, 1, v{G}")
        a(f"v_lshl_add_u32 v{VMA}, v{T+11}, 3, v{VMA}")
        a(f"s_lshl_b32 s{S_T2}, s{S_T1}, 10")
        a(f"s_add_u32 s{S_T2}, s{S_T2}, {L_FB+26624}")
        a(f"v_add_u32 v{VMA}, s{S_T2}, v{VMA}")
        a(f"v_mov_b32 v{NEG}, 0xff800000")
        a(f"v_cmp_gt_u32 vcc, 2, v{G}")
        for i in range(4):
            a(f"v_cndmask_b32 v{S+i}, v{NEG}, v{ZERO}, vcc")
        for kt in range(2):
            for i in range(4):
                a(f"v_cmp_le_i32 vcc, {16*kt+i}, v{THR}")
                a(f"v_cndmask_b32 v{S+4+4*kt+i}, v{NEG}, v{ZERO}, vcc")
        lp = self.lab('fw')
        a(f"s_mov_b32 s{S_SPIN}, {SPIN_MAX}")
        a.label(lp)
        a(f"global_load_dword v{T+11}, v{ZERO}, s[{S_Q2}:{S_Q2+1}] sc1")
        self.spin_dec()
        a("s_waitcnt vmcnt(0)")
        a(f"v_readfirstlane_b32 s{S_T0}, v{T+11}")
        a(f"s_cmp_eq_u32 s{S_T0}, 0")
        a(f"s_cbranch_scc1 {lp}")
        a(f"s_lshl_b32 s{S_T0}, s{S_WAVE}, 10")
        a(f"v_add_u32 v{T}, s{S_T0}, v{L16}")
        a(f"s_add_u32 m0, s{S_T0}, {L_FB+24576}")
        a(f"global_load_lds_dwordx4 v{T}, s[{S_Q3}:{S_Q3+1}] sc1")
        a("s_waitcnt vmcnt(0)")
        a("s_barrier")
        q = LdsQ(a)
        for ks in range(4):
            q.issue(f"ds_read_b128 {vr(QF+4*ks,4)}, v{QA} offset:{16384+1024*ks}", ks)
            q.issue(f"ds_read_b128 {vr(KM+4*ks,4)}, v{KMA} offset:{512*ks}", ks)
            q.issue(f"ds_read_b128 {vr(KX+4*ks,4)}, v{FL} offset:{1024*ks}", ks)
            q.issue(f"ds_read_b128 {vr(KX+16+4*ks,4)}, v{FL} offset:{4096+1024*ks}", ks)
        for ks in range(4):
            q.wait(ks)
            a(f"v_mfma_f32_16x16x32_bf16 {vr(S,4)}, {vr(KM+4*ks,4)}, {vr(QF+4*ks,4)}, {vr(S,4)}")
            a(f"v_mfma_f32_16x16x32_bf16 {vr(S+4,4)}, {vr(KX+4*ks,4)}, {vr(QF+4*ks,4)}, {vr(S+4,4)}")
            a(f"v_mfma_f32_16x16x32_bf16 {vr(S+8,4)}, {vr(KX+16+4*ks,4)}, {vr(QF+4*ks,4)}, {vr(S+8,4)}")
        VX, VM = W0, W0 + 16
        a("s_nop 7")
        for kl in range(2):
            for u in range(2):
                a(f"ds_read_b128 {vr(VX+4*(2*kl+u),4)}, v{VXA} offset:{kl*2048+u*64}")
        for kl in range(2):
            for u in range(2):
                a(f"ds_read_b64 {vr(VM+2*(2*kl+u),2)}, v{VMA} offset:{kl*512+u*64}")
        M = T
        a(f"v_max3_f32 v{M}, v{S}, v{S+1}, v{S+2}")
        a(f"v_max3_f32 v{M+1}, v{S+3}, v{S+4}, v{S+5}")
        a(f"v_max3_f32 v{M+2}, v{S+6}, v{S+7}, v{S+8}")
        a(f"v_max3_f32 v{M+3}, v{S+9}, v{S+10}, v{S+11}")
        a(f"v_max3_f32 v{M}, v{M}, v{M+1}, v{M+2}")
        a(f"v_max_f32 v{M}, v{M}, v{M+3}")
        for sw in ('16', '32'):
            a(f"v_mov_b32 v{M+1}, v{M}")
            a(f"v_permlane{sw}_swap_b32 v{M+1}, v{M}")
            a(f"v_max_f32 v{M}, v{M}, v{M+1}")
        a(f"v_mul_f32 v{M}, s{S_C}, v{M}")
        for i in range(6):
            a(f"v_pk_fma_f32 {vr(S+2*i,2)}, {vr(S+2*i,2)}, s[{S_C}:{S_C+1}], {vr(M,2)} op_sel_hi:[1,1,0] neg_lo:[0,0,1] neg_hi:[0,0,1]")
        for i in range(12):
            a(f"v_exp_f32 v{S+i}, v{S+i}")
        a(f"v_pk_add_f32 {vr(M,2)}, {vr(S,2)}, {vr(S+2,2)}")
        a(f"v_pk_add_f32 {vr(M+2,2)}, {vr(S+4,2)}, {vr(S+6,2)}")
        a(f"v_pk_add_f32 {vr(M+4,2)}, {vr(S+8,2)}, {vr(S+10,2)}")
        a(f"v_pk_add_f32 {vr(M,2)}, {vr(M,2)}, {vr(M+2,2)}")
        a(f"v_pk_add_f32 {vr(M,2)}, {vr(M,2)}, {vr(M+4,2)}")
        a(f"v_add_f32 v{M}, v{M}, v{M+1}")
        for sw in ('16', '32'):
            a(f"v_mov_b32 v{M+1}, v{M}")
            a(f"v_permlane{sw}_swap_b32 v{M+1}, v{M}")
            a(f"v_add_f32 v{M}, v{M}, v{M+1}")
        a(f"v_rcp_f32 v{M}, v{M}")
        for i in range(6):
            a(f"v_pk_mul_f32 {vr(S+2*i,2)}, {vr(S+2*i,2)}, {vr(M,2)} op_sel_hi:[1,0]")
        PM, PX = M + 2, M + 4
        a(f"v_cvt_pk_bf16_f32 v{PM}, v{S}, v{S+1}")
        a(f"v_cvt_pk_bf16_f32 v{PM+1}, v{S+2}, v{S+3}")
        for i in range(4):
            a(f"v_cvt_pk_bf16_f32 v{PX+i}, v{S+4+2*i}, v{S+5+2*i}")
        a("s_waitcnt lgkmcnt(0)")
        O = KX
        for j in range(4):
            a(f"v_mfma_f32_16x16x32_bf16 {vr(O+4*j,4)}, {vr(VX+4*j,4)}, {vr(PX,4)}, 0")
        for j in range(4):
            a(f"v_mfma_f32_16x16x16_bf16 {vr(O+4*j,4)}, {vr(VM+2*j,2)}, {vr(PM,2)}, {vr(O+4*j,4)}")
        a(f"s_lshl_b32 s{S_T0}, s{S_RANK}, 13")
        a(f"s_and_b32 s{S_T1}, s{S_WAVE}, 1")
        a(f"s_lshl_b32 s{S_T1}, s{S_T1}, 12")
        a(f"s_add_u32 s{S_T0}, s{S_T0}, s{S_T1}")
        a(f"s_lshr_b32 s{S_T1}, s{S_WAVE}, 1")
        a(f"s_lshl_b32 s{S_T1}, s{S_T1}, 11")
        a(f"s_add_u32 s{S_T0}, s{S_T0}, s{S_T1}")
        a(f"s_add_u32 s{S_T0}, s{S_T0}, {X_OB + slot*256*KB}")
        add64(a, S_Q0, S_TS, f"s{S_T0}")
        OP = KX + 16
        for kl in range(2):
            p = OP + 4 * kl
            for u in range(2):
                b = O + 4 * (2 * kl + u)
                a(f"v_cvt_pk_bf16_f32 v{p+2*u}, v{b}, v{b+1}")
                a(f"v_cvt_pk_bf16_f32 v{p+2*u+1}, v{b+2}, v{b+3}")
            a(f"v_min_u32 v{p}, -2, v{p}")
            a(f"global_store_dwordx4 v{L16}, {vr(p,4)}, s[{S_Q0}:{S_Q0+1}] offset:{1024*kl}{self.sc}")

    def st_wo(self, slot, hook=None):
        a = self.a
        a(f"s_lshl_b32 s{S_T0}, s{S_A}, 15")
        a(f"s_add_u32 s{S_T0}, s{S_T0}, {X_OB + slot*256*KB}")
        add64(a, S_Q0, S_TS, f"s{S_T0}")
        add64(a, S_Q3, S_TS, X_PART + (slot * 2) * 512 * KB)
        self.gather_frags(W0, S_Q0)
        ACC, XF, WB = W0, W0 + 48, W0 + 72
        if hook:
            hook()
        self.gemm_res([6, 7], ACC, XF, WB, False)
        self.store_partials(ACC, None)

    def st_reduce(self, slot, stage):
        a = self.a
        sc = self.sc
        lsk = self.lab('rd')
        a(f"s_cmp_lg_u32 s{S_WAVE}, 3")
        a(f"s_cbranch_scc1 {lsk}")
        LD = W0
        T = W0 + 64
        XR = W0 + 72
        BR = W0 + 76
        a(f"s_lshl_b32 s{S_T0}, s{S_RANK}, 14")
        a(f"s_add_u32 s{S_T0}, s{S_T0}, {X_PART + (slot*2+stage)*512*KB}")
        add64(a, S_Q0, S_TS, f"s{S_T0}")
        if stage == 0:
            if slot == 0:
                a(f"s_lshl_b32 s{S_T0}, s{S_SEG}, 5")
                a(f"s_add_u32 s{S_T0}, s{S_T0}, s{S_RANK}")
                a(f"s_lshl_b32 s{S_T0}, s{S_T0}, 10")
                add64(a, S_Q1, S_X, f"s{S_T0}")
                a(f"global_load_dwordx4 {vr(XR,4)}, v{L16}, s[{S_Q1}:{S_Q1+1}]")
            else:
                a(f"s_sub_u32 s{S_T0}, s{S_K}, {self.DB}")
                a(f"s_lshl_b32 s{S_T0}, s{S_T0}, 5")
                a(f"s_add_u32 s{S_T0}, s{S_T0}, s{S_RANK}")
                a(f"s_lshl_b32 s{S_T0}, s{S_T0}, 10")
                a(f"s_add_u32 s{S_T0}, s{S_T0}, {X_X2}")
                add64(a, S_Q1, S_TS, f"s{S_T0}")
                a(f"global_load_dwordx4 {vr(XR,4)}, v{L16}, s[{S_Q1}:{S_Q1+1}] sc1")
        else:
            a(f"global_load_dwordx4 {vr(BR,4)}, v{L16}, s[{S_B2}:{S_B2+1}]")
            a(f"v_add_u32 v{T}, {L_X1 + slot*1024}, v{L16}")
            a(f"ds_read_b128 {vr(XR,4)}, v{T}")
        for j in range(1, 4):
            a(f"v_add_u32 v{T+j}, {4096*j}, v{L16}")
        a(f"s_sub_u32 s{S_T2}, 0, s{S_TAG}")
        lp = self.lab('rp')
        a(f"s_mov_b32 s{S_SPIN}, {SPIN_MAX}")
        a.label(lp)
        for i in range(16):
            va = L16 if i < 4 else T + (i >> 2)
            a(f"global_load_dwordx4 {vr(LD+4*i,4)}, v{va}, s[{S_Q0}:{S_Q0+1}] offset:{1024*(i&3)} sc1")
        self.spin_dec()
        a("s_waitcnt vmcnt(0)")
        tt = 0
        for idx in range(8):
            x, y, z = (idx >> 2) & 1, (idx >> 1) & 1, idx & 1
            if (x ^ z) | (y ^ z):
                tt |= 1 << idx
        C = W0 + 80
        for i in range(8):
            a(f"v_bitop3_b32 v{C+i}, v{LD+8*i}, v{LD+8*i+4}, s{S_T2} bitop3:0x{tt:02x}")
        a(f"v_or3_b32 v{C}, v{C}, v{C+1}, v{C+2}")
        a(f"v_or3_b32 v{C+3}, v{C+3}, v{C+4}, v{C+5}")
        a(f"v_or3_b32 v{C}, v{C}, v{C+6}, v{C+7}")
        a(f"v_or_b32 v{C}, v{C}, v{C+3}")
        a(f"v_and_b32 v{C}, 1, v{C}")
        a(f"v_cmp_ne_u32 vcc, 0, v{C}")
        a(f"s_cbranch_vccnz {lp}")
        for step in (4, 2, 1):
            for s_ in range(step):
                for e in range(4):
                    a(f"v_pk_add_f32 {vr(LD+8*s_+2*e,2)}, {vr(LD+8*s_+2*e,2)}, {vr(LD+8*(s_+step)+2*e,2)}")
        Y = LD
        X = LD + 8; D = LD + 16; P = LD + 24; TT = LD + 28
        self.pack8(P, Y)
        self.unpack8(Y, P)
        if stage == 1:
            self.unpack8(X, BR)
            for e in range(4):
                a(f"v_pk_add_f32 {vr(Y+2*e,2)}, {vr(Y+2*e,2)}, {vr(X+2*e,2)}")
            self.pack8(P, Y)
            self.unpack8(Y, P)
            a("s_waitcnt lgkmcnt(0)")
        self.unpack8(X, XR)
        for e in range(4):
            a(f"v_pk_add_f32 {vr(X+2*e,2)}, {vr(X+2*e,2)}, {vr(Y+2*e,2)}")
        XP = LD + 32
        self.pack8(XP, X)
        final = (stage == 1 and slot == 1)
        if final:
            a(f"s_lshl_b32 s{S_T0}, s{S_SEG}, 5")
            a(f"s_add_u32 s{S_T0}, s{S_T0}, s{S_RANK}")
            a(f"s_lshl_b32 s{S_T0}, s{S_T0}, 10")
            add64(a, S_Q1, S_OUT, f"s{S_T0}")
            a(f"global_store_dwordx4 v{L16}, {vr(XP,4)}, s[{S_Q1}:{S_Q1+1}]")
        else:
            self.unpack8(X, XP)
            self.layernorm(X, D, P, TT)
            u = slot if stage == 0 else 2
            a(f"s_lshl_b32 s{S_T0}, s{S_RANK}, 10")
            a(f"s_add_u32 s{S_T0}, s{S_T0}, {X_XB + u*32*KB}")
            add64(a, S_Q1, S_TS, f"s{S_T0}")
            a(f"global_store_dwordx4 v{L16}, {vr(P,4)}, s[{S_Q1}:{S_Q1+1}]{sc}")
            if stage == 0:
                a(f"v_add_u32 v{T}, {L_X1 + slot*1024}, v{L16}")
                a(f"ds_write_b128 v{T}, {vr(XP,4)}")
            else:
                a(f"s_lshl_b32 s{S_T0}, s{S_K}, 5")
                a(f"s_add_u32 s{S_T0}, s{S_T0}, s{S_RANK}")
                a(f"s_lshl_b32 s{S_T0}, s{S_T0}, 10")
                a(f"s_add_u32 s{S_T0}, s{S_T0}, {X_X2}")
                add64(a, S_Q1, S_TS, f"s{S_T0}")
                a(f"global_store_dwordx4 v{L16}, {vr(XP,4)}, s[{S_Q1}:{S_Q1+1}]")
        SN = LD + 40
        for i in range(4):
            a(f"v_mov_b32 v{SN+i}, -1")
        if stage == 0:
            a(f"s_lshl_b32 s{S_T0}, s{S_RANK}, 13")
            a(f"s_add_u32 s{S_T0}, s{S_T0}, {X_OB + slot*256*KB}")
            add64(a, S_Q1, S_TS, f"s{S_T0}")
            for i in range(8):
                a(f"global_store_dwordx4 v{L16 if i < 4 else T+1}, {vr(SN,4)}, s[{S_Q1}:{S_Q1+1}] offset:{1024*(i&3)}{sc}")
            if slot == 0:
                a(f"s_lshl_b32 s{S_T0}, s{S_RANK}, 10")
                a(f"s_add_u32 s{S_T0}, s{S_T0}, {X_XB + 2*32*KB}")
                add64(a, S_Q1, S_TS, f"s{S_T0}")
                a(f"global_store_dwordx4 v{L16}, {vr(SN,4)}, s[{S_Q1}:{S_Q1+1}]{sc}")
        else:
            a(f"s_lshl_b32 s{S_T0}, s{S_RANK}, 10")
            a(f"s_add_u32 s{S_T0}, s{S_T0}, {X_XB + slot*32*KB}")
            add64(a, S_Q1, S_TS, f"s{S_T0}")
            a(f"global_store_dwordx4 v{L16}, {vr(SN,4)}, s[{S_Q1}:{S_Q1+1}]{sc}")
            a(f"s_mul_i32 s{S_T0}, s{S_A}, {12*KB}")
            a(f"s_mul_i32 s{S_T1}, s{S_B}, {3*KB}")
            a(f"s_add_u32 s{S_T0}, s{S_T0}, s{S_T1}")
            a(f"s_add_u32 s{S_T0}, s{S_T0}, {X_HB + slot*96*KB}")
            add64(a, S_Q1, S_TS, f"s{S_T0}")
            for i in range(3):
                a(f"global_store_dwordx4 v{L16}, {vr(SN,4)}, s[{S_Q1}:{S_Q1+1}] offset:{1024*i}{sc}")
        a("s_waitcnt lgkmcnt(0)")
        a.label(lsk)

    W1R = W0 + 32 + 2
    def ffn1_prefetch(self):
        a = self.a
        lsk = self.lab('w1p')
        a(f"s_cmp_ge_u32 s{S_TI}, 11")
        a(f"s_cbranch_scc1 {lsk}")
        a(f"s_lshl_b32 s{S_T0}, s{S_RANK}, 2")
        a(f"s_add_u32 s{S_T0}, s{S_T0}, s{S_WAVE}")
        a(f"s_lshl_b32 s{S_T1}, s{S_T0}, 14")
        a(f"s_add_u32 s{S_T1}, s{S_T1}, {X_FW1}")
        add64(a, S_Q2, S_TS, f"s{S_T1}")
        for ks in range(16):
            if ks % 4 == 0 and ks:
                add64(a, S_Q2, S_Q2, 4096)
            a(f"global_load_dwordx4 {vr(48+4*ks,4)}, v{L16}, s[{S_Q2}:{S_Q2+1}] offset:{1024*(ks%4)} sc1")
        a.label(lsk)

    def st_ffn1(self, slot):
        a = self.a
        add64(a, S_Q0, S_TS, X_XB + slot * 32 * KB)
        LD = W0
        lp = self.lab('g1')
        t0, t1 = 15, SENT
        a(f"s_mov_b32 s{S_SPIN}, {SPIN_MAX}")
        a.label(lp)
        for i in range(8):
            a(f"global_load_dwordx4 {vr(LD+4*i,4)}, v{GL0 if i < 4 else GL1}, s[{S_Q0}:{S_Q0+1}] offset:{1024*(i%4)} sc1")
        self.spin_dec()
        a("s_waitcnt vmcnt(0)")
        a(f"v_max3_u32 v{t0}, v{LD}, v{LD+4}, v{LD+8}")
        a(f"v_max3_u32 v{t1}, v{LD+12}, v{LD+16}, v{LD+20}")
        a(f"v_max3_u32 v{t0}, v{t0}, v{LD+24}, v{LD+28}")
        a(f"v_max_u32 v{t0}, v{t0}, v{t1}")
        a(f"v_cmp_eq_u32 vcc, -1, v{t0}")
        a(f"s_cbranch_vccnz {lp}")
        a("s_barrier")
        for i in range(8):
            if i:
                tt = t0 if i & 1 else t1
                a(f"v_xor_b32 v{tt}, {16*i}, v{GW}")
                a(f"ds_write_b128 v{tt}, {vr(LD+4*i,4)}")
            else:
                a(f"ds_write_b128 v{GW}, {vr(LD,4)}")
        a("s_waitcnt lgkmcnt(0)")
        a("s_barrier")
        lsk = self.lab('f1')
        a(f"s_cmp_ge_u32 s{S_TI}, 11")
        a(f"s_cbranch_scc1 {lsk}")
        ACC, XF = W0, W0 + 8
        q = LdsQ(a)
        def xread(ks):
            b = XF + 8 * (ks % 3)
            for rt in range(2):
                q.issue(f"ds_read_b128 {vr(b+4*rt,4)}, v{FR0+(ks&3)} offset:{rt*16384+ks*1024}", ks)
        xread(0); xread(1)
        for ks in range(16):
            if ks + 2 < 16:
                xread(ks + 2)
            if ks == 14:
                BI = XF + 8 * 1
                a(f"v_mov_b32 v{BI}, 0")
                a(f"v_mov_b32 v{BI+1}, 0")
                lb = self.lab('nb')
                a(f"s_mul_i32 s{S_T0}, s{S_A}, 11")
                a(f"s_add_u32 s{S_T0}, s{S_T0}, s{S_TI}")
                a(f"s_cmp_ge_u32 s{S_T0}, 86")
                a(f"s_cbranch_scc1 {lb}")
                a(f"s_lshl_b32 s{S_T0}, s{S_T0}, 5")
                a(f"v_lshrrev_b32 v{t0}, 8, v{L16}")
                a(f"v_lshlrev_b32 v{t0}, 3, v{t0}")
                a(f"v_add_u32 v{t0}, s{S_T0}, v{t0}")
                a(f"global_load_dwordx2 {vr(BI,2)}, v{t0}, s[{S_B1}:{S_B1+1}]")
                a.label(lb)
            q.wait(ks)
            xb = XF + 8 * (ks % 3)
            for rt in range(2):
                d = vr(ACC + 4 * rt, 4)
                a(f"v_mfma_f32_16x16x32_bf16 {d}, {vr(48+4*ks,4)}, {vr(xb+4*rt,4)}, {'0' if ks == 0 else d}")
        BI = XF + 8
        BF = XF + 12
        P = XF + 16
        U = XF
        a("s_waitcnt vmcnt(0)")
        a(f"v_lshlrev_b32 v{BF}, 16, v{BI}")
        a(f"v_and_b32 v{BF+1}, 0xffff0000, v{BI}")
        a(f"v_lshlrev_b32 v{BF+2}, 16, v{BI+1}")
        a(f"v_and_b32 v{BF+3}, 0xffff0000, v{BI+1}")
        self.pack8(P, ACC)
        self.unpack8(ACC, P)
        for e in range(4):
            a(f"v_pk_add_f32 {vr(ACC+2*e,2)}, {vr(ACC+2*e,2)}, {vr(BF+2*(e&1),2)}")
        self.pack8(P, ACC)
        self.unpack8(ACC, P)
        k1 = -2.0 * math.log2(math.e) * math.sqrt(2.0 / math.pi)
        k3 = k1 * 0.044715
        for e in range(8):
            a(f"v_mul_f32 v{U+e}, v{ACC+e}, v{ACC+e}")
        for e in range(8):
            a(f"v_fmaak_f32 v{U+e}, {f32hex(k3)}, v{U+e}, {f32hex(k1)}") if False else None
        a(f"v_mov_b32 v{BF}, {f32hex(k3)}")
        for e in range(8):
            a(f"v_fmaak_f32 v{U+e}, v{BF}, v{U+e}, {f32hex(k1)}")
        for e in range(8):
            a(f"v_mul_f32 v{U+e}, v{U+e}, v{ACC+e}")
        for e in range(8):
            a(f"v_exp_f32 v{U+e}, v{U+e}")
        for e in range(8):
            a(f"v_add_f32 v{U+e}, 1.0, v{U+e}")
        for e in range(8):
            a(f"v_rcp_f32 v{U+e}, v{U+e}")
        for e in range(8):
            a(f"v_mul_f32 v{U+e}, v{U+e}, v{ACC+e}")
        self.pack8(P, U)
        a(f"v_min_u32 v{P}, -2, v{P}")
        a(f"s_mul_i32 s{S_T0}, s{S_A}, {12*KB}")
        a(f"s_lshl_b32 s{S_T1}, s{S_TI}, 10")
        a(f"s_add_u32 s{S_T0}, s{S_T0}, s{S_T1}")
        a(f"s_add_u32 s{S_T0}, s{S_T0}, {X_HB + slot*96*KB}")
        add64(a, S_Q1, S_TS, f"s{S_T0}")
        a(f"global_store_dwordx4 v{L16}, {vr(P,4)}, s[{S_Q1}:{S_Q1+1}]{self.sc}")
        a.label(lsk)
        a(f"v_mov_b32 v{SENT}, -1")

    def ffn2_prefetch(self):
        a = self.a
        a(f"s_lshl_b32 s{S_T0}, s{S_RANK}, 2")
        a(f"s_add_u32 s{S_T0}, s{S_T0}, s{S_WAVE}")
        a(f"s_mul_i32 s{S_T1}, s{S_T0}, {12*KB}")
        a(f"s_add_u32 s{S_T1}, s{S_T1}, {X_FW2}")
        add64(a, S_Q2, S_TS, f"s{S_T1}")
        for i in range(11):
            if i % 4 == 0 and i:
                add64(a, S_Q2, S_Q2, 4096)
            a(f"global_load_dwordx4 {vr(68+4*i,4)}, v{L16}, s[{S_Q2}:{S_Q2+1}] offset:{1024*(i%4)} sc1")

    def st_ffn2(self, slot):
        a = self.a
        W2 = 68
        a(f"s_mul_i32 s{S_T0}, s{S_A}, {12*KB}")
        a(f"s_lshl_b32 s{S_T1}, s{S_WAVE}, 10")
        a(f"s_add_u32 s{S_T0}, s{S_T0}, s{S_T1}")
        a(f"s_add_u32 s{S_T0}, s{S_T0}, {X_HB + slot*96*KB}")
        add64(a, S_Q0, S_TS, f"s{S_T0}")
        add64(a, S_Q3, S_TS, X_PART + (slot * 2 + 1) * 512 * KB)
        LD = W0
        T = W0 + 12
        a(f"v_add_u32 v{T}, 4096, v{L16}")
        a(f"s_cmp_eq_u32 s{S_WAVE}, 3")
        a(f"s_cselect_b32 s{S_T0}, 1, 2")
        a(f"s_lshl_b32 s{S_T0}, s{S_T0}, 12")
        a(f"v_add_u32 v{T+1}, s{S_T0}, v{L16}")
        lp = self.lab('g2')
        a(f"s_mov_b32 s{S_SPIN}, {SPIN_MAX}")
        a.label(lp)
        a(f"global_load_dwordx4 {vr(LD,4)}, v{L16}, s[{S_Q0}:{S_Q0+1}] sc1")
        a(f"global_load_dwordx4 {vr(LD+4,4)}, v{T}, s[{S_Q0}:{S_Q0+1}] sc1")
        a(f"global_load_dwordx4 {vr(LD+8,4)}, v{T+1}, s[{S_Q0}:{S_Q0+1}] sc1")
        self.spin_dec()
        a("s_waitcnt vmcnt(0)")
        a(f"v_max3_u32 v{T+2}, v{LD}, v{LD+4}, v{LD+8}")
        a(f"v_cmp_eq_u32 vcc, -1, v{T+2}")
        a(f"s_cbranch_vccnz {lp}")
        a("s_barrier")
        a(f"s_lshl_b32 s{S_T0}, s{S_WAVE}, 10")
        a(f"v_add_u32 v{T}, s{S_T0}, v{FL}")
        for i in range(3):
            a(f"ds_write_b128 v{T}, {vr(LD+4*i,4)} offset:{4096*i}")
        a("s_waitcnt lgkmcnt(0)")
        a("s_barrier")
        H = [W0, W0 + 22]
        ACC0 = W0 + 44
        q = LdsQ(a)
        for rt in range(2):
            for i in range(11):
                q.issue(f"ds_read_b64 {vr(H[rt]+2*i,2)}, v{FL} offset:{1024*i+8*rt}", (rt, i >> 1))
        for rt in range(2):
            AC = ACC0 if rt == 0 else W0
            for p in range(6):
                q.wait((rt, p))
                for ct in range(2):
                    d = vr(AC + 4 * ct, 4)
                    if p < 5:
                        a(f"v_mfma_f32_16x16x32_bf16 {d}, {vr(W2+4*(2*p+ct),4)}, {vr(H[rt]+4*p,4)}, {'0' if p == 0 else d}")
                    else:
                        a(f"v_mfma_f32_16x16x16_bf16 {d}, {vr(W2+40+2*ct,2)}, {vr(H[rt]+20,2)}, {d}")
            if rt == 0:
                a("s_nop 7")
                a("s_nop 7")
        self.store_partials(None, None, accmap=lambda ct, rt: (ACC0 if rt == 0 else W0) + 4 * ct)

    def x_main(self):
        a = self.a
        DB = self.DB
        if self.stamps:
            a(f"s_lshl_b32 s{S_T0}, s{S_RANK}, 13")
            a(f"s_lshl_b32 s{S_T1}, s{S_TEAM}, 18")
            a(f"s_add_u32 s{S_T0}, s{S_T0}, s{S_T1}")
            a(f"s_add_u32 s{S_T0}, s{S_T0}, {STAMP_OFF}")
            add64(a, S_ST, S_WS, f"s{S_T0}")
        a(f"s_mov_b32 s{S_K}, -2")
        lloop = self.lab('xw')
        a.label(lloop)
        self.nstamp = 0
        a(f"s_mul_i32 s{S_SA}, s{S_K}, {NX}")
        a(f"s_add_u32 s{S_SA}, s{S_SA}, s{S_XT}")
        a(f"s_sub_u32 s{S_SB}, s{S_SA}, {NX*DB}")
        a(f"s_add_u32 s{S_TAG}, s{S_K}, 1")
        a(f"s_and_b32 s{S_TAG}, s{S_TAG}, 1")
        assert DB % 2 == 0
        def guarded(sreg, fn):
            l = self.lab('g')
            a(f"s_cmp_ge_u32 s{sreg}, {NSEG}")
            a(f"s_cbranch_scc1 {l}")
            a(f"s_mov_b32 s{S_SEG}, s{sreg}")
            fn()
            a.label(l)
        lnone = self.lab('noab')
        a(f"s_min_u32 s{S_T0}, s{S_SA}, s{S_SB}")
        a(f"s_cmp_ge_u32 s{S_T0}, {NSEG}")
        a(f"s_cbranch_scc1 {lnone}")
        self.stamp()
        guarded(S_SA, lambda: self.st_attn(0)); self.stamp()
        guarded(S_SB, lambda: self.st_attn(1)); self.stamp()
        guarded(S_SA, lambda: self.st_wo(0)); self.stamp()
        guarded(S_SB, lambda: self.st_wo(1, self.warm_fw1)); self.stamp()
        self.ffn1_prefetch()
        self.warm_fw2()
        guarded(S_SA, lambda: self.st_reduce(0, 0)); self.stamp()
        guarded(S_SB, lambda: self.st_reduce(1, 0)); self.stamp()
        guarded(S_SA, lambda: self.st_ffn1(0)); self.stamp()
        guarded(S_SB, lambda: self.st_ffn1(1)); self.stamp()
        self.ffn2_prefetch()
        guarded(S_SA, lambda: self.st_ffn2(0)); self.stamp()
        guarded(S_SB, lambda: self.st_ffn2(1)); self.stamp()
        guarded(S_SA, lambda: self.st_reduce(0, 1)); self.stamp()
        guarded(S_SB, lambda: self.st_reduce(1, 1)); self.stamp()
        guarded(S_SA, lambda: self.st_qkv(1, X_XB + 2 * 32 * KB, True, self.warm_xn0)); self.stamp()
        a.label(lnone)
        a(f"s_add_u32 s{S_SB}, s{S_SA}, {2*NX}")
        def cst():
            a(f"s_add_u32 s{S_T2}, s{S_K}, 2")
            a(f"s_lshl_b32 s{S_T2}, s{S_T2}, 15")
            if X_XN0:
                a(f"s_add_u32 s{S_T2}, s{S_T2}, {X_XN0}")
            self.st_qkv(0, f"s{S_T2}", False, self.warm_next)
        guarded(S_SB, cst)
        lw = self.lab('wnx')
        a(f"s_cmp_lt_u32 s{S_SB}, {NSEG}")
        a(f"s_cbranch_scc1 {lw}")
        self.warm_next()
        a.label(lw)
        self.stamp()
        lnt = self.lab('nt')
        a(f"s_cmp_lg_u32 s{S_K}, -2")
        a(f"s_cbranch_scc1 {lnt}")
        self.x_ffn_transform()
        a.label(lnt)
        if self.stamps:
            ls = self.lab('ns')
            a(f"s_cmp_lg_u32 s{S_WAVE}, 3")
            a(f"s_cbranch_scc1 {ls}")
            self.flush_stamps(W0, W0 + 1)
            a.label(ls)
        a(f"s_add_u32 s{S_K}, s{S_K}, 1")
        a(f"s_cmp_lt_i32 s{S_K}, {11 + DB}")
        lend = self.lab('xe')
        a(f"s_cbranch_scc0 {lend}")
        a(f"s_branch {lloop}")
        a.label(lend)
```

```python
MB = 1 << 20
KB = 1024
NSEG = 64
H = 32
NX = 6
KV_OFF = [0 * MB, 32 * MB]
Q_OFF = [64 * MB, 80 * MB]
KVM_OFF = [96 * MB, 104 * MB]
FLAG_OFF = 112 * MB
FKV_OFF = [FLAG_OFF, FLAG_OFF + 8192]
FKVM_OFF = [FLAG_OFF + 16384, FLAG_OFF + 24576]
FLAG_BYTES = 32768
TEAM_OFF = 128 * MB
TEAM_BYTES = 8 * MB
R_MEMB = 0
R_PART = 65536
X_XN0 = 0
X_XB = 512 * KB
X_HB = 640 * KB
X_OB = 1024 * KB
X_PART = 2048 * KB
X_X2 = 4096 * KB
X_FW1 = 4608 * KB
X_FW2 = 6656 * KB
STAMP_OFF = 120 * MB
```

```python
import sys
from gcommon import *
from gx import GenX, HX
from gr import GenR, HOMES as HR
import gx, gr

TEAM_OFF_SAFE = 192 * MB
OUT = 'interleave_layers__memory_aug_recurrent_mem_tr__dense_activation_gelu__prompt.s'

class Gen(GenBase, GenX, GenR):
    DB = 2
    def arrive(self, off_text):
        a = self.a
        lskip = self.lab('arr')
        a(f"s_cmp_lg_u32 s{S_WAVE}, 0")
        a(f"s_cbranch_scc1 {lskip}")
        self.dbg_atomic(off_text, False)
        a.label(lskip)

    def prologue(self):
        a = self.a
        a(f"s_cmp_ge_u32 s2, 256")
        a("s_cbranch_scc1 L_end0")
        a(f"s_load_dwordx2 s[{S_WS}:{S_WS+1}], s[0:1], 112")
        a(f"s_load_dwordx2 s[{S_DBG}:{S_DBG+1}], s[0:1], 104")
        a(f"s_getreg_b32 s{S_TEAM}, hwreg(HW_REG_XCC_ID)")
        a(f"s_and_b32 s{S_TEAM}, s{S_TEAM}, 7")
        a("v_lshrrev_b32 v1, 6, v0")
        a(f"v_readfirstlane_b32 s{S_WAVE}, v1")
        a("s_waitcnt lgkmcnt(0)")
        l1 = self.lab('reg')
        a(f"s_cmp_lg_u32 s{S_WAVE}, 0")
        a(f"s_cbranch_scc1 {l1}")
        a(f"s_lshl_b32 s{S_T0}, s2, 7")
        a(f"s_add_u32 s{S_T0}, s{S_T0}, {FLAG_OFF}")
        a("v_and_b32 v1, 31, v0")
        a("v_lshlrev_b32 v1, 2, v1")
        a(f"v_add_u32 v1, s{S_T0}, v1")
        a("v_mov_b32 v2, 0")
        a(f"global_store_dword v1, v2, s[{S_WS}:{S_WS+1}] sc1")
        a("s_waitcnt vmcnt(0)")
        a(f"s_lshl_b32 s{S_T0}, s{S_TEAM}, 2")
        self.dbg_atomic(f"s{S_T0}", True)
        a("s_waitcnt vmcnt(0)")
        a("v_mov_b32 v4, v3")
        self.dbg_atomic("32", True)
        a("s_waitcnt vmcnt(0)")
        a("s_mov_b64 exec, 1")
        a(f"v_mov_b32 v1, {L_RED}")
        a("ds_write2_b32 v1, v4, v3 offset0:0 offset1:1")
        a("s_waitcnt lgkmcnt(0)")
        a("s_mov_b64 exec, -1")
        a.label(l1)
        a("s_barrier")
        a(f"v_mov_b32 v1, {L_RED}")
        a("ds_read_b64 v[2:3], v1")
        a("s_waitcnt lgkmcnt(0)")
        a(f"v_readfirstlane_b32 s{S_RANK}, v2")
        a(f"v_readfirstlane_b32 s{S_GRANK}, v3")
        a("s_barrier")
        a("s_branch L_start")
        a.label("L_end0")
        a("s_endpgm")
        a.label("L_start")

    def team_base(self, off):
        a = self.a
        a(f"s_lshl_b32 s{S_T0}, s{S_TEAM}, 23")
        a(f"s_add_u32 s{S_T0}, s{S_T0}, {off}")
        add64(a, S_TS, S_WS, f"s{S_T0}")

    def wait_global(self, lsafe):
        a = self.a
        l1 = self.lab('wg'); lp = self.lab('wgp')
        a(f"s_cmp_lg_u32 s{S_WAVE}, 0")
        a(f"s_cbranch_scc1 {l1}")
        a("v_and_b32 v16, 15, v0")
        a("v_lshlrev_b32 v16, 2, v16")
        a("v_mov_b32 v17, 0")
        a(f"s_mov_b32 s{S_SPIN}, {SPIN_MAX}")
        a("s_mov_b64 exec, 0x1ff")
        a.label(lp)
        a(f"global_atomic_add v18, v16, v17, s[{S_DBG}:{S_DBG+1}] sc0 sc1")
        a("s_waitcnt vmcnt(0)")
        a(f"v_readlane_b32 s{S_T0}, v18, 8")
        self.spin_dec()
        a(f"s_cmp_lt_u32 s{S_T0}, 256")
        a(f"s_cbranch_scc1 {lp}")
        a(f"global_atomic_add v18, v16, v17, s[{S_DBG}:{S_DBG+1}] sc0 sc1")
        a("s_waitcnt vmcnt(0)")
        a("s_mov_b64 exec, 0xff")
        a("v_cmp_ne_u32 vcc, 32, v18")
        a("s_mov_b64 exec, -1")
        a("v_mov_b32 v18, vcc_lo")
        if self.force_safe:
            a("v_mov_b32 v18, 1")
        a(f"v_mov_b32 v16, {L_RED}")
        a("ds_write_b32 v16, v18")
        a("s_waitcnt lgkmcnt(0)")
        a.label(l1)
        a("s_barrier")
        a(f"v_mov_b32 v16, {L_RED}")
        a("ds_read_b32 v18, v16")
        a("s_waitcnt lgkmcnt(0)")
        a(f"v_readfirstlane_b32 s{S_T0}, v18")
        a("s_barrier")
        a(f"s_cmp_lg_u32 s{S_T0}, 0")
        a(f"s_cbranch_scc1 {lsafe}")

    def role(self, kind, safe):
        a = self.a
        cnt = 96 if safe else 64
        self.end = self.lab('end')
        if kind == 'r':
            self.r_init()
        else:
            self.x_sconsts()
            self.x_init()
        a(f"s_lshl_b32 s{S_T0}, s{S_TEAM}, 2")
        a(f"s_add_u32 s{S_T0}, s{S_T0}, {cnt}")
        self.arrive(f"s{S_T0}")
        self.load_weights(kind, HR if kind == 'r' else HX)
        if not safe:
            self.wait_global('L_safe_far_' + kind)
        if kind == 'r':
            self.r_consts()
        else:
            self.x_consts()
        a(f"s_lshl_b32 s{S_T1}, s{S_TEAM}, 2")
        a(f"s_add_u32 s{S_T1}, s{S_T1}, {cnt}")
        self.wait_dbg(f"s{S_T1}", 32)
        if kind == 'r':
            self.r_main()
        else:
            self.x_main()
        a.label(self.end)
        a("s_endpgm")

def gen_full(stamps, force_safe=False):
    g = Gen(stamps=stamps)
    g.force_safe = force_safe
    a = g.a
    g.prologue()
    g.team_base(TEAM_OFF)
    a(f"s_cmp_ge_u32 s{S_RANK}, 32")
    a("s_cbranch_scc1 L_norank")
    a(f"s_cmp_ge_u32 s{S_TEAM}, 2")
    a("s_cbranch_scc1 L_fast_x")
    a("s_branch L_fast_r")
    a.label("L_norank")
    g.end = 'L_end0'
    g.wait_global('L_safe_far_r')
    a.label("L_safe_far_r")
    a("s_branch L_safe")
    a.label("L_fast_r")
    g.role('r', False)
    a.label("L_fast_x")
    g.role('x', False)
    a.label("L_safe_far_x")
    a.label("L_safe")
    g.sc = ' sc1'
    a(f"s_lshr_b32 s{S_TEAM}, s{S_GRANK}, 5")
    a(f"s_and_b32 s{S_RANK}, s{S_GRANK}, 31")
    g.team_base(TEAM_OFF_SAFE)
    a(f"s_cmp_ge_u32 s{S_TEAM}, 2")
    a("s_cbranch_scc1 L_safe_x")
    g.role('r', True)
    a.label("L_safe_x")
    g.role('x', True)
    return g.finish(f"; @launch grid=(256,1,1) block=(256,1,1) lds={LDS_BYTES}")

if __name__ == '__main__':
    mode = sys.argv[1]
    if mode == 'final':
        open(OUT, 'w').write(gen_full(stamps=False))
    elif mode == 'stamps':
        open('full.s', 'w').write(gen_full(stamps=True))
    elif mode == 'safe':
        open('fullsafe.s', 'w').write(gen_full(stamps=False, force_safe=True))
```

```python
import sys, math, struct
from asmb import Asm, vr, ar, sr
from layout import *

KNAME = "interleave_layers__memory_aug_recurrent_mem_tr__dense_activation_gelu__prompt_kernel"
HEADER = open('interleave_layers__memory_aug_recurrent_mem_tr__dense_activation_gelu__prompt.s.ref').read().split('; Override launch')[0]

def f32hex(x):
    return '0x%08x' % struct.unpack('<I', struct.pack('<f', x))[0]

L_W = 0
WPW = 28672
L_KV = 114688
L_FB = 114688
L_MEMS = 147456
L_QK = 155648
L_OX = 159744
L_RED = 161792
L_X1 = 147456
LDS_BYTES = 163840

REGS = [('v', 112 + 8 * i) for i in range(18)] + [('a', 8 * i) for i in range(32)]

def make_homes_r():
    lds_ops = [('qkv', 4, 7), ('qkv', 5, 7), ('qkv', 4, 6), ('qkv', 5, 6), ('qkv', 4, 5), ('qkv', 5, 5), ('qkv', 5, 4),
               ('wo', 7, 1), ('wo', 6, 1), ('wo', 5, 1), ('wo', 4, 1), ('wo', 3, 1), ('wo', 2, 1), ('wo', 1, 1)]
    homes = {}
    for i, o in enumerate(lds_ops):
        homes[o] = ('lds', i)
    regs = list(REGS)
    for t in range(6):
        for ks in range(8):
            o = ('qkv', t, ks)
            if o not in homes:
                homes[o] = regs.pop(0)
    for ct in range(8):
        for ks in range(2):
            o = ('wo', ct, ks)
            if o not in homes:
                homes[o] = regs.pop(0)
    assert not regs
    return homes

def make_homes_r2():
    lds_ops = [('qkv', 0, 0), ('qkv', 1, 0), ('qkv', 2, 0), ('qkv', 3, 0), ('qkv', 5, 5), ('qkv', 5, 6), ('qkv', 5, 7)] + [('wo', ct, 1) for ct in range(7)]
    homes = {}
    for i, o in enumerate(lds_ops):
        homes[o] = ('lds', i)
    regs = list(REGS)
    for t in range(6):
        for ks in range(8):
            o = ('qkv', t, ks)
            if o not in homes:
                homes[o] = regs.pop(0)
    for ct in range(8):
        for ks in range(2):
            o = ('wo', ct, ks)
            if o not in homes:
                homes[o] = regs.pop(0)
    assert not regs
    return homes

def make_homes_x():
    homes = {}
    i = 0
    for t in (5, 7):
        for ks in range(1, 8):
            homes[('qkv', t, ks)] = ('lds', i); i += 1
    regs = list(REGS)
    for t in range(8):
        for ks in range(8):
            o = ('qkv', t, ks)
            if o not in homes:
                homes[o] = regs.pop(0)
    assert not regs
    return homes

def rr(kind, b, n):
    return vr(b, n) if kind == 'v' else ar(b, n)

S_WS = 4
S_TEAM = 6
S_RANK = 7
S_STEP = 8
S_WAVE = 9
S_DBG = 10
S_P0 = 12
S_P1 = 14
S_P2 = 16
S_P3 = 18
S_TS = 20
S_T0 = 38
S_T1 = 39
S_T2 = 40
S_SPIN = 41
S_GRANK = 47
S_ST = 48
S_STAMP0 = 64

SPIN_MAX = 1 << 21

def add64(a, dst, src, off):
    a(f"s_add_u32 s{dst}, s{src}, {off}")
    a(f"s_addc_u32 s{dst+1}, s{src+1}, 0")

class LdsQ:
    def __init__(self, a):
        self.a = a
        self.q = []
    def issue(self, text, tag=None):
        self.a(text)
        self.q.append(tag)
    def wait(self, tag):
        idx = max(i for i, t in enumerate(self.q) if t == tag) if tag in self.q else -1
        if idx < 0:
            return
        n = len(self.q) - 1 - idx
        self.a(f"s_waitcnt lgkmcnt({min(n, 15)})")
        if n <= 15:
            self.q = self.q[idx + 1:]
        else:
            self.q = self.q[len(self.q) - 15:]
    def all(self):
        self.a("s_waitcnt lgkmcnt(0)")
        self.q = []

class GenBase:
    def __init__(self, stamps=False):
        self.a = Asm()
        self.stamps = stamps
        self.nlab = 0
        self.nstamp = 0
        self.sc = ''
        self.end = 'L_end'

    def lab(self, base):
        self.nlab += 1
        return f"L_{base}_{self.nlab}"

    def stamp(self):
        if not self.stamps:
            return
        i = self.nstamp
        self.nstamp += 1
        assert i < 18
        self.a(f"s_memtime s[{S_STAMP0+2*i}:{S_STAMP0+1+2*i}]")

    def flush_stamps(self, t0, t1):
        a = self.a
        if not self.stamps:
            return
        a("s_waitcnt lgkmcnt(0)")
        for i in range(self.nstamp):
            a(f"v_mov_b32 v{t0}, s{S_STAMP0+2*i}")
            a(f"v_mov_b32 v{t1}, {4*i}")
            a(f"global_store_dword v{t1}, v{t0}, s[{S_ST}:{S_ST+1}]")
        add64(a, S_ST, S_ST, 128)

    def spin_dec(self):
        a = self.a
        a(f"s_sub_u32 s{S_SPIN}, s{S_SPIN}, 1")
        a(f"s_cmp_eq_u32 s{S_SPIN}, 0")
        a(f"s_cbranch_scc1 {self.end}")

    def dbg_atomic(self, idx_text, ret):
        a = self.a
        a(f"v_mov_b32 v1, {idx_text}")
        a("v_mov_b32 v2, 1")
        a("s_mov_b64 exec, 1")
        if ret:
            a(f"global_atomic_add v3, v1, v2, s[{S_DBG}:{S_DBG+1}] sc0 sc1")
        else:
            a(f"global_atomic_add v1, v2, s[{S_DBG}:{S_DBG+1}] sc1")
        a("s_mov_b64 exec, -1")

    def wait_dbg(self, off, target):
        a = self.a
        lw = self.lab('dw')
        a(f"v_mov_b32 v17, {off}")
        a(f"s_mov_b32 s{S_SPIN}, {SPIN_MAX}")
        a.label(lw)
        a(f"global_load_dword v18, v17, s[{S_DBG}:{S_DBG+1}] sc1")
        a("s_waitcnt vmcnt(0)")
        a(f"v_readfirstlane_b32 s{S_T0}, v18")
        self.spin_dec()
        a(f"s_cmp_lt_u32 s{S_T0}, {target}")
        a(f"s_cbranch_scc1 {lw}")

    def load_weights(self, kind, HOMES, L_KV=L_KV, L_WB=0, rot=False):
        a = self.a
        a(f"s_load_dwordx2 s[{S_P0}:{S_P0+1}], s[0:1], 16")
        a(f"s_load_dwordx2 s[{S_P1}:{S_P1+1}], s[0:1], 24")
        a(f"s_load_dwordx2 s[{S_P2}:{S_P2+1}], s[0:1], 32")
        a(f"s_load_dwordx2 s[{S_P3}:{S_P3+1}], s[0:1], 40")
        a("v_lshrrev_b32 v1, 4, v0")
        a("v_and_b32 v2, 15, v0")
        a("v_lshlrev_b32 v3, 13, v1")
        a("v_lshl_add_u32 v3, v2, 4, v3")
        a(f"s_lshl_b32 s{S_T0}, s{S_RANK}, 8")
        a(f"v_add_u32 v3, s{S_T0}, v3")
        if kind == 'r':
            a("v_lshlrev_b32 v4, 10, v1")
            a("v_lshrrev_b32 v5, 2, v2")
            a("v_lshl_add_u32 v4, v5, 8, v4")
            a("v_and_b32 v5, 3, v2")
            a("v_lshl_add_u32 v4, v5, 4, v4")
            a(f"s_lshl_b32 s{S_T0}, s{S_RANK}, 17")
            a(f"v_add_u32 v4, s{S_T0}, v4")
        else:
            a("v_lshlrev_b32 v4, 10, v1")
            a("v_lshl_add_u32 v4, v2, 4, v4")
            a(f"s_lshr_b32 s{S_T0}, s{S_RANK}, 2")
            a(f"s_lshl_b32 s{S_T0}, s{S_T0}, 19")
            a(f"s_and_b32 s{S_T1}, s{S_RANK}, 3")
            a(f"s_lshl_b32 s{S_T1}, s{S_T1}, 8")
            a(f"s_add_u32 s{S_T0}, s{S_T0}, s{S_T1}")
            a(f"v_add_u32 v4, s{S_T0}, v4")
        a("v_and_b32 v5, 3, v1")
        a("v_lshlrev_b32 v5, 5, v5")
        a("v_bfe_u32 v6, v1, 3, 1")
        a("v_lshlrev_b32 v6, 7, v6")
        a("v_xor_b32 v5, v5, v6")
        a("v_lshlrev_b32 v6, 4, v2")
        a("v_xor_b32 v5, v5, v6")
        a("v_lshl_add_u32 v5, v1, 8, v5")
        a(f"v_add_u32 v5, {L_KV}, v5")
        a("v_and_b32 v6, 63, v0")
        a("v_lshrrev_b32 v7, 4, v6")
        a("v_bfe_u32 v8, v6, 2, 2")
        a("v_and_b32 v9, 3, v6")
        a("v_lshl_add_u32 v10, v7, 3, v8")
        a("v_lshlrev_b32 v10, 8, v10")
        a(f"v_add_u32 v10, {L_KV}, v10")
        a("v_lshlrev_b32 v8, 5, v8")
        a("v_and_b32 v7, 1, v7")
        a("v_lshlrev_b32 v7, 7, v7")
        a("v_xor_b32 v8, v8, v7")
        a(f"s_lshl_b32 s{S_T0}, s{S_WAVE}, 6")
        a("v_lshlrev_b32 v12, 3, v9")
        a(f"v_add_u32 v12, s{S_T0}, v12")
        a("v_xor_b32 v12, v12, v8")
        a("v_add_u32 v6, v10, v12")
        a("v_xor_b32 v12, 32, v12")
        a("v_add_u32 v7, v10, v12")
        if kind == 'x':
            a("v_lshlrev_b32 v12, 4, v9")
            a(f"v_add_u32 v12, s{S_T0}, v12")
            a("v_xor_b32 v12, v12, v8")
            a("v_add_u32 v13, v10, v12")
            a("v_add_u32 v14, 8, v13")
        a("v_and_b32 v8, 63, v0")
        a("v_lshlrev_b32 v8, 4, v8")
        a(f"s_mul_i32 s{S_T0}, s{S_WAVE}, {WPW}")
        if L_WB:
            a(f"s_add_u32 s{S_T0}, s{S_T0}, {L_WB}")
        a(f"v_add_u32 v8, s{S_T0}, v8")
        if rot:
            a("v_lshrrev_b32 v15, 2, v2")
            a("v_lshlrev_b32 v15, 20, v15")
        a("s_waitcnt lgkmcnt(0)")
        if kind == 'r':
            chunks = [('qkv', m, ks) for m in (1, 2, 0) for ks in range(8)] + [('wo', j, ks) for ks in range(2) for j in range(4)]
        else:
            chunks = [('qkv', m, ks) for m in (1, 2, 0, 3) for ks in range(8)]
        DEPTH = 5
        LAND = 16
        TMP = 96
        def issue(ci):
            knd, x, ks = chunks[ci]
            base = LAND + 16 * (ci % DEPTH)
            for i in range(4):
                if knd == 'qkv' and x < 3:
                    sp = [S_P0, S_P1, S_P2][x]
                    off = (64 * ks + 16 * i) * 8192
                    src = 3
                elif knd == 'qkv':
                    sp = S_P3
                    off = (64 * ks + 16 * i) * 1024
                    src = 4
                else:
                    sp = S_P3
                    off = (64 * ks + 16 * i) * 1024 + x * 64
                    src = 4
                if rot and knd == 'qkv' and x < 3:
                    a(f"v_add_u32 v11, {ks << 19}, v15")
                    a(f"v_and_b32 v11, 0x3fffff, v11")
                    a(f"v_add3_u32 v11, v11, v3, s{S_T1+0 if False else S_T1}") if False else None
                    a(f"v_add_u32 v11, v11, v3")
                    if i:
                        a(f"v_add_u32 v11, {16*i*8192}, v11")
                else:
                    a(f"v_add_u32 v11, {off}, v{src}") if off else a(f"v_mov_b32 v11, v{src}")
                a(f"global_load_dwordx4 {vr(base+4*i,4)}, v11, s[{sp}:{sp+1}]")
        for ci in range(DEPTH):
            issue(ci)
        n = len(chunks)
        for ci in range(n):
            knd, x, ks = chunks[ci]
            base = LAND + 16 * (ci % DEPTH)
            sb = (ci & 1) * 16384
            inflight = min(DEPTH, n - ci)
            a(f"s_waitcnt vmcnt({4*(inflight-1)})")
            for i in range(4):
                a(f"ds_write_b128 v5, {vr(base+4*i,4)} offset:{sb + 4096*i}")
            a("s_waitcnt lgkmcnt(0)")
            if ci + DEPTH < n:
                issue(ci + DEPTH)
            a("s_barrier")
            for tt in range(2):
                op = (knd, 2 * x + tt, ks)
                hk, hb = HOMES[op]
                dk, db = (('v', TMP) if hk == 'lds' else (hk, hb))
                areg = (13 + tt) if (kind == 'x' and x == 3) else (6 + tt)
                for hbk in range(2):
                    for u in range(2):
                        off = sb + (32 * hbk + 4 * u) * 256
                        a(f"ds_read_b64_tr_b16 {rr(dk, db + 4*hbk + 2*u, 2)}, v{areg} offset:{off}")
                if hk == 'lds':
                    a("s_waitcnt lgkmcnt(0)")
                    a(f"ds_write_b128 v8, {vr(TMP,4)} offset:{hb*2048}")
                    a(f"ds_write_b128 v8, {vr(TMP+4,4)} offset:{hb*2048+1024}")
            a("s_waitcnt lgkmcnt(0)")
        a("s_barrier")

    def finish(self, launch_lines):
        body = self.a.text()
        s = HEADER + launch_lines + '\n'
        s += '.amdgcn_target "amdgcn-amd-amdhsa--gfx950"\n.text\n'
        s += f'.globl {KNAME}\n.p2align 8\n.type {KNAME},@function\n{KNAME}:\n'
        s += body
        s += 'L_end:\n    s_endpgm\n'
        s += f'''.section .rodata,"a"
.p2align 6
.amdhsa_kernel {KNAME}
  .amdhsa_next_free_vgpr 512
  .amdhsa_next_free_sgpr 102
  .amdhsa_accum_offset 256
  .amdhsa_group_segment_fixed_size 0
  .amdhsa_kernarg_size 120
  .amdhsa_user_sgpr_count 2
  .amdhsa_user_sgpr_kernarg_segment_ptr 1
  .amdhsa_system_sgpr_workgroup_id_x 1
.end_amdhsa_kernel
'''
        return s
```

```python
from gcommon import *
from gx2 import *

S_U = 22
S_N = 23
S_J = 26
S_L = 27
S_FP = 60
S_XN1 = 61
S_X1 = 62
S_FX1 = 63

L_HL = 0
L_STG = 16384

B1R = 128
B2R = 140

def w1home(i, ks):
    return ('a', 4 * (i * 16 + ks))
def w2home(bq, c):
    n = bq * 11 + c
    return ('a', 192 + 4 * n) if n < 16 else ('v', 144 + 4 * (n - 16))

class GenF:
    def f_sconsts(self):
        a = self.a
        a(f"s_lshr_b32 s{S_U}, s{S_RANK}, 3")
        a(f"s_and_b32 s{S_J}, s{S_RANK}, 7")
        a(f"s_and_b32 s{S_L}, s{S_U}, 1")
        a(f"s_mul_i32 s{S_PSB}, s{S_J}, {P_SP}")
        a(f"s_lshl_b32 s{S_T0}, s{S_WAVE}, 9")
        a(f"s_add_u32 s{S_PSB}, s{S_PSB}, s{S_T0}")
        a(f"s_mul_i32 s{S_FP}, s{S_U}, {2*P_BUF}")
        if F_PART:
            a(f"s_add_u32 s{S_FP}, s{S_FP}, {F_PART}")
        a(f"s_cmp_eq_u32 s{S_L}, 0")
        a(f"s_cselect_b32 s{S_XN1}, {XN1_OFF[0]}, {XN1_OFF[1]}") if False else None
        a(f"s_lshl_b32 s{S_T0}, s{S_L}, 21")
        a(f"s_add_u32 s{S_XN1}, s{S_T0}, {XN1_OFF[0]}")
        a(f"s_add_u32 s{S_X1}, s{S_T0}, {X1_OFF[0]}")
        a(f"s_lshl_b32 s{S_T0}, s{S_L}, 13")
        a(f"s_add_u32 s{S_FX1}, s{S_T0}, {FX1_OFF[0]}")
        assert XN1_OFF[1] - XN1_OFF[0] == 2 * MB and X1_OFF[1] - X1_OFF[0] == 2 * MB and FX1_OFF[1] - FX1_OFF[0] == 8192
        a(f"s_load_dwordx2 s[{S_OUT}:{S_OUT+1}], s[0:1], 96")
        a(f"s_load_dwordx2 s[{S_B1}:{S_B1+1}], s[0:1], 72")
        a(f"s_load_dwordx2 s[{S_B2}:{S_B2+1}], s[0:1], 88")
        a("s_waitcnt lgkmcnt(0)")

    def f_init(self):
        a = self.a
        sc = self.sc
        a("v_lshlrev_b32 v2, 4, v0")
        for i in range(4):
            a(f"v_mov_b32 v{8+i}, 0")
        a(f"s_mul_i32 s{S_T0}, s{S_J}, {P_BUF//8}")
        a(f"s_add_u32 s{S_T0}, s{S_T0}, s{S_FP}")
        a(f"v_add_u32 v3, s{S_T0}, v2")
        for bq in range(2):
            for hh in range(18):
                a(f"v_add_u32 v12, {bq*P_BUF + hh*4096}, v3")
                a(f"global_store_dwordx4 v12, v[8:11], s[{S_TS}:{S_TS+1}]{sc}")
        a("s_waitcnt vmcnt(0)")
        a("s_barrier")

    def f_load_weights(self):
        a = self.a
        R0 = W0
        A1, A2, A3, A4 = W0 + 92, W0 + 93, W0 + 94, W0 + 95
        a(f"s_load_dwordx2 s[{S_Q0}:{S_Q0+1}], s[0:1], 64")
        a(f"s_load_dwordx2 s[{S_Q1}:{S_Q1+1}], s[0:1], 80")
        a(f"s_mul_i32 s{S_T2}, s{S_WAVE}, {16*KB}")
        a(f"s_add_u32 s{S_T2}, s{S_T2}, {L_STG}")
        a(f"v_add_u32 v{A2}, s{S_T2}, v{L16}")
        a(f"v_lshrrev_b32 v{A3}, 8, v{L16}")
        a(f"v_lshlrev_b32 v{A3}, 8, v{A3}")
        a(f"v_bfe_u32 v{A1}, v{L16}, 6, 2")
        a(f"v_lshl_add_u32 v{A3}, v{A1}, 5, v{A3}")
        a(f"v_bfe_u32 v{A1}, v{L16}, 4, 2")
        a(f"v_lshl_add_u32 v{A3}, v{A1}, 3, v{A3}")
        a(f"v_add_u32 v{A3}, s{S_T2}, v{A3}")
        a("s_waitcnt lgkmcnt(0)")
        for i in range(3):
            lzero = self.lab('f1z'); ldone = self.lab('f1d')
            for e in range(4):
                a(f"v_mov_b32 v{B1R+4*i+e}, 0")
            a(f"s_add_u32 s{S_T1}, s{S_WAVE}, {4*i}")
            a(f"s_cmp_ge_u32 s{S_T1}, 11")
            a(f"s_cbranch_scc1 {lzero}")
            a(f"s_mul_i32 s{S_T0}, s{S_J}, 11")
            a(f"s_add_u32 s{S_T0}, s{S_T0}, s{S_T1}")
            a(f"s_cmp_ge_u32 s{S_T0}, 86")
            a(f"s_cbranch_scc1 {lzero}")
            a(f"s_lshl_b32 s{S_T0}, s{S_T0}, 5")
            a(f"v_lshrrev_b32 v{A4}, 8, v{L16}")
            a(f"v_lshlrev_b32 v{A4}, 3, v{A4}")
            a(f"v_add_u32 v{A4}, s{S_T0}, v{A4}")
            a(f"global_load_dwordx2 {vr(R0+64,2)}, v{A4}, s[{S_B1}:{S_B1+1}]")
            a(f"v_lshrrev_b32 v{A1}, 5, v{L16}")
            a(f"v_mul_u32_u24 v{A1}, 2752, v{A1}")
            a(f"v_and_b32 v{A4}, 16, v{L16}")
            a(f"v_add_u32 v{A1}, v{A1}, v{A4}")
            a(f"v_add_u32 v{A1}, s{S_T0}, v{A1}")
            for ks in range(16):
                a(f"global_load_dwordx4 {vr(R0+4*ks,4)}, v{A1}, s[{S_Q0}:{S_Q0+1}]")
                if ks < 15:
                    a(f"v_add_u32 v{A1}, {32*2752}, v{A1}")
            a("s_waitcnt vmcnt(0)")
            for ks in range(16):
                a(f"ds_write_b128 v{A2}, {vr(R0+4*ks,4)} offset:{1024*ks}")
            a(f"v_lshlrev_b32 v{B1R+4*i}, 16, v{R0+64}")
            a(f"v_and_b32 v{B1R+4*i+1}, 0xffff0000, v{R0+64}")
            a(f"v_lshlrev_b32 v{B1R+4*i+2}, 16, v{R0+65}")
            a(f"v_and_b32 v{B1R+4*i+3}, 0xffff0000, v{R0+65}")
            a("s_waitcnt lgkmcnt(0)")
            for ks in range(16):
                hk, hb = w1home(i, ks)
                for u in range(2):
                    a(f"ds_read_b64_tr_b16 {rr(hk, hb+2*u, 2)}, v{A3} offset:{1024*ks+128*u}")
            a("s_waitcnt lgkmcnt(0)")
            a(f"s_branch {ldone}")
            a.label(lzero)
            for ks in range(16):
                hk, hb = w1home(i, ks)
                for e in range(4):
                    a(f"v_accvgpr_write_b32 a{hb+e}, 0")
            a.label(ldone)
        a(f"v_lshrrev_b32 v{A3}, 8, v{L16}")
        a(f"v_lshlrev_b32 v{A3}, 8, v{A3}")
        a(f"v_bfe_u32 v{A1}, v{L16}, 6, 2")
        a(f"v_lshl_add_u32 v{A3}, v{A1}, 6, v{A3}")
        a(f"v_bfe_u32 v{A1}, v{L16}, 4, 2")
        a(f"v_lshl_add_u32 v{A3}, v{A1}, 4, v{A3}")
        a(f"v_add_u32 v{A3}, s{S_T2}, v{A3}")
        a(f"global_load_dwordx4 {vr(B2R,4)}, v{L16}, s[{S_B2}:{S_B2+1}]")
        for bq in range(4):
            a(f"v_lshrrev_b32 v{A1}, 6, v{L16}")
            a(f"v_lshlrev_b32 v{A1}, 10, v{A1}")
            a(f"v_and_b32 v{A4}, 48, v{L16}")
            a(f"v_add_u32 v{A1}, v{A1}, v{A4}")
            a(f"s_mul_i32 s{S_T0}, s{S_J}, {176*1024}")
            a(f"s_lshl_b32 s{S_T1}, s{S_WAVE}, 6")
            a(f"s_add_u32 s{S_T0}, s{S_T0}, s{S_T1}")
            a(f"s_add_u32 s{S_T0}, s{S_T0}, {256*bq}")
            a(f"v_add_u32 v{A1}, s{S_T0}, v{A1}")
            for i in range(9):
                a(f"global_load_dwordx4 {vr(R0+4*i,4)}, v{A1}, s[{S_Q1}:{S_Q1+1}]")
                a(f"v_add_u32 v{A1}, {16*1024}, v{A1}")
            for i in range(8):
                a(f"v_mov_b32 v{R0+36+i}, 0")
            l7 = self.lab('f2z')
            a(f"s_cmp_eq_u32 s{S_J}, 7")
            a(f"s_cbranch_scc1 {l7}")
            for i in range(9, 11):
                a(f"global_load_dwordx4 {vr(R0+4*i,4)}, v{A1}, s[{S_Q1}:{S_Q1+1}]")
                a(f"v_add_u32 v{A1}, {16*1024}, v{A1}")
            a.label(l7)
            a("s_waitcnt vmcnt(0)")
            for i in range(11):
                a(f"ds_write_b128 v{A2}, {vr(R0+4*i,4)} offset:{1024*i}")
            a("s_waitcnt lgkmcnt(0)")
            for p in range(5):
                for ct in range(2):
                    hk, hb = w2home(bq, 2 * p + ct)
                    for u in range(2):
                        a(f"ds_read_b64_tr_b16 {rr(hk, hb+2*u, 2)}, v{A3} offset:{(2*p+u)*1024+8*ct}")
            hk, hb = w2home(bq, 10)
            for ct in range(2):
                a(f"ds_read_b64_tr_b16 {rr(hk, hb+2*ct, 2)}, v{A3} offset:{10*1024+8*ct}")
            a("s_waitcnt lgkmcnt(0)")
        a("s_barrier")

    def f_main(self):
        a = self.a
        sc = self.sc
        if self.stamps:
            a(f"s_lshl_b32 s{S_T0}, s{S_RANK}, 13")
            a(f"s_lshl_b32 s{S_T1}, s{S_TEAM}, 18")
            a(f"s_add_u32 s{S_T0}, s{S_T0}, s{S_T1}")
            a(f"s_add_u32 s{S_T0}, s{S_T0}, {STAMP_OFF}")
            add64(a, S_ST, S_WS, f"s{S_T0}")
        a(f"v_add_u32 v{WLA}, 4096, v{PSV}")
        a(f"v_add_u32 v{SENT}, 4096, v{PSV1}")
        a(f"s_mov_b32 s{S_N}, 0")
        lloop = self.lab('fj')
        a.label(lloop)
        self.nstamp = 0
        self.stamp()
        a(f"s_lshr_b32 s{S_SEG}, s{S_U}, 1")
        a(f"s_lshl_b32 s{S_T0}, s{S_N}, 1")
        a(f"s_add_u32 s{S_SEG}, s{S_SEG}, s{S_T0}")
        a(f"s_and_b32 s{S_PAR}, s{S_N}, 1")
        a(f"s_mul_i32 s{S_PAR}, s{S_PAR}, {P_BUF}")
        a(f"s_add_u32 s{S_PAR}, s{S_PAR}, s{S_FP}")
        a(f"s_bfe_u32 s{S_TAG}, s{S_N}, 0x10001")
        a(f"s_xor_b32 s{S_TAG}, s{S_TAG}, 1")
        self.poll_flags32(f"s{S_FX1}", S_SEG, W0)
        self.stamp()
        a(f"s_lshl_b32 s{S_T0}, s{S_SEG}, 15")
        a(f"s_add_u32 s{S_T0}, s{S_T0}, s{S_XN1}")
        add64(a, S_Q0, S_WS, f"s{S_T0}")
        XR = W0 + 108
        FLV = 15
        a(f"s_lshl_b32 s{S_T1}, s{S_J}, 2")
        a(f"s_add_u32 s{S_T1}, s{S_T1}, s{S_WAVE}")
        a(f"s_lshl_b32 s{S_T0}, s{S_SEG}, 5")
        a(f"s_add_u32 s{S_T1}, s{S_T1}, s{S_T0}")
        a(f"s_lshl_b32 s{S_T0}, s{S_T1}, 10")
        add64(a, S_Q1, S_WS, f"s{S_T0}")
        add64(a, S_Q2, S_OUT, f"s{S_T0}")
        a(f"v_add_u32 v{W0+40}, s{S_X1}, v{L16}")
        a(f"global_load_dwordx4 {vr(XR,4)}, v{W0+40}, s[{S_Q1}:{S_Q1+1}] sc1")
        a(f"s_lshl_b32 s{S_T1}, s{S_T1}, 2")
        a(f"v_mov_b32 v{FLV}, s{S_T1}")
        a(f"v_add_u32 v{FLV}, {FX2_OFF}, v{FLV}")
        self.gather_rows(W0, S_Q0, False)
        self.stamp()
        ACC, XF = W0, W0 + 24
        q = LdsQ(a)
        def xread(ks):
            b = XF + 8 * (ks % 3)
            for rt in range(2):
                q.issue(f"ds_read_b128 {vr(b+4*rt,4)}, v{FR0+(ks&3)} offset:{rt*16384+ks*1024}", ks)
        xread(0); xread(1)
        for ks in range(16):
            if ks + 2 < 16:
                xread(ks + 2)
            q.wait(ks)
            xb = XF + 8 * (ks % 3)
            for i in range(3):
                hk, hb = w1home(i, ks)
                for rt in range(2):
                    d = vr(ACC + 8 * i + 4 * rt, 4)
                    a(f"v_mfma_f32_16x16x32_bf16 {d}, {rr(hk,hb,4)}, {vr(xb+4*rt,4)}, {'0' if ks == 0 else d}")
        self.stamp()
        P = W0 + 48
        U = W0 + 64
        KC = W0 + 88
        k1 = -2.0 * math.log2(math.e) * math.sqrt(2.0 / math.pi)
        k3 = k1 * 0.044715
        a(f"v_mov_b32 v{KC}, {f32hex(k3)}")
        a(f"s_lshl_b32 s{S_T0}, s{S_WAVE}, 10")
        a(f"v_add_u32 v{KC+1}, s{S_T0}, v{L16}")
        for i in range(3):
            A = ACC + 8 * i
            self.pack8(P + 4 * i, A)
            self.unpack8(A, P + 4 * i)
            for e in range(4):
                a(f"v_pk_add_f32 {vr(A+2*e,2)}, {vr(A+2*e,2)}, {vr(B1R+4*i+2*(e&1),2)}")
            self.pack8(P + 4 * i, A)
            self.unpack8(A, P + 4 * i)
        for e in range(12):
            a(f"v_pk_mul_f32 {vr(U+2*e,2)}, {vr(ACC+2*e,2)}, {vr(ACC+2*e,2)}")
        for e in range(24):
            a(f"v_fmaak_f32 v{U+e}, v{KC}, v{U+e}, {f32hex(k1)}")
        for e in range(12):
            a(f"v_pk_mul_f32 {vr(U+2*e,2)}, {vr(U+2*e,2)}, {vr(ACC+2*e,2)}")
        for e in range(24):
            a(f"v_exp_f32 v{U+e}, v{U+e}")
        for e in range(24):
            a(f"v_add_f32 v{U+e}, 1.0, v{U+e}")
        for e in range(24):
            a(f"v_rcp_f32 v{U+e}, v{U+e}")
        for e in range(12):
            a(f"v_pk_mul_f32 {vr(U+2*e,2)}, {vr(U+2*e,2)}, {vr(ACC+2*e,2)}")
        for i in range(3):
            self.pack8(P + 4 * i, U + 8 * i)
            a(f"ds_write_b128 v{KC+1}, {vr(P+4*i,4)} offset:{L_HL+4096*i}")
        a("s_waitcnt lgkmcnt(0)")
        a("s_barrier")
        self.stamp()
        Hh = [W0, W0 + 22]
        AC = W0 + 44
        assert AC + 64 <= W0 + 108
        add64(a, S_Q3, S_TS, f"s{S_PAR}")
        q = LdsQ(a)
        for rt in range(2):
            for i in range(11):
                q.issue(f"ds_read_b64 {vr(Hh[rt]+2*i,2)}, v{L16} offset:{L_HL+1024*i+8*rt}", (rt, i >> 1))
        for rt in range(2):
            for p in range(6):
                q.wait((rt, p))
                for bq in range(4):
                    for ct in range(2):
                        d = vr(AC + 16 * bq + 8 * ct + 4 * rt, 4)
                        if p < 5:
                            hk, hb = w2home(bq, 2 * p + ct)
                            a(f"v_mfma_f32_16x16x32_bf16 {d}, {vr(Hh[rt]+4*p,4)}, {rr(hk,hb,4)}, {'0' if p == 0 else d}")
                        else:
                            hk, hb = w2home(bq, 10)
                            a(f"v_mfma_f32_16x16x16_bf16 {d}, {vr(Hh[rt]+20,2)}, {rr(hk,hb+2*ct,2)}, {d}")
            for bq in range(4):
                self.store_partials(None, S_TAG, rts=(rt,), accmap=lambda ct, r_: AC + 16 * bq + 8 * ct + 4 * r_, off=2048 * (bq & 1), regs=(None if bq < 2 else (WLA, SENT)))
        self.stamp()
        a(f"s_mul_i32 s{S_T0}, s{S_J}, {P_RG}")
        a(f"s_lshl_b32 s{S_T1}, s{S_WAVE}, 11")
        a(f"s_add_u32 s{S_T0}, s{S_T0}, s{S_T1}")
        a(f"s_add_u32 s{S_T0}, s{S_T0}, s{S_PAR}")
        add64(a, S_Q0, S_TS, f"s{S_T0}")
        LD, T = W0, W0 + 64
        self.reduce_core(LD, T, S_TAG)
        self.stamp()
        Y = LD
        X = LD + 8; D = LD + 16; P = LD + 24; TT = LD + 28
        self.pack8(P, Y)
        self.unpack8(Y, P)
        self.unpack8(X, B2R)
        for e in range(4):
            a(f"v_pk_add_f32 {vr(Y+2*e,2)}, {vr(Y+2*e,2)}, {vr(X+2*e,2)}")
        self.pack8(P, Y)
        self.unpack8(Y, P)
        self.unpack8(X, XR)
        for e in range(4):
            a(f"v_pk_add_f32 {vr(X+2*e,2)}, {vr(X+2*e,2)}, {vr(Y+2*e,2)}")
        XP = LD + 32
        self.pack8(XP, X)
        l1 = self.lab('fl1'); l2 = self.lab('fl2')
        a(f"s_cmp_lg_u32 s{S_L}, 0")
        a(f"s_cbranch_scc1 {l1}")
        a(f"v_add_u32 v{T}, {X2_OFF}, v{L16}")
        a(f"global_store_dwordx4 v{T}, {vr(XP,4)}, s[{S_Q1}:{S_Q1+1}] sc1")
        self.unpack8(X, XP)
        self.layernorm(X, D, P, TT)
        a(f"v_add_u32 v{T+1}, {XN2_OFF}, v{L16}")
        a(f"global_store_dwordx4 v{T+1}, {vr(P,4)}, s[{S_Q1}:{S_Q1+1}] sc1")
        a(f"v_mov_b32 v{T+2}, 1")
        a("s_waitcnt vmcnt(0)")
        a("s_mov_b64 exec, 1")
        a(f"global_store_dword v{FLV}, v{T+2}, s[{S_WS}:{S_WS+1}] sc1")
        a("s_mov_b64 exec, -1")
        a(f"s_branch {l2}")
        a.label(l1)
        a(f"global_store_dwordx4 v{L16}, {vr(XP,4)}, s[{S_Q2}:{S_Q2+1}]")
        a.label(l2)
        self.stamp()
        if self.stamps:
            ls = self.lab('ns')
            a(f"s_cmp_lg_u32 s{S_WAVE}, 3")
            a(f"s_cbranch_scc1 {ls}")
            self.flush_stamps(W0, W0 + 1)
            a.label(ls)
        a(f"s_add_u32 s{S_N}, s{S_N}, 1")
        a(f"s_cmp_lt_u32 s{S_N}, 32")
        a(f"s_cbranch_scc1 {lloop}")
```

```python
from gcommon import *

HX = make_homes_x()

S_XT = 22
S_K = 23
S_SEG = 24
S_PAR = 25
S_A = 26
S_B = 27
S_Q0 = 28
S_Q1 = 30
S_Q2 = 32
S_Q3 = 34
S_TAG = 36
S_C = 44
S_X = 50
S_OUT = 52
S_B1 = 54
S_B2 = 56
S_PSB = 58
S_SC = 60
S_SA, S_SB = 62, 63

L16, GW, FR0, FL, WLA, GL0, GL1, PSV, PSV1, SENT = 1, 2, 3, 7, 8, 9, 10, 11, 12, 13
ZERO = 14
W0 = 16

P_SP = 8192 + 128
P_RG = 8 * P_SP + 128
P_BUF = 576 * KB
assert 8 * P_RG <= P_BUF
L_RX = 147456
X_DONE = 960 * KB

class GenX:
    def x_consts(self):
        a = self.a
        T = W0
        a(f"v_and_b32 v{T}, 63, v0")
        a(f"v_lshlrev_b32 v{L16}, 4, v{T}")
        a(f"v_and_b32 v{T+1}, 15, v{T}")
        a(f"v_lshrrev_b32 v{T+2}, 4, v{T}")
        a(f"s_and_b32 s{S_T0}, s{S_WAVE}, 1")
        a(f"s_lshl_b32 s{S_T0}, s{S_T0}, 3")
        a(f"v_xor_b32 v{T+3}, s{S_T0}, v{T+1}")
        a(f"v_lshlrev_b32 v{T+3}, 4, v{T+3}")
        a(f"v_lshl_add_u32 v{T+3}, v{T}, 8, v{T+3}")
        a(f"s_lshr_b32 s{S_T0}, s{S_WAVE}, 1")
        a(f"s_lshl_b32 s{S_T0}, s{S_T0}, 14")
        a(f"s_add_u32 s{S_T0}, s{S_T0}, {L_FB}")
        a(f"v_add_u32 v{GW}, s{S_T0}, v{T+3}")
        a(f"v_xor_b32 v{T+3}, v{T+1}, v{T+2}")
        a(f"v_lshlrev_b32 v{T+3}, 4, v{T+3}")
        a(f"v_lshl_add_u32 v{T+3}, v{T+2}, 8, v{T+3}")
        a(f"v_add_u32 v{FR0}, {L_FB}, v{T+3}")
        for m in range(1, 4):
            a(f"v_xor_b32 v{FR0+m}, {64*m}, v{FR0}")
        a(f"v_add_u32 v{FL}, {L_FB}, v{L16}")
        a(f"s_mul_i32 s{S_T0}, s{S_WAVE}, {WPW}")
        a(f"v_add_u32 v{WLA}, s{S_T0}, v{L16}")
        a(f"s_lshl_b32 s{S_T0}, s{S_WAVE}, 13")
        a(f"v_add_u32 v{GL0}, s{S_T0}, v{L16}")
        a(f"v_add_u32 v{GL1}, 4096, v{GL0}")
        a(f"v_mul_u32_u24 v{PSV}, {P_RG}, v{T+2}")
        a(f"v_lshl_add_u32 v{PSV}, v{T+1}, 4, v{PSV}")
        a(f"v_add_u32 v{PSV}, s{S_PSB}, v{PSV}")
        a(f"v_add_u32 v{PSV1}, {4*P_RG}, v{PSV}")
        a(f"v_mov_b32 v{SENT}, -1")
        a(f"v_mov_b32 v{ZERO}, 0")

    def x_sconsts(self):
        a = self.a
        a(f"s_sub_u32 s{S_XT}, s{S_TEAM}, 2")
        a(f"s_lshr_b32 s{S_A}, s{S_RANK}, 2")
        a(f"s_and_b32 s{S_B}, s{S_RANK}, 3")
        a(f"s_mul_i32 s{S_PSB}, s{S_A}, {P_SP}")
        a(f"s_lshl_b32 s{S_T0}, s{S_B}, 11")
        a(f"s_add_u32 s{S_PSB}, s{S_PSB}, s{S_T0}")
        a(f"s_lshl_b32 s{S_T0}, s{S_WAVE}, 9")
        a(f"s_add_u32 s{S_PSB}, s{S_PSB}, s{S_T0}")
        c = (128 ** -0.5) * math.log2(math.e)
        a(f"s_mov_b32 s{S_C}, {f32hex(c)}")
        a(f"s_mov_b32 s{S_C+1}, {f32hex(c)}")
        a(f"s_load_dwordx2 s[{S_X}:{S_X+1}], s[0:1], 0")
        a("s_waitcnt lgkmcnt(0)")

    def allreduce(self, s, t):
        a = self.a
        D = "row_mask:0xf bank_mask:0xf"
        a(f"v_add_f32_dpp v{t}, v{s}, v{s} quad_perm:[1,0,3,2] {D}")
        a(f"v_add_f32_dpp v{s}, v{t}, v{t} quad_perm:[2,3,0,1] {D}")
        a(f"v_add_f32_dpp v{t}, v{s}, v{s} row_half_mirror {D}")
        a(f"v_add_f32_dpp v{s}, v{t}, v{t} row_mirror {D}")
        for sw in ('16', '32'):
            a(f"v_mov_b32 v{t}, v{s}")
            a(f"v_permlane{sw}_swap_b32 v{t}, v{s}")
            a(f"v_add_f32 v{s}, v{s}, v{t}")

    def unpack8(self, dst, src):
        a = self.a
        for i in range(4):
            a(f"v_lshlrev_b32 v{dst+2*i}, 16, v{src+i}")
            a(f"v_and_b32 v{dst+2*i+1}, 0xffff0000, v{src+i}")

    def pack8(self, dst, src):
        a = self.a
        for i in range(4):
            a(f"v_cvt_pk_bf16_f32 v{dst+i}, v{src+2*i}, v{src+2*i+1}")

    def bf16r(self, r):
        a = self.a
        a(f"v_cvt_pk_bf16_f32 v{r}, v{r}, v{r}")
        a(f"v_and_b32 v{r}, 0xffff0000, v{r}")

    def layernorm(self, X, D, P, T):
        a = self.a
        a(f"v_pk_add_f32 {vr(D,2)}, {vr(X,2)}, {vr(X+2,2)}")
        a(f"v_pk_add_f32 {vr(D+2,2)}, {vr(X+4,2)}, {vr(X+6,2)}")
        a(f"v_pk_add_f32 {vr(D,2)}, {vr(D,2)}, {vr(D+2,2)}")
        a(f"v_add_f32 v{T}, v{D}, v{D+1}")
        self.allreduce(T, T + 1)
        a(f"v_mul_f32 v{T}, {f32hex(1.0/512)}, v{T}")
        for i in range(4):
            a(f"v_pk_add_f32 {vr(D+2*i,2)}, {vr(X+2*i,2)}, {vr(T,2)} op_sel_hi:[1,0] neg_lo:[0,1] neg_hi:[0,1]")
        a(f"v_pk_mul_f32 {vr(T+2,2)}, {vr(D,2)}, {vr(D,2)}")
        for i in range(1, 4):
            a(f"v_pk_fma_f32 {vr(T+2,2)}, {vr(D+2*i,2)}, {vr(D+2*i,2)}, {vr(T+2,2)}")
        a(f"v_add_f32 v{T+2}, v{T+2}, v{T+3}")
        self.allreduce(T + 2, T + 3)
        a(f"v_mul_f32 v{T+2}, {f32hex(1.0/512)}, v{T+2}")
        self.bf16r(T)
        self.bf16r(T + 2)
        a(f"v_add_f32 v{T+2}, {f32hex(1e-5)}, v{T+2}")
        self.bf16r(T + 2)
        a(f"v_sqrt_f32 v{T+2}, v{T+2}")
        self.bf16r(T + 2)
        a(f"v_rcp_f32 v{T+2}, v{T+2}")
        for i in range(4):
            a(f"v_pk_add_f32 {vr(D+2*i,2)}, {vr(X+2*i,2)}, {vr(T,2)} op_sel_hi:[1,0] neg_lo:[0,1] neg_hi:[0,1]")
        self.pack8(P, D)
        self.unpack8(D, P)
        for i in range(4):
            a(f"v_pk_mul_f32 {vr(D+2*i,2)}, {vr(D+2*i,2)}, {vr(T+2,2)} op_sel_hi:[1,0]")
        self.pack8(P, D)
        a(f"v_min_u32 v{P}, -2, v{P}")

    def x_init(self):
        a = self.a
        sc = self.sc
        a("v_and_b32 v16, 63, v0")
        a("v_lshlrev_b32 v1, 4, v16")
        a("v_lshlrev_b32 v2, 4, v0")
        for i in range(4):
            a(f"v_mov_b32 v{4+i}, -1")
            a(f"v_mov_b32 v{8+i}, 0")
        a(f"s_lshl_b32 s{S_T0}, s{S_RANK}, 13")
        a(f"s_add_u32 s{S_T0}, s{S_T0}, {X_OB}")
        a(f"v_add_u32 v3, s{S_T0}, v2")
        for slot in range(2):
            for hh in range(2):
                a(f"v_add_u32 v12, {slot*256*KB + hh*4096}, v3")
                a(f"global_store_dwordx4 v12, v[4:7], s[{S_TS}:{S_TS+1}]{sc}")
        a(f"s_mul_i32 s{S_T0}, s{S_RANK}, {P_BUF//32}")
        a(f"s_add_u32 s{S_T0}, s{S_T0}, {X_PART}")
        a(f"v_add_u32 v3, s{S_T0}, v2")
        for bq in range(2):
            for hh in range(5):
                a(f"v_add_u32 v12, {bq*P_BUF + min(hh*4096, P_BUF//32-4096)}, v3")
                a(f"global_store_dwordx4 v12, v[8:11], s[{S_TS}:{S_TS+1}]{sc}")
        a(f"v_and_b32 v12, 0xf0, v1")
        a(f"v_add_u32 v12, {X_DONE}, v12")
        a(f"global_store_dwordx4 v12, v[8:11], s[{S_TS}:{S_TS+1}]{sc}")
        for it in range(4):
            lsk = self.lab('ln0')
            a(f"s_add_u32 s{S_T2}, s{S_WAVE}, {4*it}")
            a(f"s_mul_i32 s{S_T0}, s{S_T2}, {NX}")
            a(f"s_add_u32 s{S_T0}, s{S_T0}, s{S_XT}")
            a(f"s_cmp_ge_u32 s{S_T0}, {NSEG}")
            a(f"s_cbranch_scc1 {lsk}")
            a(f"s_lshl_b32 s{S_T0}, s{S_T0}, 5")
            a(f"s_add_u32 s{S_T0}, s{S_T0}, s{S_RANK}")
            a(f"s_lshl_b32 s{S_T0}, s{S_T0}, 10")
            a(f"v_add_u32 v12, s{S_T0}, v1")
            a(f"global_load_dwordx4 v[16:19], v12, s[{S_X}:{S_X+1}]")
            a("s_waitcnt vmcnt(0)")
            self.unpack8(20, 16)
            self.layernorm(20, 28, 36, 40)
            a(f"s_lshl_b32 s{S_T0}, s{S_T2}, 5")
            a(f"s_add_u32 s{S_T0}, s{S_T0}, s{S_RANK}")
            a(f"s_lshl_b32 s{S_T0}, s{S_T0}, 10")
            if X_XN0:
                a(f"s_add_u32 s{S_T0}, s{S_T0}, {X_XN0}")
            a(f"v_add_u32 v12, s{S_T0}, v1")
            a(f"global_store_dwordx4 v12, v[36:39], s[{S_TS}:{S_TS+1}]{sc}")
            a.label(lsk)
        a("s_waitcnt vmcnt(0)")
        a("s_barrier")

    def poll_flags32(self, off_imm, seg_sreg, t):
        a = self.a
        a(f"s_lshl_b32 s{S_T0}, s{seg_sreg}, 7")
        a(f"s_add_u32 s{S_T0}, s{S_T0}, {off_imm}")
        a(f"v_bfe_u32 v{t}, v{L16}, 4, 5")
        a(f"v_lshlrev_b32 v{t}, 2, v{t}")
        a(f"v_add_u32 v{t}, s{S_T0}, v{t}")
        lp = self.lab('pf')
        a(f"s_mov_b32 s{S_SPIN}, {SPIN_MAX}")
        a.label(lp)
        a(f"global_load_dword v{t+1}, v{t}, s[{S_WS}:{S_WS+1}] sc1")
        self.spin_dec()
        a("s_waitcnt vmcnt(0)")
        a(f"v_cmp_eq_u32 vcc, 0, v{t+1}")
        a(f"s_cbranch_vccnz {lp}")

    def poll8(self, LD, base, check=True):
        a = self.a
        lp = self.lab('p8')
        t = LD + 32
        if check:
            a(f"s_mov_b32 s{S_SPIN}, {SPIN_MAX}")
            a.label(lp)
        for i in range(8):
            a(f"global_load_dwordx4 {vr(LD+4*i,4)}, v{GL0 if i < 4 else GL1}, s[{base}:{base+1}] offset:{1024*(i%4)} sc1")
        if check:
            self.spin_dec()
        a("s_waitcnt vmcnt(0)")
        if check:
            a(f"v_max3_u32 v{t}, v{LD}, v{LD+4}, v{LD+8}")
            a(f"v_max3_u32 v{t+1}, v{LD+12}, v{LD+16}, v{LD+20}")
            a(f"v_max3_u32 v{t}, v{t}, v{LD+24}, v{LD+28}")
            a(f"v_max_u32 v{t}, v{t}, v{t+1}")
            a(f"v_cmp_eq_u32 vcc, -1, v{t}")
            a(f"s_cbranch_vccnz {lp}")

    def gather_rows(self, LD, base, check=True):
        a = self.a
        self.poll8(LD, base, check)
        a("s_barrier")
        t = LD + 32
        for i in range(8):
            if i:
                a(f"v_xor_b32 v{t+(i&1)}, {16*i}, v{GW}")
                a(f"ds_write_b128 v{t+(i&1)}, {vr(LD+4*i,4)}")
            else:
                a(f"ds_write_b128 v{GW}, {vr(LD,4)}")
        a("s_waitcnt lgkmcnt(0)")
        a("s_barrier")

    def gather_frags(self, LD, base):
        a = self.a
        self.poll8(LD, base)
        a("s_barrier")
        t = LD + 32
        a(f"s_lshl_b32 s{S_T0}, s{S_WAVE}, 12")
        a(f"v_add_u32 v{t}, s{S_T0}, v{FL}")
        for i in range(8):
            a(f"ds_write_b128 v{t}, {vr(LD+4*i,4)} offset:{(i>>2)*16384 + (i&3)*1024}")
        a("s_waitcnt lgkmcnt(0)")
        a("s_barrier")

    def gemm_res(self, tiles, ACC, XF, WBUF, swz):
        a = self.a
        q = LdsQ(a)
        def xread(ks):
            b = XF + 8 * (ks % 3)
            ar_ = (FR0 + (ks & 3)) if swz else FL
            for rt in range(2):
                q.issue(f"ds_read_b128 {vr(b+4*rt,4)}, v{ar_} offset:{rt*16384+ks*1024}", ('x', ks))
        def wread(k64):
            for t in tiles:
                hk, hb = HX[('qkv', t, k64)]
                if hk == 'lds':
                    b = WBUF + 8 * (k64 & 1)
                    q.issue(f"ds_read_b128 {vr(b,4)}, v{WLA} offset:{hb*2048}", ('w', k64))
                    q.issue(f"ds_read_b128 {vr(b+4,4)}, v{WLA} offset:{hb*2048+1024}", ('w', k64))
        xread(0); xread(1)
        for ks in range(16):
            k64 = ks >> 1
            if ks + 2 < 16:
                xread(ks + 2)
            if (ks & 1) == 0 and k64 + 1 < 8:
                wread(k64 + 1)
            q.wait(('x', ks))
            q.wait(('w', k64))
            xb = XF + 8 * (ks % 3)
            for ti, t in enumerate(tiles):
                hk, hb = HX[('qkv', t, k64)]
                if hk == 'lds':
                    hk, hb = 'v', WBUF + 8 * (k64 & 1)
                w = rr(hk, hb + 4 * (ks & 1), 4)
                for rt in range(2):
                    d = vr(ACC + (ti * 2 + rt) * 4, 4)
                    c = '0' if ks == 0 else d
                    x = vr(xb + 4 * rt, 4)
                    if t in (4, 5, 6, 7):
                        a(f"v_mfma_f32_16x16x32_bf16 {d}, {x}, {w}, {c}")
                    else:
                        a(f"v_mfma_f32_16x16x32_bf16 {d}, {w}, {x}, {c}")

    def store_partials(self, ACC, tag, rts=(0, 1), accmap=None, off=0, regs=None):
        a = self.a
        for rt in rts:
            for ct in range(2):
                b = accmap(ct, rt) if accmap else ACC + (ct * 2 + rt) * 4
                a(f"v_and_or_b32 v{b}, v{b}, -2, s{tag}")
                a(f"global_store_dwordx4 v{(regs or (PSV, PSV1))[rt]}, {vr(b,4)}, s[{S_Q3}:{S_Q3+1}] offset:{256*ct+off}{self.sc}")

    def warm(self, base, off_sreg, nchunks, shift=7, t=W0 + 90):
        a = self.a
        a(f"v_lshlrev_b32 v{t}, {shift-4}, v{L16}")
        a(f"v_add_u32 v{t}, s{off_sreg}, v{t}")
        for c in range(nchunks):
            if c:
                a(f"v_add_u32 v{t}, {64 << shift}, v{t}")
            a(f"global_load_dword v0, v{t}, s[{base}:{base+1}] sc1")

    def warm_xn0(self):
        a = self.a
        l = self.lab('wx')
        a(f"s_add_u32 s{S_T0}, s{S_SA}, {self.CA*NX}")
        a(f"s_cmp_ge_u32 s{S_T0}, {NSEG}")
        a(f"s_cbranch_scc1 {l}")
        a(f"s_add_u32 s{S_T0}, s{S_K}, {self.CA}")
        a(f"s_lshl_b32 s{S_T0}, s{S_T0}, 15")
        a(f"s_lshl_b32 s{S_T1}, s{S_WAVE}, 13")
        a(f"s_add_u32 s{S_T0}, s{S_T0}, s{S_T1}")
        if X_XN0:
            a(f"s_add_u32 s{S_T0}, s{S_T0}, {X_XN0}")
        self.warm(S_TS, S_T0, 1)
        a.label(l)

    def warm_xn2(self):
        a = self.a
        l = self.lab('wy')
        a(f"s_sub_u32 s{S_T2}, s{S_SA}, {NX}")
        a(f"s_cmp_ge_u32 s{S_T2}, {NSEG}")
        a(f"s_cbranch_scc1 {l}")
        a(f"s_lshl_b32 s{S_T0}, s{S_T2}, 15")
        a(f"s_lshl_b32 s{S_T1}, s{S_WAVE}, 13")
        a(f"s_add_u32 s{S_T0}, s{S_T0}, s{S_T1}")
        a(f"s_add_u32 s{S_T0}, s{S_T0}, {XN2_OFF}")
        self.warm(S_WS, S_T0, 1)
        a(f"s_lshl_b32 s{S_T0}, s{S_T2}, 7")
        a(f"s_add_u32 s{S_T0}, s{S_T0}, {FX2_OFF}")
        a(f"v_mov_b32 v{W0+90}, s{S_T0}")
        a(f"global_load_dword v0, v{W0+90}, s[{S_WS}:{S_WS+1}] sc1")
        a.label(l)

    def warm_next(self):
        a = self.a
        for slot in range(2):
            l = self.lab('wn'); l3 = self.lab('wn3')
            a(f"s_add_u32 s{S_T2}, s{S_SA}, {NX}") if slot == 0 else a(f"s_sub_u32 s{S_T2}, s{S_SA}, {NX*self.DB - NX}")
            a(f"s_cmp_ge_u32 s{S_T2}, {NSEG}")
            a(f"s_cbranch_scc1 {l}")
            a(f"s_lshl_b32 s{S_T2}, s{S_T2}, 5")
            a(f"s_add_u32 s{S_T2}, s{S_T2}, s{S_RANK}")
            a(f"s_cmp_eq_u32 s{S_WAVE}, 3")
            a(f"s_cbranch_scc1 {l3}")
            a(f"s_lshl_b32 s{S_T0}, s{S_T2}, 14")
            a(f"s_lshl_b32 s{S_T1}, s{S_WAVE}, 13")
            a(f"s_add_u32 s{S_T0}, s{S_T0}, s{S_T1}")
            if KV_OFF[slot]:
                a(f"s_add_u32 s{S_T0}, s{S_T0}, {KV_OFF[slot]}")
            a(f"s_lshl_b32 s{S_T1}, s{S_T2}, 13")
            a(f"s_add_u32 s{S_T1}, s{S_T1}, {Q_OFF[slot]}")
            a(f"s_cmp_eq_u32 s{S_WAVE}, 2")
            a(f"s_cselect_b32 s{S_T0}, s{S_T1}, s{S_T0}")
            self.warm(S_WS, S_T0, 1)
            a(f"s_branch {l}")
            a.label(l3)
            a(f"s_lshl_b32 s{S_T0}, s{S_T2}, 12")
            a(f"s_add_u32 s{S_T0}, s{S_T0}, {KVM_OFF[slot]}")
            self.warm(S_WS, S_T0, 1, shift=6)
            a(f"s_lshl_b32 s{S_T0}, s{S_T2}, 2")
            a(f"s_add_u32 s{S_T0}, s{S_T0}, {FKVM_OFF[slot]}")
            a(f"v_mov_b32 v{W0+90}, s{S_T0}")
            a(f"global_load_dword v0, v{W0+90}, s[{S_WS}:{S_WS+1}] sc1")
            a(f"s_lshl_b32 s{S_T0}, s{S_T2}, 10")
            if slot == 0:
                self.warm(S_X, S_T0, 1, shift=4)
            else:
                a(f"s_add_u32 s{S_T0}, s{S_T0}, {X2_OFF}")
                self.warm(S_WS, S_T0, 1, shift=4)
            a.label(l)

    def st_qkv(self, layer, sbase, src_off_sgpr_or_imm, check, hook=None):
        a = self.a
        add64(a, S_Q0, sbase, src_off_sgpr_or_imm)
        self.gather_rows(W0, S_Q0, check)
        ACC, XF, WB = W0, W0 + 48, W0 + 72
        if layer == 0: self.stamp()
        if hook:
            hook()
        if layer == 0: self.stamp()
        self.gemm_res([0, 1, 2, 3, 4, 5], ACC, XF, WB, True)
        if layer == 0: self.stamp()
        a(f"s_lshl_b32 s{S_T0}, s{S_SEG}, 5")
        a(f"s_add_u32 s{S_T0}, s{S_T0}, s{S_RANK}")
        a(f"s_lshl_b32 s{S_T1}, s{S_T0}, 14")
        if KV_OFF[layer]:
            a(f"s_add_u32 s{S_T1}, s{S_T1}, {KV_OFF[layer]}")
        add64(a, S_Q0, S_WS, f"s{S_T1}")
        a(f"s_lshl_b32 s{S_T1}, s{S_T0}, 13")
        a(f"s_add_u32 s{S_T1}, s{S_T1}, {Q_OFF[layer]}")
        add64(a, S_Q1, S_WS, f"s{S_T1}")
        a(f"s_lshl_b32 s{S_T1}, s{S_T0}, 2")
        a(f"s_add_u32 s{S_T1}, s{S_T1}, {FKV_OFF[layer]}")
        add64(a, S_Q2, S_WS, f"s{S_T1}")
        A1, A2 = XF + 24 - 2, XF + 24 - 1
        P = XF
        a(f"s_lshl_b32 s{S_T0}, s{S_WAVE}, 10")
        a(f"v_add_u32 v{WB}, s{S_T0}, v{L16}")
        a(f"v_add_u32 v{WB+1}, 4096, v{WB}")
        a(f"s_lshl_b32 s{S_T0}, s{S_WAVE}, 11")
        a(f"s_add_u32 s{S_T0}, s{S_T0}, 8192")
        a(f"v_add_u32 v{WB+2}, s{S_T0}, v{L16}")
        acc = lambda ti, rt: ACC + (ti * 2 + rt) * 4
        n = 0
        for m, ptr, scx in ((1, S_Q0, ' sc1'), ):
            for rt in range(2):
                p = P + 4 * n; n += 1
                for tt in range(2):
                    b = acc(2 * m + tt, rt)
                    a(f"v_cvt_pk_bf16_f32 v{p+2*tt}, v{b}, v{b+1}")
                    a(f"v_cvt_pk_bf16_f32 v{p+2*tt+1}, v{b+2}, v{b+3}")
                a(f"global_store_dwordx4 v{WB+rt}, {vr(p,4)}, s[{ptr}:{ptr+1}]{scx}")
        for tt in range(2):
            p = P + 4 * n; n += 1
            for rt in range(2):
                b = acc(4 + tt, rt)
                a(f"v_cvt_pk_bf16_f32 v{p+2*rt}, v{b}, v{b+1}")
                a(f"v_cvt_pk_bf16_f32 v{p+2*rt+1}, v{b+2}, v{b+3}")
            a(f"global_store_dwordx4 v{WB+2}, {vr(p,4)}, s[{S_Q0}:{S_Q0+1}] offset:{1024*tt} sc1")
        for rt in range(2):
            p = P + 4 * n; n += 1
            for tt in range(2):
                b = acc(tt, rt)
                a(f"v_cvt_pk_bf16_f32 v{p+2*tt}, v{b}, v{b+1}")
                a(f"v_cvt_pk_bf16_f32 v{p+2*tt+1}, v{b+2}, v{b+3}")
            a(f"global_store_dwordx4 v{WB+rt}, {vr(p,4)}, s[{S_Q1}:{S_Q1+1}]")
        if layer == 0: self.stamp()
        a("s_waitcnt vmcnt(0)")
        if layer == 0: self.stamp()
        a("s_barrier")
        lsk = self.lab('fl')
        a(f"s_cmp_lg_u32 s{S_WAVE}, 0")
        a(f"s_cbranch_scc1 {lsk}")
        a(f"v_mov_b32 v{W0}, 1")
        a("s_mov_b64 exec, 1")
        a(f"global_store_dword v{ZERO}, v{W0}, s[{S_Q2}:{S_Q2+1}] sc1")
        a("s_mov_b64 exec, -1")
        a.label(lsk)

    def st_attn(self, slot):
        a = self.a
        layer = slot
        a(f"s_lshl_b32 s{S_T0}, s{S_SEG}, 5")
        a(f"s_add_u32 s{S_T0}, s{S_T0}, s{S_RANK}")
        a(f"s_lshl_b32 s{S_T1}, s{S_T0}, 14")
        if KV_OFF[layer]:
            a(f"s_add_u32 s{S_T1}, s{S_T1}, {KV_OFF[layer]}")
        add64(a, S_Q0, S_WS, f"s{S_T1}")
        a(f"s_lshl_b32 s{S_T1}, s{S_T0}, 13")
        a(f"s_add_u32 s{S_T1}, s{S_T1}, {Q_OFF[layer]}")
        add64(a, S_Q1, S_WS, f"s{S_T1}")
        a(f"s_lshl_b32 s{S_T1}, s{S_T0}, 2")
        a(f"s_add_u32 s{S_T1}, s{S_T1}, {FKVM_OFF[layer]}")
        add64(a, S_Q2, S_WS, f"s{S_T1}")
        a(f"s_lshl_b32 s{S_T1}, s{S_T0}, 12")
        a(f"s_add_u32 s{S_T1}, s{S_T1}, {KVM_OFF[layer]}")
        add64(a, S_Q3, S_WS, f"s{S_T1}")
        QF, KM, KX, S = W0, W0 + 16, W0 + 32, W0 + 64
        T = W0 + 76
        a("s_barrier")
        a(f"s_lshl_b32 s{S_T0}, s{S_WAVE}, 12")
        a(f"v_add_u32 v{T}, s{S_T0}, v{L16}")
        a(f"s_add_u32 m0, s{S_T0}, {L_FB}")
        for j in range(4):
            a(f"global_load_lds_dwordx4 v{T}, s[{S_Q0}:{S_Q0+1}] offset:{1024*j} sc1")
        a(f"s_lshl_b32 s{S_T0}, s{S_WAVE}, 11")
        a(f"v_add_u32 v{T+1}, s{S_T0}, v{L16}")
        a(f"s_add_u32 m0, s{S_T0}, {L_FB+16384}")
        for j in range(2):
            a(f"global_load_lds_dwordx4 v{T+1}, s[{S_Q1}:{S_Q1+1}] offset:{1024*j} sc1")
        LN, L15, G = T + 2, T + 3, T + 4
        QA, KMA, VXA, VMA, THR, NEG = T + 5, T + 6, T + 7, T + 8, T + 9, T + 10
        a(f"v_lshrrev_b32 v{LN}, 4, v{L16}")
        a(f"v_and_b32 v{L15}, 15, v{LN}")
        a(f"v_lshrrev_b32 v{G}, 4, v{LN}")
        a(f"s_and_b32 s{S_T0}, s{S_WAVE}, 1")
        a(f"s_lshl_b32 s{S_T1}, s{S_T0}, 12")
        a(f"v_add_u32 v{QA}, s{S_T1}, v{FL}")
        a(f"s_lshl_b32 s{S_T1}, s{S_T0}, 4")
        a(f"v_add_u32 v{THR}, s{S_T1}, v{L15}")
        a(f"v_lshlrev_b32 v{T+11}, 2, v{G}")
        a(f"v_sub_u32 v{THR}, v{THR}, v{T+11}")
        a(f"v_and_b32 v{KMA}, 7, v{LN}")
        a(f"v_lshlrev_b32 v{KMA}, 4, v{KMA}")
        a(f"v_lshl_add_u32 v{KMA}, v{G}, 7, v{KMA}")
        a(f"v_add_u32 v{KMA}, {L_FB+24576}, v{KMA}")
        a(f"v_lshrrev_b32 v{VXA}, 3, v{L15}")
        a(f"v_lshlrev_b32 v{VXA}, 10, v{VXA}")
        a(f"v_lshl_add_u32 v{VXA}, v{G}, 8, v{VXA}")
        a(f"v_bfe_u32 v{T+11}, v{L15}, 2, 1")
        a(f"v_lshl_add_u32 v{VXA}, v{T+11}, 7, v{VXA}")
        a(f"v_and_b32 v{T+11}, 3, v{L15}")
        a(f"v_lshl_add_u32 v{VXA}, v{T+11}, 4, v{VXA}")
        a(f"s_lshr_b32 s{S_T1}, s{S_WAVE}, 1")
        a(f"s_lshl_b32 s{S_T2}, s{S_T1}, 12")
        a(f"s_add_u32 s{S_T2}, s{S_T2}, {L_FB+8192}")
        a(f"v_add_u32 v{VXA}, s{S_T2}, v{VXA}")
        a(f"v_lshrrev_b32 v{VMA}, 2, v{L15}")
        a(f"v_lshlrev_b32 v{VMA}, 7, v{VMA}")
        a(f"v_lshl_add_u32 v{VMA}, v{T+11}, 4, v{VMA}")
        a(f"v_and_b32 v{T+11}, 1, v{G}")
        a(f"v_lshl_add_u32 v{VMA}, v{T+11}, 3, v{VMA}")
        a(f"s_lshl_b32 s{S_T2}, s{S_T1}, 10")
        a(f"s_add_u32 s{S_T2}, s{S_T2}, {L_FB+26624}")
        a(f"v_add_u32 v{VMA}, s{S_T2}, v{VMA}")
        a(f"v_mov_b32 v{NEG}, 0xff800000")
        a(f"v_cmp_gt_u32 vcc, 2, v{G}")
        for i in range(4):
            a(f"v_cndmask_b32 v{S+i}, v{NEG}, v{ZERO}, vcc")
        for kt in range(2):
            for i in range(4):
                a(f"v_cmp_le_i32 vcc, {16*kt+i}, v{THR}")
                a(f"v_cndmask_b32 v{S+4+4*kt+i}, v{NEG}, v{ZERO}, vcc")
        lp = self.lab('fw')
        a(f"s_mov_b32 s{S_SPIN}, {SPIN_MAX}")
        a.label(lp)
        a(f"global_load_dword v{T+11}, v{ZERO}, s[{S_Q2}:{S_Q2+1}] sc1")
        self.spin_dec()
        a("s_waitcnt vmcnt(0)")
        a(f"v_readfirstlane_b32 s{S_T0}, v{T+11}")
        a(f"s_cmp_eq_u32 s{S_T0}, 0")
        a(f"s_cbranch_scc1 {lp}")
        a(f"s_lshl_b32 s{S_T0}, s{S_WAVE}, 10")
        a(f"v_add_u32 v{T}, s{S_T0}, v{L16}")
        a(f"s_add_u32 m0, s{S_T0}, {L_FB+24576}")
        a(f"global_load_lds_dwordx4 v{T}, s[{S_Q3}:{S_Q3+1}] sc1")
        a("s_waitcnt vmcnt(0)")
        a("s_barrier")
        q = LdsQ(a)
        for ks in range(4):
            q.issue(f"ds_read_b128 {vr(QF+4*ks,4)}, v{QA} offset:{16384+1024*ks}", ks)
            q.issue(f"ds_read_b128 {vr(KM+4*ks,4)}, v{KMA} offset:{512*ks}", ks)
            q.issue(f"ds_read_b128 {vr(KX+4*ks,4)}, v{FL} offset:{1024*ks}", ks)
            q.issue(f"ds_read_b128 {vr(KX+16+4*ks,4)}, v{FL} offset:{4096+1024*ks}", ks)
        for ks in range(4):
            q.wait(ks)
            a(f"v_mfma_f32_16x16x32_bf16 {vr(S,4)}, {vr(KM+4*ks,4)}, {vr(QF+4*ks,4)}, {vr(S,4)}")
            a(f"v_mfma_f32_16x16x32_bf16 {vr(S+4,4)}, {vr(KX+4*ks,4)}, {vr(QF+4*ks,4)}, {vr(S+4,4)}")
            a(f"v_mfma_f32_16x16x32_bf16 {vr(S+8,4)}, {vr(KX+16+4*ks,4)}, {vr(QF+4*ks,4)}, {vr(S+8,4)}")
        VX, VM = W0, W0 + 16
        a("s_nop 7")
        for kl in range(2):
            for u in range(2):
                a(f"ds_read_b128 {vr(VX+4*(2*kl+u),4)}, v{VXA} offset:{kl*2048+u*64}")
        for kl in range(2):
            for u in range(2):
                a(f"ds_read_b64 {vr(VM+2*(2*kl+u),2)}, v{VMA} offset:{kl*512+u*64}")
        M = T
        a(f"v_max3_f32 v{M}, v{S}, v{S+1}, v{S+2}")
        a(f"v_max3_f32 v{M+1}, v{S+3}, v{S+4}, v{S+5}")
        a(f"v_max3_f32 v{M+2}, v{S+6}, v{S+7}, v{S+8}")
        a(f"v_max3_f32 v{M+3}, v{S+9}, v{S+10}, v{S+11}")
        a(f"v_max3_f32 v{M}, v{M}, v{M+1}, v{M+2}")
        a(f"v_max_f32 v{M}, v{M}, v{M+3}")
        for sw in ('16', '32'):
            a(f"v_mov_b32 v{M+1}, v{M}")
            a(f"v_permlane{sw}_swap_b32 v{M+1}, v{M}")
            a(f"v_max_f32 v{M}, v{M}, v{M+1}")
        a(f"v_mul_f32 v{M}, s{S_C}, v{M}")
        for i in range(6):
            a(f"v_pk_fma_f32 {vr(S+2*i,2)}, {vr(S+2*i,2)}, s[{S_C}:{S_C+1}], {vr(M,2)} op_sel_hi:[1,1,0] neg_lo:[0,0,1] neg_hi:[0,0,1]")
        for i in range(12):
            a(f"v_exp_f32 v{S+i}, v{S+i}")
        a(f"v_pk_add_f32 {vr(M,2)}, {vr(S,2)}, {vr(S+2,2)}")
        a(f"v_pk_add_f32 {vr(M+2,2)}, {vr(S+4,2)}, {vr(S+6,2)}")
        a(f"v_pk_add_f32 {vr(M+4,2)}, {vr(S+8,2)}, {vr(S+10,2)}")
        a(f"v_pk_add_f32 {vr(M,2)}, {vr(M,2)}, {vr(M+2,2)}")
        a(f"v_pk_add_f32 {vr(M,2)}, {vr(M,2)}, {vr(M+4,2)}")
        a(f"v_add_f32 v{M}, v{M}, v{M+1}")
        for sw in ('16', '32'):
            a(f"v_mov_b32 v{M+1}, v{M}")
            a(f"v_permlane{sw}_swap_b32 v{M+1}, v{M}")
            a(f"v_add_f32 v{M}, v{M}, v{M+1}")
        a(f"v_rcp_f32 v{M}, v{M}")
        for i in range(6):
            a(f"v_pk_mul_f32 {vr(S+2*i,2)}, {vr(S+2*i,2)}, {vr(M,2)} op_sel_hi:[1,0]")
        PM, PX = M + 2, M + 4
        a(f"v_cvt_pk_bf16_f32 v{PM}, v{S}, v{S+1}")
        a(f"v_cvt_pk_bf16_f32 v{PM+1}, v{S+2}, v{S+3}")
        for i in range(4):
            a(f"v_cvt_pk_bf16_f32 v{PX+i}, v{S+4+2*i}, v{S+5+2*i}")
        a("s_waitcnt lgkmcnt(0)")
        O = KX
        for j in range(4):
            a(f"v_mfma_f32_16x16x32_bf16 {vr(O+4*j,4)}, {vr(VX+4*j,4)}, {vr(PX,4)}, 0")
        for j in range(4):
            a(f"v_mfma_f32_16x16x16_bf16 {vr(O+4*j,4)}, {vr(VM+2*j,2)}, {vr(PM,2)}, {vr(O+4*j,4)}")
        a(f"s_lshl_b32 s{S_T0}, s{S_RANK}, 13")
        a(f"s_and_b32 s{S_T1}, s{S_WAVE}, 1")
        a(f"s_lshl_b32 s{S_T1}, s{S_T1}, 12")
        a(f"s_add_u32 s{S_T0}, s{S_T0}, s{S_T1}")
        a(f"s_lshr_b32 s{S_T1}, s{S_WAVE}, 1")
        a(f"s_lshl_b32 s{S_T1}, s{S_T1}, 11")
        a(f"s_add_u32 s{S_T0}, s{S_T0}, s{S_T1}")
        a(f"s_add_u32 s{S_T0}, s{S_T0}, {X_OB + slot*256*KB}")
        add64(a, S_Q0, S_TS, f"s{S_T0}")
        OP = KX + 16
        for kl in range(2):
            p = OP + 4 * kl
            for u in range(2):
                b = O + 4 * (2 * kl + u)
                a(f"v_cvt_pk_bf16_f32 v{p+2*u}, v{b}, v{b+1}")
                a(f"v_cvt_pk_bf16_f32 v{p+2*u+1}, v{b+2}, v{b+3}")
            a(f"v_min_u32 v{p}, -2, v{p}")
            a(f"global_store_dwordx4 v{L16}, {vr(p,4)}, s[{S_Q0}:{S_Q0+1}] offset:{1024*kl}{self.sc}")

    def st_wo(self, slot, hook=None):
        a = self.a
        a(f"s_lshl_b32 s{S_T0}, s{S_A}, 15")
        a(f"s_add_u32 s{S_T0}, s{S_T0}, {X_OB + slot*256*KB}")
        add64(a, S_Q0, S_TS, f"s{S_T0}")
        add64(a, S_Q3, S_TS, X_PART + slot * P_BUF)
        self.gather_frags(W0, S_Q0)
        ACC, XF, WB = W0, W0 + 48, W0 + 72
        if hook:
            hook()
        self.gemm_res([6, 7], ACC, XF, WB, False)
        self.store_partials(ACC, S_TAG)

    def reduce_core(self, LD, T, tag_sreg):
        a = self.a
        for j in range(1, 8):
            a(f"v_add_u32 v{T+j}, {P_SP*j}, v{L16}")
        a(f"s_sub_u32 s{S_T2}, 0, s{tag_sreg}")
        lp = self.lab('rp')
        a(f"s_mov_b32 s{S_SPIN}, {SPIN_MAX}")
        a.label(lp)
        for i in range(16):
            va = L16 if i < 2 else T + (i >> 1)
            a(f"global_load_dwordx4 {vr(LD+4*i,4)}, v{va}, s[{S_Q0}:{S_Q0+1}] offset:{1024*(i&1)} sc1")
        self.spin_dec()
        C = LD + 80
        a(f"v_lshrrev_b32 v{T}, 9, v{L16}")
        a(f"v_lshlrev_b32 v{T}, 7, v{T}")
        a(f"v_bfe_u32 v{C}, v{L16}, 6, 2")
        a(f"v_lshl_add_u32 v{T}, v{C}, 5, v{T}")
        a(f"v_bfe_u32 v{C}, v{L16}, 8, 1")
        a(f"v_lshl_add_u32 v{T}, v{C}, 4, v{T}")
        a(f"v_bfe_u32 v{C}, v{L16}, 4, 2")
        a(f"v_lshl_add_u32 v{T}, v{C}, 2, v{T}")
        a(f"s_lshl_b32 s{S_T0}, s{S_WAVE}, 9")
        a(f"s_add_u32 s{S_T0}, s{S_T0}, {L_RX}")
        a(f"v_add_u32 v{T}, s{S_T0}, v{T}")
        a(f"s_lshl_b32 s{S_T0}, s{S_WAVE}, 11")
        a(f"s_add_u32 s{S_T0}, s{S_T0}, {L_RX}")
        a(f"v_lshl_add_u32 v{T+8}, v{L16}, 1, s{S_T0}")
        a("s_waitcnt vmcnt(0)")
        tt = 0
        for idx in range(8):
            x, y, z = (idx >> 2) & 1, (idx >> 1) & 1, idx & 1
            if (x ^ z) | (y ^ z):
                tt |= 1 << idx
        for i in range(8):
            a(f"v_bitop3_b32 v{C+i}, v{LD+8*i}, v{LD+8*i+4}, s{S_T2} bitop3:0x{tt:02x}")
        a(f"v_or3_b32 v{C}, v{C}, v{C+1}, v{C+2}")
        a(f"v_or3_b32 v{C+3}, v{C+3}, v{C+4}, v{C+5}")
        a(f"v_or3_b32 v{C}, v{C}, v{C+6}, v{C+7}")
        a(f"v_or_b32 v{C}, v{C}, v{C+3}")
        a(f"v_and_b32 v{C}, 1, v{C}")
        a(f"v_cmp_ne_u32 vcc, 0, v{C}")
        a(f"s_cbranch_vccnz {lp}")
        for step in (4, 2, 1):
            for s_ in range(step):
                for e in range(4):
                    a(f"v_pk_add_f32 {vr(LD+8*s_+2*e,2)}, {vr(LD+8*s_+2*e,2)}, {vr(LD+8*(s_+step)+2*e,2)}")
        for i in range(4):
            a(f"ds_write2st64_b32 v{T}, v{LD+i}, v{LD+4+i} offset0:{8*i} offset1:{8*i+1}")
        a("s_waitcnt lgkmcnt(0)")
        a("s_barrier")
        a(f"ds_read_b128 {vr(LD,4)}, v{T+8}")
        a(f"ds_read_b128 {vr(LD+4,4)}, v{T+8} offset:16")
        a("s_waitcnt lgkmcnt(0)")

    def st_reduce(self, slot, seg_sreg):
        a = self.a
        sc = self.sc
        lsk = self.lab('rd')
        a(f"s_lshr_b32 s{S_T0}, s{S_RANK}, 3")
        a(f"s_cmp_lg_u32 s{S_T0}, {slot}")
        a(f"s_cbranch_scc1 {lsk}")
        a(f"s_cmp_ge_u32 s{seg_sreg}, {NSEG}")
        a(f"s_cbranch_scc1 {lsk}")
        LD = W0
        T = W0 + 64
        XR = W0 + 76
        a(f"s_and_b32 s{S_T1}, s{S_RANK}, 7")
        a(f"s_mul_i32 s{S_T0}, s{S_T1}, {P_RG}")
        a(f"s_lshl_b32 s{S_T2}, s{S_WAVE}, 11")
        a(f"s_add_u32 s{S_T0}, s{S_T0}, s{S_T2}")
        a(f"s_add_u32 s{S_T0}, s{S_T0}, {X_PART + slot*P_BUF}")
        add64(a, S_Q0, S_TS, f"s{S_T0}")
        a(f"s_lshl_b32 s{S_T1}, s{S_T1}, 2")
        a(f"s_add_u32 s{S_T1}, s{S_T1}, s{S_WAVE}")
        a(f"s_lshl_b32 s{S_T0}, s{seg_sreg}, 5")
        a(f"s_add_u32 s{S_T1}, s{S_T1}, s{S_T0}")
        a(f"s_lshl_b32 s{S_T0}, s{S_T1}, 10")
        if slot == 0:
            add64(a, S_Q1, S_X, f"s{S_T0}")
            a(f"global_load_dwordx4 {vr(XR,4)}, v{L16}, s[{S_Q1}:{S_Q1+1}]")
            add64(a, S_Q1, S_WS, f"s{S_T0}")
        else:
            add64(a, S_Q1, S_WS, f"s{S_T0}")
            a(f"v_add_u32 v{T}, {X2_OFF}, v{L16}")
            a(f"global_load_dwordx4 {vr(XR,4)}, v{T}, s[{S_Q1}:{S_Q1+1}] sc1")
        a(f"s_lshl_b32 s{S_T1}, s{S_T1}, 2")
        a(f"s_add_u32 s{S_T1}, s{S_T1}, {FX1_OFF[slot]}")
        add64(a, S_Q2, S_WS, f"s{S_T1}")
        self.reduce_core(LD, T, S_TAG)
        l0 = self.lab('dn')
        a(f"s_cmp_lg_u32 s{S_WAVE}, 0")
        a(f"s_cbranch_scc1 {l0}")
        a(f"s_lshl_b32 s{S_T0}, s{S_RANK}, 2")
        a(f"s_add_u32 s{S_T0}, s{S_T0}, {X_DONE}")
        a(f"v_mov_b32 v{T+3}, s{S_T0}")
        a(f"s_add_u32 s{S_T0}, s{S_K}, 1")
        a(f"v_mov_b32 v{T+4}, s{S_T0}")
        a("s_mov_b64 exec, 1")
        a(f"global_store_dword v{T+3}, v{T+4}, s[{S_TS}:{S_TS+1}]{sc}")
        a("s_mov_b64 exec, -1")
        a.label(l0)
        Y = LD
        X = LD + 8; D = LD + 16; P = LD + 24; TT = LD + 28
        self.pack8(P, Y)
        self.unpack8(Y, P)
        self.unpack8(X, XR)
        for e in range(4):
            a(f"v_pk_add_f32 {vr(X+2*e,2)}, {vr(X+2*e,2)}, {vr(Y+2*e,2)}")
        XP = LD + 32
        self.pack8(XP, X)
        a(f"v_add_u32 v{T}, {X1_OFF[slot]}, v{L16}")
        a(f"global_store_dwordx4 v{T}, {vr(XP,4)}, s[{S_Q1}:{S_Q1+1}] sc1")
        self.unpack8(X, XP)
        self.layernorm(X, D, P, TT)
        a(f"v_add_u32 v{T+2}, {XN1_OFF[slot]}, v{L16}")
        a(f"global_store_dwordx4 v{T+2}, {vr(P,4)}, s[{S_Q1}:{S_Q1+1}] sc1")
        a(f"v_mov_b32 v{T+4}, 1")
        a("s_waitcnt vmcnt(0)")
        a("s_mov_b64 exec, 1")
        a(f"global_store_dword v{ZERO}, v{T+4}, s[{S_Q2}:{S_Q2+1}] sc1")
        a("s_mov_b64 exec, -1")
        a.label(lsk)

    def st_wend(self):
        a = self.a
        sc = self.sc
        T = W0
        lsk = self.lab('we')
        a(f"s_min_u32 s{S_T0}, s{S_SA}, s{S_SB}")
        a(f"s_cmp_ge_u32 s{S_T0}, {NSEG}")
        a(f"s_cbranch_scc1 {lsk}")
        a(f"s_add_u32 s{S_T2}, s{S_K}, 1")
        a(f"s_cmp_lt_u32 s{S_SA}, {NSEG}")
        a(f"s_cselect_b32 s{S_T0}, s{S_T2}, 0")
        a(f"s_cmp_lt_u32 s{S_SB}, {NSEG}")
        a(f"s_cselect_b32 s{S_T1}, s{S_T2}, 0")
        a(f"v_mov_b32 v{T+2}, s{S_T0}")
        a(f"v_mov_b32 v{T+3}, s{S_T1}")
        a(f"v_and_b32 v{T}, 0x80, v{L16}")
        a(f"v_cmp_ne_u32 vcc, 0, v{T}")
        a(f"v_cndmask_b32 v{T+2}, v{T+2}, v{T+3}, vcc")
        a(f"v_bfe_u32 v{T}, v{L16}, 4, 4")
        a(f"v_lshlrev_b32 v{T}, 2, v{T}")
        a(f"v_add_u32 v{T}, {X_DONE}, v{T}")
        for i in range(4):
            a(f"v_mov_b32 v{T+4+i}, -1")
        lp = self.lab('wp')
        a(f"s_mov_b32 s{S_SPIN}, {SPIN_MAX}")
        a.label(lp)
        a(f"global_load_dword v{T+1}, v{T}, s[{S_TS}:{S_TS+1}] sc1")
        self.spin_dec()
        a("s_waitcnt vmcnt(0)")
        a(f"v_cmp_lt_u32 vcc, v{T+1}, v{T+2}")
        a(f"s_cbranch_vccnz {lp}")
        a(f"s_lshl_b32 s{S_T0}, s{S_RANK}, 13")
        a(f"s_and_b32 s{S_T1}, s{S_WAVE}, 1")
        a(f"s_lshl_b32 s{S_T1}, s{S_T1}, 12")
        a(f"s_add_u32 s{S_T0}, s{S_T0}, s{S_T1}")
        a(f"s_lshr_b32 s{S_T1}, s{S_WAVE}, 1")
        a(f"s_lshl_b32 s{S_T1}, s{S_T1}, 11")
        a(f"s_add_u32 s{S_T0}, s{S_T0}, s{S_T1}")
        a(f"s_add_u32 s{S_T0}, s{S_T0}, {X_OB}")
        add64(a, S_Q0, S_TS, f"s{S_T0}")
        a(f"v_add_u32 v{T}, {256*KB}, v{L16}")
        for kl in range(2):
            a(f"global_store_dwordx4 v{L16}, {vr(T+4,4)}, s[{S_Q0}:{S_Q0+1}] offset:{1024*kl}{sc}")
            a(f"global_store_dwordx4 v{T}, {vr(T+4,4)}, s[{S_Q0}:{S_Q0+1}] offset:{1024*kl}{sc}")
        a.label(lsk)

    def x_main(self):
        a = self.a
        DB, CA = self.DB, self.CA
        if self.stamps:
            a(f"s_lshl_b32 s{S_T0}, s{S_RANK}, 13")
            a(f"s_lshl_b32 s{S_T1}, s{S_TEAM}, 18")
            a(f"s_add_u32 s{S_T0}, s{S_T0}, s{S_T1}")
            a(f"s_add_u32 s{S_T0}, s{S_T0}, {STAMP_OFF}")
            add64(a, S_ST, S_WS, f"s{S_T0}")
        a(f"s_mov_b32 s{S_K}, {-CA}")
        lloop = self.lab('xw')
        a.label(lloop)
        self.nstamp = 0
        a(f"s_mul_i32 s{S_SA}, s{S_K}, {NX}")
        a(f"s_add_u32 s{S_SA}, s{S_SA}, s{S_XT}")
        a(f"s_sub_u32 s{S_SB}, s{S_SA}, {NX*DB}")
        assert DB == 2
        a(f"s_and_b32 s{S_TAG}, s{S_K}, 1")
        a(f"s_xor_b32 s{S_TAG}, s{S_TAG}, 1")
        def guarded(sreg, fn):
            l = self.lab('g')
            a(f"s_cmp_ge_u32 s{sreg}, {NSEG}")
            a(f"s_cbranch_scc1 {l}")
            a(f"s_mov_b32 s{S_SEG}, s{sreg}")
            fn()
            a.label(l)
        self.stamp()
        guarded(S_SA, lambda: self.st_attn(0)); self.stamp()
        guarded(S_SB, lambda: self.st_attn(1)); self.stamp()
        guarded(S_SA, lambda: self.st_wo(0)); self.stamp()
        guarded(S_SB, lambda: self.st_wo(1, self.warm_xn2)); self.stamp()
        self.st_reduce(0, S_SA)
        self.st_reduce(1, S_SB); self.stamp()
        a(f"s_sub_u32 s{S_SC}, s{S_SA}, {NX}")
        def q1st():
            self.poll_flags32(FX2_OFF, S_SEG, W0)
            a(f"s_lshl_b32 s{S_T2}, s{S_SEG}, 15")
            a(f"s_add_u32 s{S_T2}, s{S_T2}, {XN2_OFF}")
            self.st_qkv(1, S_WS, f"s{S_T2}", False, self.warm_xn0)
        guarded(S_SC, q1st); self.stamp()
        a(f"s_add_u32 s{S_SC}, s{S_SA}, {CA*NX}")
        def cst():
            a(f"s_add_u32 s{S_T2}, s{S_K}, {CA}")
            a(f"s_lshl_b32 s{S_T2}, s{S_T2}, 15")
            if X_XN0:
                a(f"s_add_u32 s{S_T2}, s{S_T2}, {X_XN0}")
            self.st_qkv(0, S_TS, f"s{S_T2}", False, self.warm_next)
        guarded(S_SC, cst)
        lw = self.lab('wnx')
        a(f"s_cmp_lt_u32 s{S_SC}, {NSEG}")
        a(f"s_cbranch_scc1 {lw}")
        self.warm_next()
        a.label(lw)
        self.st_wend()
        self.stamp()
        if self.stamps:
            ls = self.lab('ns')
            a(f"s_cmp_lg_u32 s{S_WAVE}, 3")
            a(f"s_cbranch_scc1 {ls}")
            self.flush_stamps(W0, W0 + 1)
            a.label(ls)
        a(f"s_add_u32 s{S_K}, s{S_K}, 1")
        a(f"s_cmp_lt_i32 s{S_K}, {NKW + DB}")
        lend = self.lab('xe')
        a(f"s_cbranch_scc0 {lend}")
        a(f"s_branch {lloop}")
        a.label(lend)
```

```python
MB = 1 << 20
KB = 1024
NSEG = 64
H = 32
NX = 5
NKW = 13
KV_OFF = [0 * MB, 32 * MB]
Q_OFF = [64 * MB, 80 * MB]
KVM_OFF = [96 * MB, 104 * MB]
FLAG_OFF = 112 * MB
FKV_OFF = [FLAG_OFF, FLAG_OFF + 8192]
FKVM_OFF = [FLAG_OFF + 16384, FLAG_OFF + 24576]
FX1_OFF = [FLAG_OFF + 32768, FLAG_OFF + 40960]
FX2_OFF = FLAG_OFF + 49152
FLAG_BYTES = 65536
XN1_OFF = [114 * MB, 116 * MB]
X1_OFF = [118 * MB, 120 * MB]
XN2_OFF = 122 * MB
X2_OFF = 124 * MB
STAMP_OFF = 126 * MB
TEAM_OFF = 128 * MB
TEAM_BYTES = 8 * MB
R_MEMB = 0
R_PART = 65536
X_XN0 = 0
X_OB = 1024 * KB
X_PART = 2048 * KB
F_PART = 0
```

```python
import sys
from gcommon import *
from gx2 import GenX, HX
from gr import GenR, HOMES as HR
from gf import GenF

TEAM_OFF_SAFE = 192 * MB
OUT = 'interleave_layers__memory_aug_recurrent_mem_tr__dense_activation_gelu__prompt.s'

class Gen(GenBase, GenX, GenR, GenF):
    DB = 2
    CA = 2
    def arrive(self, off_text):
        a = self.a
        lskip = self.lab('arr')
        a(f"s_cmp_lg_u32 s{S_WAVE}, 0")
        a(f"s_cbranch_scc1 {lskip}")
        self.dbg_atomic(off_text, False)
        a.label(lskip)

    def prologue(self):
        a = self.a
        a(f"s_cmp_ge_u32 s2, 256")
        a("s_cbranch_scc1 L_end0")
        a(f"s_load_dwordx2 s[{S_WS}:{S_WS+1}], s[0:1], 112")
        a(f"s_load_dwordx2 s[{S_DBG}:{S_DBG+1}], s[0:1], 104")
        a(f"s_getreg_b32 s{S_TEAM}, hwreg(HW_REG_XCC_ID)")
        a(f"s_and_b32 s{S_TEAM}, s{S_TEAM}, 7")
        a("v_lshrrev_b32 v1, 6, v0")
        a(f"v_readfirstlane_b32 s{S_WAVE}, v1")
        a("s_waitcnt lgkmcnt(0)")
        l1 = self.lab('reg')
        a(f"s_cmp_lg_u32 s{S_WAVE}, 0")
        a(f"s_cbranch_scc1 {l1}")
        a(f"s_lshl_b32 s{S_T0}, s2, 8")
        a(f"s_add_u32 s{S_T0}, s{S_T0}, {FLAG_OFF}")
        a("v_lshlrev_b32 v1, 2, v0")
        a(f"v_add_u32 v1, s{S_T0}, v1")
        a("v_mov_b32 v2, 0")
        a(f"global_store_dword v1, v2, s[{S_WS}:{S_WS+1}] sc1")
        a("s_waitcnt vmcnt(0)")
        a(f"s_lshl_b32 s{S_T0}, s{S_TEAM}, 2")
        self.dbg_atomic(f"s{S_T0}", True)
        a("s_waitcnt vmcnt(0)")
        a("v_mov_b32 v4, v3")
        self.dbg_atomic("32", True)
        a("s_waitcnt vmcnt(0)")
        a("s_mov_b64 exec, 1")
        a(f"v_mov_b32 v1, {L_RED}")
        a("ds_write2_b32 v1, v4, v3 offset0:0 offset1:1")
        a("s_waitcnt lgkmcnt(0)")
        a("s_mov_b64 exec, -1")
        a.label(l1)
        a("s_barrier")
        a(f"v_mov_b32 v1, {L_RED}")
        a("ds_read_b64 v[2:3], v1")
        a("s_waitcnt lgkmcnt(0)")
        a(f"v_readfirstlane_b32 s{S_RANK}, v2")
        a(f"v_readfirstlane_b32 s{S_GRANK}, v3")
        a("s_barrier")
        a("s_branch L_start")
        a.label("L_end0")
        a("s_endpgm")
        a.label("L_start")

    def team_base(self, off):
        a = self.a
        a(f"s_lshl_b32 s{S_T0}, s{S_TEAM}, 23")
        a(f"s_add_u32 s{S_T0}, s{S_T0}, {off}")
        add64(a, S_TS, S_WS, f"s{S_T0}")

    def wait_global(self, lsafe):
        a = self.a
        l1 = self.lab('wg'); lp = self.lab('wgp')
        a(f"s_cmp_lg_u32 s{S_WAVE}, 0")
        a(f"s_cbranch_scc1 {l1}")
        a("v_and_b32 v16, 15, v0")
        a("v_lshlrev_b32 v16, 2, v16")
        a("v_mov_b32 v17, 0")
        a(f"s_mov_b32 s{S_SPIN}, {SPIN_MAX}")
        a("s_mov_b64 exec, 0x1ff")
        a.label(lp)
        a(f"global_atomic_add v18, v16, v17, s[{S_DBG}:{S_DBG+1}] sc0 sc1")
        a("s_waitcnt vmcnt(0)")
        a(f"v_readlane_b32 s{S_T0}, v18, 8")
        self.spin_dec()
        a(f"s_cmp_lt_u32 s{S_T0}, 256")
        a(f"s_cbranch_scc1 {lp}")
        a(f"global_atomic_add v18, v16, v17, s[{S_DBG}:{S_DBG+1}] sc0 sc1")
        a("s_waitcnt vmcnt(0)")
        a("s_mov_b64 exec, 0xff")
        a("v_cmp_ne_u32 vcc, 32, v18")
        a("s_mov_b64 exec, -1")
        a("v_mov_b32 v18, vcc_lo")
        if self.force_safe:
            a("v_mov_b32 v18, 1")
        a(f"v_mov_b32 v16, {L_RED}")
        a("ds_write_b32 v16, v18")
        a("s_waitcnt lgkmcnt(0)")
        a.label(l1)
        a("s_barrier")
        a(f"v_mov_b32 v16, {L_RED}")
        a("ds_read_b32 v18, v16")
        a("s_waitcnt lgkmcnt(0)")
        a(f"v_readfirstlane_b32 s{S_T0}, v18")
        a("s_barrier")
        a(f"s_cmp_lg_u32 s{S_T0}, 0")
        a(f"s_cbranch_scc1 {lsafe}")

    def role(self, kind, safe):
        a = self.a
        cnt = 96 if safe else 64
        self.end = self.lab('end')
        if kind == 'r':
            self.r_init()
        elif kind == 'x':
            self.x_sconsts()
            self.x_init()
        else:
            self.f_sconsts()
            self.f_init()
        a(f"s_lshl_b32 s{S_T0}, s{S_TEAM}, 2")
        a(f"s_add_u32 s{S_T0}, s{S_T0}, {cnt}")
        self.arrive(f"s{S_T0}")
        if kind == 'f':
            self.x_consts()
            self.f_load_weights()
        else:
            self.load_weights(kind, HR if kind == 'r' else HX)
        if not safe:
            self.wait_global('L_safe_far_' + kind)
        if kind == 'r':
            self.r_consts()
        elif kind == 'x':
            self.x_consts()
        a(f"s_lshl_b32 s{S_T1}, s{S_TEAM}, 2")
        a(f"s_add_u32 s{S_T1}, s{S_T1}, {cnt}")
        self.wait_dbg(f"s{S_T1}", 32)
        if kind == 'r':
            self.r_main()
        elif kind == 'x':
            self.x_main()
        else:
            self.f_main()
        a.label(self.end)
        a("s_endpgm")

def gen_full(stamps, force_safe=False):
    g = Gen(stamps=stamps)
    g.force_safe = force_safe
    a = g.a
    g.prologue()
    g.team_base(TEAM_OFF)
    a(f"s_cmp_ge_u32 s{S_RANK}, 32")
    a("s_cbranch_scc1 L_norank")
    a(f"s_cmp_eq_u32 s{S_TEAM}, 7")
    a("s_cbranch_scc1 L_fast_f")
    a(f"s_cmp_ge_u32 s{S_TEAM}, 2")
    a("s_cbranch_scc1 L_fast_x")
    a("s_branch L_fast_r")
    a.label("L_norank")
    g.end = 'L_end0'
    g.wait_global('L_safe_far_r')
    a.label("L_safe_far_r")
    a("s_branch L_safe")
    a.label("L_fast_r")
    g.role('r', False)
    a.label("L_fast_x")
    g.role('x', False)
    a.label("L_fast_f")
    g.role('f', False)
    a.label("L_safe_far_x")
    a.label("L_safe_far_f")
    a.label("L_safe")
    g.sc = ' sc1'
    a(f"s_lshr_b32 s{S_TEAM}, s{S_GRANK}, 5")
    a(f"s_and_b32 s{S_RANK}, s{S_GRANK}, 31")
    g.team_base(TEAM_OFF_SAFE)
    a(f"s_cmp_eq_u32 s{S_TEAM}, 7")
    a("s_cbranch_scc1 L_safe_f")
    a(f"s_cmp_ge_u32 s{S_TEAM}, 2")
    a("s_cbranch_scc1 L_safe_x")
    g.role('r', True)
    a.label("L_safe_x")
    g.role('x', True)
    a.label("L_safe_f")
    g.role('f', True)
    return g.finish(f"; @launch grid=(256,1,1) block=(256,1,1) lds={LDS_BYTES}")

if __name__ == '__main__':
    mode = sys.argv[1]
    if mode == 'final':
        open(OUT, 'w').write(gen_full(stamps=False))
    elif mode == 'stamps':
        open('full.s', 'w').write(gen_full(stamps=True))
    elif mode == 'safe':
        open('fullsafe.s', 'w').write(gen_full(stamps=False, force_safe=True))
```

```python
import sys, math, struct
from asmb import Asm, vr, ar, sr
from layout import *

KNAME = "interleave_layers__memory_aug_recurrent_mem_tr__dense_activation_gelu__prompt_kernel"
HEADER = open('interleave_layers__memory_aug_recurrent_mem_tr__dense_activation_gelu__prompt.s.ref').read().split('; Override launch')[0]

def f32hex(x):
    return '0x%08x' % struct.unpack('<I', struct.pack('<f', x))[0]

L_W = 0
WPW = 28672
L_KV = 114688
L_FB = 114688
L_MEMS = 147456
L_QK = 155648
L_OX = 159744
L_RED = 161792
L_X1 = 147456
LDS_BYTES = 163840

REGS = [('v', 112 + 8 * i) for i in range(18)] + [('a', 8 * i) for i in range(32)]

def make_homes_r():
    lds_ops = [('qkv', 4, 7), ('qkv', 5, 7), ('qkv', 4, 6), ('qkv', 5, 6), ('qkv', 4, 5), ('qkv', 5, 5), ('qkv', 5, 4),
               ('wo', 7, 1), ('wo', 6, 1), ('wo', 5, 1), ('wo', 4, 1), ('wo', 3, 1), ('wo', 2, 1), ('wo', 1, 1)]
    homes = {}
    for i, o in enumerate(lds_ops):
        homes[o] = ('lds', i)
    regs = list(REGS)
    for t in range(6):
        for ks in range(8):
            o = ('qkv', t, ks)
            if o not in homes:
                homes[o] = regs.pop(0)
    for ct in range(8):
        for ks in range(2):
            o = ('wo', ct, ks)
            if o not in homes:
                homes[o] = regs.pop(0)
    assert not regs
    return homes

def make_homes_r2():
    lds_ops = [('qkv', 0, 0), ('qkv', 1, 0), ('qkv', 2, 0), ('qkv', 3, 0), ('qkv', 0, 1), ('qkv', 1, 1), ('qkv', 2, 1)] + [('wo', ct, 1) for ct in range(7)]
    homes = {}
    for i, o in enumerate(lds_ops):
        homes[o] = ('lds', i)
    regs = list(REGS)
    for t in range(6):
        for ks in range(8):
            o = ('qkv', t, ks)
            if o not in homes:
                homes[o] = regs.pop(0)
    for ct in range(8):
        for ks in range(2):
            o = ('wo', ct, ks)
            if o not in homes:
                homes[o] = regs.pop(0)
    assert not regs
    return homes

def make_homes_x():
    homes = {}
    i = 0
    for t in (5, 7):
        for ks in range(1, 8):
            homes[('qkv', t, ks)] = ('lds', i); i += 1
    regs = list(REGS)
    for t in range(8):
        for ks in range(8):
            o = ('qkv', t, ks)
            if o not in homes:
                homes[o] = regs.pop(0)
    assert not regs
    return homes

def rr(kind, b, n):
    return vr(b, n) if kind == 'v' else ar(b, n)

S_WS = 4
S_TEAM = 6
S_RANK = 7
S_STEP = 8
S_WAVE = 9
S_DBG = 10
S_P0 = 12
S_P1 = 14
S_P2 = 16
S_P3 = 18
S_TS = 20
S_T0 = 38
S_T1 = 39
S_T2 = 40
S_SPIN = 41
S_GRANK = 47
S_ST = 48
S_STAMP0 = 64

SPIN_MAX = 1 << 21

def add64(a, dst, src, off):
    a(f"s_add_u32 s{dst}, s{src}, {off}")
    a(f"s_addc_u32 s{dst+1}, s{src+1}, 0")

class LdsQ:
    def __init__(self, a):
        self.a = a
        self.q = []
    def issue(self, text, tag=None):
        self.a(text)
        self.q.append(tag)
    def wait(self, tag):
        idx = max(i for i, t in enumerate(self.q) if t == tag) if tag in self.q else -1
        if idx < 0:
            return
        n = len(self.q) - 1 - idx
        self.a(f"s_waitcnt lgkmcnt({min(n, 15)})")
        if n <= 15:
            self.q = self.q[idx + 1:]
        else:
            self.q = self.q[len(self.q) - 15:]
    def all(self):
        self.a("s_waitcnt lgkmcnt(0)")
        self.q = []

class GenBase:
    def __init__(self, stamps=False):
        self.a = Asm()
        self.stamps = stamps
        self.nlab = 0
        self.nstamp = 0
        self.sc = ''
        self.end = 'L_end'

    def lab(self, base):
        self.nlab += 1
        return f"L_{base}_{self.nlab}"

    def stamp(self):
        if not self.stamps:
            return
        i = self.nstamp
        self.nstamp += 1
        assert i < 18
        import os
        self.a(f"{'s_memrealtime' if os.environ.get('RT') else 's_memtime'} s[{S_STAMP0+2*i}:{S_STAMP0+1+2*i}]")

    def flush_stamps(self, t0, t1):
        a = self.a
        if not self.stamps:
            return
        a("s_waitcnt lgkmcnt(0)")
        for i in range(self.nstamp):
            a(f"v_mov_b32 v{t0}, s{S_STAMP0+2*i}")
            a(f"v_mov_b32 v{t1}, {4*i}")
            a(f"global_store_dword v{t1}, v{t0}, s[{S_ST}:{S_ST+1}]")
        add64(a, S_ST, S_ST, 128)

    def spin_dec(self):
        a = self.a
        a(f"s_sub_u32 s{S_SPIN}, s{S_SPIN}, 1")
        a(f"s_cmp_eq_u32 s{S_SPIN}, 0")
        a(f"s_cbranch_scc1 {self.end}")

    def dbg_atomic(self, idx_text, ret):
        a = self.a
        a(f"v_mov_b32 v1, {idx_text}")
        a("v_mov_b32 v2, 1")
        a("s_mov_b64 exec, 1")
        if ret:
            a(f"global_atomic_add v3, v1, v2, s[{S_DBG}:{S_DBG+1}] sc0 sc1")
        else:
            a(f"global_atomic_add v1, v2, s[{S_DBG}:{S_DBG+1}] sc1")
        a("s_mov_b64 exec, -1")

    def wait_dbg(self, off, target, t=17):
        a = self.a
        lw = self.lab('dw')
        a(f"v_mov_b32 v{t}, {off}")
        a(f"s_mov_b32 s{S_SPIN}, {SPIN_MAX}")
        a.label(lw)
        a(f"global_load_dword v{t+1}, v{t}, s[{S_DBG}:{S_DBG+1}] sc1")
        a("s_waitcnt vmcnt(0)")
        a(f"v_readfirstlane_b32 s{S_T0}, v{t+1}")
        self.spin_dec()
        a(f"s_cmp_lt_u32 s{S_T0}, {target}")
        a(f"s_cbranch_scc1 {lw}")

    def load_weights(self, kind, HOMES, L_KV=L_KV, L_WB=0, rot=False):
        a = self.a
        a(f"s_load_dwordx2 s[{S_P0}:{S_P0+1}], s[0:1], 16")
        a(f"s_load_dwordx2 s[{S_P1}:{S_P1+1}], s[0:1], 24")
        a(f"s_load_dwordx2 s[{S_P2}:{S_P2+1}], s[0:1], 32")
        a(f"s_load_dwordx2 s[{S_P3}:{S_P3+1}], s[0:1], 40")
        a("v_lshrrev_b32 v1, 4, v0")
        a("v_and_b32 v2, 15, v0")
        a("v_lshlrev_b32 v3, 13, v1")
        a("v_lshl_add_u32 v3, v2, 4, v3")
        a(f"s_lshl_b32 s{S_T0}, s{S_RANK}, 8")
        a(f"v_add_u32 v3, s{S_T0}, v3")
        if kind == 'r':
            a("v_lshlrev_b32 v4, 10, v1")
            a("v_lshrrev_b32 v5, 2, v2")
            a("v_lshl_add_u32 v4, v5, 8, v4")
            a("v_and_b32 v5, 3, v2")
            a("v_lshl_add_u32 v4, v5, 4, v4")
            a(f"s_lshl_b32 s{S_T0}, s{S_RANK}, 17")
            a(f"v_add_u32 v4, s{S_T0}, v4")
        else:
            a("v_lshlrev_b32 v4, 10, v1")
            a("v_lshl_add_u32 v4, v2, 4, v4")
            a(f"s_lshr_b32 s{S_T0}, s{S_RANK}, 2")
            a(f"s_lshl_b32 s{S_T0}, s{S_T0}, 19")
            a(f"s_and_b32 s{S_T1}, s{S_RANK}, 3")
            a(f"s_lshl_b32 s{S_T1}, s{S_T1}, 8")
            a(f"s_add_u32 s{S_T0}, s{S_T0}, s{S_T1}")
            a(f"v_add_u32 v4, s{S_T0}, v4")
        a("v_and_b32 v5, 3, v1")
        a("v_lshlrev_b32 v5, 5, v5")
        a("v_bfe_u32 v6, v1, 3, 1")
        a("v_lshlrev_b32 v6, 7, v6")
        a("v_xor_b32 v5, v5, v6")
        a("v_lshlrev_b32 v6, 4, v2")
        a("v_xor_b32 v5, v5, v6")
        a("v_lshl_add_u32 v5, v1, 8, v5")
        a(f"v_add_u32 v5, {L_KV}, v5")
        a("v_and_b32 v6, 63, v0")
        a("v_lshrrev_b32 v7, 4, v6")
        a("v_bfe_u32 v8, v6, 2, 2")
        a("v_and_b32 v9, 3, v6")
        a("v_lshl_add_u32 v10, v7, 3, v8")
        a("v_lshlrev_b32 v10, 8, v10")
        a(f"v_add_u32 v10, {L_KV}, v10")
        a("v_lshlrev_b32 v8, 5, v8")
        a("v_and_b32 v7, 1, v7")
        a("v_lshlrev_b32 v7, 7, v7")
        a("v_xor_b32 v8, v8, v7")
        a(f"s_lshl_b32 s{S_T0}, s{S_WAVE}, 6")
        a("v_lshlrev_b32 v12, 3, v9")
        a(f"v_add_u32 v12, s{S_T0}, v12")
        a("v_xor_b32 v12, v12, v8")
        a("v_add_u32 v6, v10, v12")
        a("v_xor_b32 v12, 32, v12")
        a("v_add_u32 v7, v10, v12")
        if kind == 'x':
            a("v_lshlrev_b32 v12, 4, v9")
            a(f"v_add_u32 v12, s{S_T0}, v12")
            a("v_xor_b32 v12, v12, v8")
            a("v_add_u32 v13, v10, v12")
            a("v_add_u32 v14, 8, v13")
        a("v_and_b32 v8, 63, v0")
        a("v_lshlrev_b32 v8, 4, v8")
        a(f"s_mul_i32 s{S_T0}, s{S_WAVE}, {WPW}")
        if L_WB:
            a(f"s_add_u32 s{S_T0}, s{S_T0}, {L_WB}")
        a(f"v_add_u32 v8, s{S_T0}, v8")
        if rot:
            a("v_lshrrev_b32 v15, 2, v2")
            a("v_lshlrev_b32 v15, 20, v15")
        a("s_waitcnt lgkmcnt(0)")
        if kind == 'r':
            chunks = [('qkv', m, ks) for m in (1, 2, 0) for ks in range(8)] + [('wo', j, ks) for ks in range(2) for j in range(4)]
        else:
            chunks = [('qkv', m, ks) for m in (1, 2, 0, 3) for ks in range(8)]
        DEPTH = 5
        LAND = 16
        TMP = 96
        def issue(ci):
            knd, x, ks = chunks[ci]
            base = LAND + 16 * (ci % DEPTH)
            for i in range(4):
                if knd == 'qkv' and x < 3:
                    sp = [S_P0, S_P1, S_P2][x]
                    off = (64 * ks + 16 * i) * 8192
                    src = 3
                elif knd == 'qkv':
                    sp = S_P3
                    off = (64 * ks + 16 * i) * 1024
                    src = 4
                else:
                    sp = S_P3
                    off = (64 * ks + 16 * i) * 1024 + x * 64
                    src = 4
                if rot and knd == 'qkv' and x < 3:
                    a(f"v_add_u32 v11, {ks << 19}, v15")
                    a(f"v_and_b32 v11, 0x3fffff, v11")
                    a(f"v_add3_u32 v11, v11, v3, s{S_T1+0 if False else S_T1}") if False else None
                    a(f"v_add_u32 v11, v11, v3")
                    if i:
                        a(f"v_add_u32 v11, {16*i*8192}, v11")
                else:
                    a(f"v_add_u32 v11, {off}, v{src}") if off else a(f"v_mov_b32 v11, v{src}")
                a(f"global_load_dwordx4 {vr(base+4*i,4)}, v11, s[{sp}:{sp+1}]")
        for ci in range(DEPTH):
            issue(ci)
        n = len(chunks)
        for ci in range(n):
            knd, x, ks = chunks[ci]
            base = LAND + 16 * (ci % DEPTH)
            sb = (ci & 1) * 16384
            inflight = min(DEPTH, n - ci)
            a(f"s_waitcnt vmcnt({4*(inflight-1)})")
            for i in range(4):
                a(f"ds_write_b128 v5, {vr(base+4*i,4)} offset:{sb + 4096*i}")
            a("s_waitcnt lgkmcnt(0)")
            if ci + DEPTH < n:
                issue(ci + DEPTH)
            a("s_barrier")
            for tt in range(2):
                op = (knd, 2 * x + tt, ks)
                hk, hb = HOMES[op]
                dk, db = (('v', TMP) if hk == 'lds' else (hk, hb))
                areg = (13 + tt) if (kind == 'x' and x == 3) else (6 + tt)
                for hbk in range(2):
                    for u in range(2):
                        off = sb + (32 * hbk + 4 * u) * 256
                        a(f"ds_read_b64_tr_b16 {rr(dk, db + 4*hbk + 2*u, 2)}, v{areg} offset:{off}")
                if hk == 'lds':
                    a("s_waitcnt lgkmcnt(0)")
                    a(f"ds_write_b128 v8, {vr(TMP,4)} offset:{hb*2048}")
                    a(f"ds_write_b128 v8, {vr(TMP+4,4)} offset:{hb*2048+1024}")
            a("s_waitcnt lgkmcnt(0)")
        a("s_barrier")

    def finish(self, launch_lines):
        body = self.a.text()
        s = HEADER + launch_lines + '\n'
        s += '.amdgcn_target "amdgcn-amd-amdhsa--gfx950"\n.text\n'
        s += f'.globl {KNAME}\n.p2align 8\n.type {KNAME},@function\n{KNAME}:\n'
        s += body
        s += 'L_end:\n    s_endpgm\n'
        s += f'''.section .rodata,"a"
.p2align 6
.amdhsa_kernel {KNAME}
  .amdhsa_next_free_vgpr 512
  .amdhsa_next_free_sgpr 102
  .amdhsa_accum_offset 256
  .amdhsa_group_segment_fixed_size 0
  .amdhsa_kernarg_size 120
  .amdhsa_user_sgpr_count 2
  .amdhsa_user_sgpr_kernarg_segment_ptr 1
  .amdhsa_system_sgpr_workgroup_id_x 1
.end_amdhsa_kernel
'''
        return s
```

```python
from gcommon import *
from gx2 import *

S_U = 22
S_N = 23
S_J = 26
S_L = 27
S_FP = 60
S_XN1 = 61
S_X1 = 62
S_FX1 = 63

L_HL = 0
L_STG = 16384

B1R = 128
B2R = 140

def w1home(i, ks):
    return ('a', 4 * (i * 16 + ks))
def w2home(bq, c):
    n = bq * 11 + c
    return ('a', 192 + 4 * n) if n < 16 else ('v', 144 + 4 * (n - 16))

class GenF:
    def f_sconsts(self):
        a = self.a
        a(f"s_lshr_b32 s{S_U}, s{S_RANK}, 3")
        a(f"s_and_b32 s{S_J}, s{S_RANK}, 7")
        a(f"s_and_b32 s{S_L}, s{S_U}, 1")
        a(f"s_mul_i32 s{S_PSB}, s{S_J}, {P_SP}")
        a(f"s_lshl_b32 s{S_T0}, s{S_WAVE}, 9")
        a(f"s_add_u32 s{S_PSB}, s{S_PSB}, s{S_T0}")
        a(f"s_mul_i32 s{S_FP}, s{S_U}, {2*P_BUF}")
        if F_PART:
            a(f"s_add_u32 s{S_FP}, s{S_FP}, {F_PART}")
        a(f"s_cmp_eq_u32 s{S_L}, 0")
        a(f"s_cselect_b32 s{S_XN1}, {XN1_OFF[0]}, {XN1_OFF[1]}") if False else None
        a(f"s_lshl_b32 s{S_T0}, s{S_L}, 21")
        a(f"s_add_u32 s{S_XN1}, s{S_T0}, {XN1_OFF[0]}")
        a(f"s_add_u32 s{S_X1}, s{S_T0}, {X1_OFF[0]}")
        a(f"s_lshl_b32 s{S_T0}, s{S_L}, 13")
        a(f"s_add_u32 s{S_FX1}, s{S_T0}, {FX1_OFF[0]}")
        assert XN1_OFF[1] - XN1_OFF[0] == 2 * MB and X1_OFF[1] - X1_OFF[0] == 2 * MB and FX1_OFF[1] - FX1_OFF[0] == 8192
        a(f"s_load_dwordx2 s[{S_OUT}:{S_OUT+1}], s[0:1], 96")
        a(f"s_load_dwordx2 s[{S_B1}:{S_B1+1}], s[0:1], 72")
        a(f"s_load_dwordx2 s[{S_B2}:{S_B2+1}], s[0:1], 88")
        a("s_waitcnt lgkmcnt(0)")

    def f_init(self):
        a = self.a
        sc = self.sc
        a("v_lshlrev_b32 v2, 4, v0")
        for i in range(4):
            a(f"v_mov_b32 v{8+i}, 0")
        a(f"s_mul_i32 s{S_T0}, s{S_J}, {P_BUF//8}")
        a(f"s_add_u32 s{S_T0}, s{S_T0}, s{S_FP}")
        a(f"v_add_u32 v3, s{S_T0}, v2")
        for bq in range(2):
            for hh in range(18):
                a(f"v_add_u32 v12, {bq*P_BUF + hh*4096}, v3")
                a(f"global_store_dwordx4 v12, v[8:11], s[{S_TS}:{S_TS+1}]{sc}")
        a("s_waitcnt vmcnt(0)")
        a("s_barrier")

    def f_load_weights(self):
        a = self.a
        R0 = W0
        A1, A2, A3, A4 = W0 + 92, W0 + 93, W0 + 94, W0 + 95
        a(f"s_load_dwordx2 s[{S_Q0}:{S_Q0+1}], s[0:1], 64")
        a(f"s_load_dwordx2 s[{S_Q1}:{S_Q1+1}], s[0:1], 80")
        a(f"s_mul_i32 s{S_T2}, s{S_WAVE}, {16*KB}")
        a(f"s_add_u32 s{S_T2}, s{S_T2}, {L_STG}")
        a(f"v_add_u32 v{A2}, s{S_T2}, v{L16}")
        a(f"v_lshrrev_b32 v{A3}, 8, v{L16}")
        a(f"v_lshlrev_b32 v{A3}, 8, v{A3}")
        a(f"v_bfe_u32 v{A1}, v{L16}, 6, 2")
        a(f"v_lshl_add_u32 v{A3}, v{A1}, 5, v{A3}")
        a(f"v_bfe_u32 v{A1}, v{L16}, 4, 2")
        a(f"v_lshl_add_u32 v{A3}, v{A1}, 3, v{A3}")
        a(f"v_add_u32 v{A3}, s{S_T2}, v{A3}")
        a("s_waitcnt lgkmcnt(0)")
        for i in range(3):
            lzero = self.lab('f1z'); ldone = self.lab('f1d')
            for e in range(4):
                a(f"v_mov_b32 v{B1R+4*i+e}, 0")
            a(f"s_add_u32 s{S_T1}, s{S_WAVE}, {4*i}")
            a(f"s_cmp_ge_u32 s{S_T1}, 11")
            a(f"s_cbranch_scc1 {lzero}")
            a(f"s_mul_i32 s{S_T0}, s{S_J}, 11")
            a(f"s_add_u32 s{S_T0}, s{S_T0}, s{S_T1}")
            a(f"s_cmp_ge_u32 s{S_T0}, 86")
            a(f"s_cbranch_scc1 {lzero}")
            a(f"s_lshl_b32 s{S_T0}, s{S_T0}, 5")
            a(f"v_lshrrev_b32 v{A4}, 8, v{L16}")
            a(f"v_lshlrev_b32 v{A4}, 3, v{A4}")
            a(f"v_add_u32 v{A4}, s{S_T0}, v{A4}")
            a(f"global_load_dwordx2 {vr(R0+64,2)}, v{A4}, s[{S_B1}:{S_B1+1}]")
            a(f"v_lshrrev_b32 v{A1}, 5, v{L16}")
            a(f"v_mul_u32_u24 v{A1}, 2752, v{A1}")
            a(f"v_and_b32 v{A4}, 16, v{L16}")
            a(f"v_add_u32 v{A1}, v{A1}, v{A4}")
            a(f"v_add_u32 v{A1}, s{S_T0}, v{A1}")
            for ks in range(16):
                a(f"global_load_dwordx4 {vr(R0+4*ks,4)}, v{A1}, s[{S_Q0}:{S_Q0+1}]")
                if ks < 15:
                    a(f"v_add_u32 v{A1}, {32*2752}, v{A1}")
            a("s_waitcnt vmcnt(0)")
            for ks in range(16):
                a(f"ds_write_b128 v{A2}, {vr(R0+4*ks,4)} offset:{1024*ks}")
            a(f"v_lshlrev_b32 v{B1R+4*i}, 16, v{R0+64}")
            a(f"v_and_b32 v{B1R+4*i+1}, 0xffff0000, v{R0+64}")
            a(f"v_lshlrev_b32 v{B1R+4*i+2}, 16, v{R0+65}")
            a(f"v_and_b32 v{B1R+4*i+3}, 0xffff0000, v{R0+65}")
            a("s_waitcnt lgkmcnt(0)")
            for ks in range(16):
                hk, hb = w1home(i, ks)
                for u in range(2):
                    a(f"ds_read_b64_tr_b16 {rr(hk, hb+2*u, 2)}, v{A3} offset:{1024*ks+128*u}")
            a("s_waitcnt lgkmcnt(0)")
            a(f"s_branch {ldone}")
            a.label(lzero)
            for ks in range(16):
                hk, hb = w1home(i, ks)
                for e in range(4):
                    a(f"v_accvgpr_write_b32 a{hb+e}, 0")
            a.label(ldone)
        a(f"v_lshrrev_b32 v{A3}, 8, v{L16}")
        a(f"v_lshlrev_b32 v{A3}, 8, v{A3}")
        a(f"v_bfe_u32 v{A1}, v{L16}, 6, 2")
        a(f"v_lshl_add_u32 v{A3}, v{A1}, 6, v{A3}")
        a(f"v_bfe_u32 v{A1}, v{L16}, 4, 2")
        a(f"v_lshl_add_u32 v{A3}, v{A1}, 4, v{A3}")
        a(f"v_add_u32 v{A3}, s{S_T2}, v{A3}")
        a(f"global_load_dwordx4 {vr(B2R,4)}, v{L16}, s[{S_B2}:{S_B2+1}]")
        for bq in range(4):
            a(f"v_lshrrev_b32 v{A1}, 6, v{L16}")
            a(f"v_lshlrev_b32 v{A1}, 10, v{A1}")
            a(f"v_and_b32 v{A4}, 48, v{L16}")
            a(f"v_add_u32 v{A1}, v{A1}, v{A4}")
            a(f"s_mul_i32 s{S_T0}, s{S_J}, {176*1024}")
            a(f"s_lshl_b32 s{S_T1}, s{S_WAVE}, 6")
            a(f"s_add_u32 s{S_T0}, s{S_T0}, s{S_T1}")
            a(f"s_add_u32 s{S_T0}, s{S_T0}, {256*bq}")
            a(f"v_add_u32 v{A1}, s{S_T0}, v{A1}")
            for i in range(9):
                a(f"global_load_dwordx4 {vr(R0+4*i,4)}, v{A1}, s[{S_Q1}:{S_Q1+1}]")
                a(f"v_add_u32 v{A1}, {16*1024}, v{A1}")
            for i in range(8):
                a(f"v_mov_b32 v{R0+36+i}, 0")
            l7 = self.lab('f2z')
            a(f"s_cmp_eq_u32 s{S_J}, 7")
            a(f"s_cbranch_scc1 {l7}")
            for i in range(9, 11):
                a(f"global_load_dwordx4 {vr(R0+4*i,4)}, v{A1}, s[{S_Q1}:{S_Q1+1}]")
                a(f"v_add_u32 v{A1}, {16*1024}, v{A1}")
            a.label(l7)
            a("s_waitcnt vmcnt(0)")
            for i in range(11):
                a(f"ds_write_b128 v{A2}, {vr(R0+4*i,4)} offset:{1024*i}")
            a("s_waitcnt lgkmcnt(0)")
            for p in range(5):
                for ct in range(2):
                    hk, hb = w2home(bq, 2 * p + ct)
                    for u in range(2):
                        a(f"ds_read_b64_tr_b16 {rr(hk, hb+2*u, 2)}, v{A3} offset:{(2*p+u)*1024+8*ct}")
            hk, hb = w2home(bq, 10)
            for ct in range(2):
                a(f"ds_read_b64_tr_b16 {rr(hk, hb+2*ct, 2)}, v{A3} offset:{10*1024+8*ct}")
            a("s_waitcnt lgkmcnt(0)")
        a("s_barrier")

    def f_main(self):
        a = self.a
        sc = self.sc
        if self.stamps:
            a(f"s_lshl_b32 s{S_T0}, s{S_RANK}, 13")
            a(f"s_lshl_b32 s{S_T1}, s{S_TEAM}, 18")
            a(f"s_add_u32 s{S_T0}, s{S_T0}, s{S_T1}")
            a(f"s_add_u32 s{S_T0}, s{S_T0}, {STAMP_OFF}")
            add64(a, S_ST, S_WS, f"s{S_T0}")
        S_PF = 50
        S_FL = 100
        S_K3 = 44
        S_M0 = 46
        A = [16, 44]; XF = 28; U = 56; P = 68; K1, HW, FLGN, ONE, L8, FLA = 74, 75, 76, 77, 78, 79
        Hh = 16; AC = [80, 40]; DT = 112
        XR = 124; FLV = 15
        a(f"v_add_u32 v{WLA}, 4096, v{PSV}")
        a(f"v_add_u32 v{SENT}, 4096, v{PSV1}")
        self.row_frag_consts()
        k1 = -2.0 * math.log2(math.e) * math.sqrt(2.0 / math.pi)
        k3 = k1 * 0.044715
        a(f"s_mov_b32 s{S_K3}, {f32hex(k3)}")
        a(f"s_mov_b32 s{S_K3+1}, {f32hex(k3)}")
        a(f"s_lshl_b32 s{S_M0}, s{S_WAVE}, 13")
        a(f"s_add_u32 s{S_M0}, s{S_M0}, {L_FB}")
        a(f"s_mov_b64 s[{S_PF}:{S_PF+1}], 0")
        a(f"s_mov_b64 s[{S_FL}:{S_FL+1}], 0")
        a(f"v_mov_b32 v{FLV}, {FX2_OFF + 8192}")
        a(f"s_mov_b32 s{S_N}, 0")
        def flag_addr(seg_add):
            a(f"s_add_u32 s{S_T0}, s{S_SEG}, {seg_add}")
            a(f"s_lshl_b32 s{S_T0}, s{S_T0}, 7")
            a(f"s_add_u32 s{S_T0}, s{S_T0}, s{S_FX1}")
            a(f"s_lshl_b32 s{S_T1}, s{S_WAVE}, 5")
            a(f"s_add_u32 s{S_T0}, s{S_T0}, s{S_T1}")
            a(f"v_bfe_u32 v{FLA}, v{L16}, 4, 3")
            a(f"v_lshlrev_b32 v{FLA}, 2, v{FLA}")
            a(f"v_add_u32 v{FLA}, s{S_T0}, v{FLA}")
        def rows_ptr(seg_add):
            a(f"s_add_u32 s{S_T0}, s{S_SEG}, {seg_add}")
            a(f"s_lshl_b32 s{S_T0}, s{S_T0}, 15")
            a(f"s_add_u32 s{S_T0}, s{S_T0}, s{S_XN1}")
            add64(a, S_Q0, S_WS, f"s{S_T0}")
        def flag_flush():
            a("s_waitcnt vmcnt(0)")
            a(f"s_mov_b64 exec, s[{S_FL}:{S_FL+1}]")
            a(f"global_store_dword v{FLV}, v{WLA}, s[{S_WS}:{S_WS+1}] sc1")
            a("s_mov_b64 exec, -1")
            a(f"s_mov_b64 s[{S_FL}:{S_FL+1}], 0")
        lloop = self.lab('fj')
        a.label(lloop)
        self.nstamp = 0
        self.stamp()
        a(f"s_lshr_b32 s{S_SEG}, s{S_U}, 1")
        a(f"s_lshl_b32 s{S_T0}, s{S_N}, 1")
        a(f"s_add_u32 s{S_SEG}, s{S_SEG}, s{S_T0}")
        a(f"s_and_b32 s{S_PAR}, s{S_N}, 1")
        a(f"s_mul_i32 s{S_PAR}, s{S_PAR}, {P_BUF}")
        a(f"s_add_u32 s{S_PAR}, s{S_PAR}, s{S_FP}")
        a(f"s_bfe_u32 s{S_TAG}, s{S_N}, 0x10001")
        a(f"s_xor_b32 s{S_TAG}, s{S_TAG}, 1")
        lpf = self.lab('fpf')
        a(f"s_cmp_lg_u64 s[{S_PF}:{S_PF+1}], 0")
        a(f"s_cbranch_scc1 {lpf}")
        flag_flush()
        flag_addr(0)
        lp = self.lab('pf')
        a(f"s_mov_b32 s{S_SPIN}, {SPIN_MAX}")
        a.label(lp)
        a(f"global_load_dword v{FLGN}, v{FLA}, s[{S_WS}:{S_WS+1}] sc1")
        self.spin_dec()
        a("s_waitcnt vmcnt(0)")
        a(f"v_cmp_eq_u32 vcc, 0, v{FLGN}")
        a(f"s_cbranch_vccnz {lp}")
        rows_ptr(0)
        for l in self.dma_rows(S_Q0, S_M0, DT):
            a(l)
        a("s_waitcnt vmcnt(0)")
        a.label(lpf)
        a("s_barrier")
        self.stamp()
        a(f"v_mov_b32 v{K1}, {f32hex(k1)}")
        a(f"v_mov_b32 v{ONE}, 1.0")
        a(f"v_lshrrev_b32 v{L8}, 1, v{L16}")
        a(f"s_lshl_b32 s{S_T0}, s{S_WAVE}, 9")
        a(f"v_add_u32 v{HW}, s{S_T0}, v{L8}")
        a(f"v_mov_b32 v{FLGN}, 0")
        def gelu(rt):
            X = A[rt]; l = []
            def up(i):
                r = []
                for e in range(2):
                    r.append(f"v_cvt_pk_bf16_f32 v{P+2*i+e}, v{X+4*i+2*e}, v{X+4*i+2*e+1}")
                for e in range(2):
                    r.append(f"v_lshlrev_b32 v{X+4*i+2*e}, 16, v{P+2*i+e}")
                    r.append(f"v_and_b32 v{X+4*i+2*e+1}, 0xffff0000, v{P+2*i+e}")
                return r
            for i in range(3):
                l += up(i)
                for e in range(4):
                    l.append(f"v_add_f32 v{X+4*i+e}, v{X+4*i+e}, v{B1R+4*i+e}")
                l += up(i)
            for e in range(12):
                l.append(f"v_mul_f32 v{U+e}, v{X+e}, v{X+e}")
            for e in range(12):
                l.append(f"v_fma_f32 v{U+e}, v{U+e}, s{S_K3}, v{K1}")
            for e in range(12):
                l.append(f"v_mul_f32 v{U+e}, v{U+e}, v{X+e}")
            for e in range(12):
                l.append(f"v_exp_f32 v{U+e}, v{U+e}")
            for e in range(12):
                l.append(f"v_add_f32 v{U+e}, 1.0, v{U+e}")
            for e in range(12):
                l.append(f"v_rcp_f32 v{U+e}, v{U+e}")
            for e in range(12):
                l.append(f"v_mul_f32 v{U+e}, v{U+e}, v{X+e}")
            for e in range(6):
                l.append(f"v_cvt_pk_bf16_f32 v{P+e}, v{U+2*e}, v{U+2*e+1}")
            for i in range(3):
                l.append(f"ds_write_b64 v{HW}, {vr(P+2*i,2)} offset:{L_HL+rt*6144+2048*i}")
            return l
        class Mix:
            def __init__(s, fill, budget=12, delay=2):
                s.fill = list(fill); s.budget = budget; s.delay = delay; s.acc = 0
            def slot(s):
                if s.delay > 0:
                    s.delay -= 1; return
                s.acc += s.budget
                while s.fill:
                    c = 8 if s.fill[0].split()[0] in ('v_exp_f32', 'v_rcp_f32') else 4
                    if c > s.acc: break
                    s.acc -= c
                    a(s.fill.pop(0))
            def flush(s):
                for l in s.fill: a(l)
                s.fill = []
        q = LdsQ(a)
        def xread(n):
            rt, ks = n >> 4, n & 15
            q.issue(f"ds_read_b128 {vr(XF+4*(n&3),4)}, v{FR0+(ks&3)} offset:{rt*16384+(ks>>2)*256}", n)
        for n in range(3):
            xread(n)
        mix = Mix([])
        for n in range(32):
            rt, ks = n >> 4, n & 15
            if n + 3 < 32:
                xread(n + 3)
            if n == 16:
                mix = Mix(gelu(0)[:-3], budget=14)
            q.wait(n)
            for i in range(3):
                hk, hb = w1home(i, ks)
                d = vr(A[rt] + 4 * i, 4)
                a(f"v_mfma_f32_16x16x32_bf16 {d}, {rr(hk,hb,4)}, {vr(XF+4*(n&3),4)}, {'0' if ks == 0 else d}")
                mix.slot()
            if n == 10:
                flag_flush()
                a(f"s_lshl_b32 s{S_T1}, s{S_J}, 2")
                a(f"s_add_u32 s{S_T1}, s{S_T1}, s{S_WAVE}")
                a(f"s_lshl_b32 s{S_T0}, s{S_SEG}, 5")
                a(f"s_add_u32 s{S_T1}, s{S_T1}, s{S_T0}")
                a(f"s_lshl_b32 s{S_T0}, s{S_T1}, 10")
                add64(a, S_Q1, S_WS, f"s{S_T0}")
                add64(a, S_Q2, S_OUT, f"s{S_T0}")
            if n == 11:
                a(f"v_add_u32 v{DT}, s{S_X1}, v{L16}")
                a(f"global_load_dwordx4 {vr(XR,4)}, v{DT}, s[{S_Q1}:{S_Q1+1}] sc1")
                a(f"s_lshl_b32 s{S_T1}, s{S_T1}, 2")
                a(f"v_mov_b32 v{FLV}, s{S_T1}")
                a(f"v_add_u32 v{FLV}, {FX2_OFF}, v{FLV}")
            if n == 12:
                flag_addr(2)
            if n == 13:
                rows_ptr(2)
                add64(a, S_Q3, S_TS, f"s{S_PAR}")
        mix.flush()
        for l in gelu(0)[-3:]:
            a(l)
        a("s_waitcnt lgkmcnt(0)")
        a("s_barrier")
        self.stamp()
        def stores(rt, bqs):
            l = []
            for bq in bqs:
                for ct in range(2):
                    b = AC[rt] + 8 * bq + 4 * ct
                    reg = ((PSV, PSV1) if bq < 2 else (WLA, SENT))[rt]
                    l.append(f"v_and_or_b32 v{b}, v{b}, -2, s{S_TAG}")
                    l.append(f"global_store_dwordx4 v{reg}, {vr(b,4)}, s[{S_Q3}:{S_Q3+1}] offset:{256*ct+2048*(bq&1)}{sc}")
            return l
        pend = []
        for rt in range(2):
            q = LdsQ(a)
            if rt == 1:
                a(f"v_cmp_eq_u32 vcc, 0, v{FLGN}")
            for p in range(5):
                q.issue(f"ds_read2_b64 {vr(Hh+4*p,4)}, v{L8} offset0:{(L_HL+rt*6144+1024*p)//8 - (512 if rt else 0)} offset1:{(L_HL+rt*6144+1024*p)//8+64 - (512 if rt else 0)}" if False else
                        f"ds_read2st64_b64 {vr(Hh+4*p,4)}, v{L8} offset0:{(L_HL+rt*6144)//512+2*p} offset1:{(L_HL+rt*6144)//512+2*p+1}", p)
            q.issue(f"ds_read_b64 {vr(Hh+20,2)}, v{L8} offset:{L_HL+rt*6144+5120}", 5)
            if rt == 0:
                a(f"global_load_dword v{FLGN}, v{FLA}, s[{S_WS}:{S_WS+1}] sc1")
                mix = Mix(gelu(1)[:-3], budget=12, delay=0)
                for _ in range(8):
                    mix.slot()
            else:
                a(f"s_cmp_eq_u64 vcc, 0")
                a(f"s_cselect_b64 s[{S_PF}:{S_PF+1}], -1, 0")
                dl = self.dma_rows(S_Q0, S_M0, DT)
                fl = []
                for l in dl:
                    if l.startswith('global_load_lds'):
                        fl.append(f"s_mov_b64 exec, s[{S_PF}:{S_PF+1}]\n{l}\ns_mov_b64 exec, -1")
                    else:
                        fl.append(l)
                mix = Mix(fl, budget=4, delay=8)
            for g in range(2):
                n = 0
                for p in range(6):
                    q.wait(p)
                    for bq in (2 * g, 2 * g + 1):
                        for ct in range(2):
                            d = vr(AC[rt] + 8 * bq + 4 * ct, 4)
                            if p < 5:
                                hk, hb = w2home(bq, 2 * p + ct)
                                a(f"v_mfma_f32_16x16x32_bf16 {d}, {vr(Hh+4*p,4)}, {rr(hk,hb,4)}, {'0' if p == 0 else d}")
                            else:
                                hk, hb = w2home(bq, 10)
                                a(f"v_mfma_f32_16x16x16_bf16 {d}, {vr(Hh+20,2)}, {rr(hk,hb+2*ct,2)}, {d}")
                            mix.slot()
                            n += 1
                            if pend and n >= 3 and n % 4 == 3:
                                a(pend.pop(0)); a(pend.pop(0))
                assert not pend
                pend = stores(rt, (2 * g, 2 * g + 1))
            mix.flush()
            if rt == 0:
                for l in gelu(1)[-3:]:
                    a(l)
                a("s_waitcnt lgkmcnt(0)")
                a("s_barrier")
                self.stamp()
        for l in pend:
            a(l)
        self.stamp()
        a(f"s_mul_i32 s{S_T0}, s{S_J}, {P_RG}")
        a(f"s_lshl_b32 s{S_T1}, s{S_WAVE}, 11")
        a(f"s_add_u32 s{S_T0}, s{S_T0}, s{S_T1}")
        a(f"s_add_u32 s{S_T0}, s{S_T0}, s{S_PAR}")
        add64(a, S_Q0, S_TS, f"s{S_T0}")
        LD, T = W0, W0 + 64
        self.reduce_core(LD, T, S_TAG)
        self.stamp()
        Y = LD
        X = LD + 8; D = LD + 16; P = LD + 24; TT = LD + 28
        self.pack8(P, Y)
        self.unpack8(Y, P)
        self.unpack8(X, B2R)
        for e in range(4):
            a(f"v_pk_add_f32 {vr(Y+2*e,2)}, {vr(Y+2*e,2)}, {vr(X+2*e,2)}")
        self.pack8(P, Y)
        self.unpack8(Y, P)
        self.unpack8(X, XR)
        for e in range(4):
            a(f"v_pk_add_f32 {vr(X+2*e,2)}, {vr(X+2*e,2)}, {vr(Y+2*e,2)}")
        XP = LD + 32
        self.pack8(XP, X)
        l1 = self.lab('fl1'); l2 = self.lab('fl2')
        a(f"s_cmp_lg_u32 s{S_L}, 0")
        a(f"s_cbranch_scc1 {l1}")
        a(f"v_add_u32 v{T}, {X2_OFF}, v{L16}")
        a(f"global_store_dwordx4 v{T}, {vr(XP,4)}, s[{S_Q1}:{S_Q1+1}] sc1")
        self.unpack8(X, XP)
        self.layernorm(X, D, P, TT)
        a(f"v_add_u32 v{T+1}, {XN2_OFF}, v{L16}")
        a(f"global_store_dwordx4 v{T+1}, {vr(P,4)}, s[{S_Q1}:{S_Q1+1}] sc1")
        a(f"s_mov_b64 s[{S_FL}:{S_FL+1}], 1")
        a(f"s_branch {l2}")
        a.label(l1)
        a(f"global_store_dwordx4 v{L16}, {vr(XP,4)}, s[{S_Q2}:{S_Q2+1}]")
        a.label(l2)
        self.stamp()
        if self.stamps:
            ls = self.lab('ns')
            a(f"s_cmp_lg_u32 s{S_WAVE}, 3")
            a(f"s_cbranch_scc1 {ls}")
            self.flush_stamps(W0 + 70, W0 + 71)
            a.label(ls)
        a(f"s_add_u32 s{S_N}, s{S_N}, 1")
        a(f"s_cmp_lt_u32 s{S_N}, 32")
        a(f"s_cbranch_scc1 {lloop}")
        flag_flush()
```

```python
from gcommon import *

HOMES = make_homes_r2()

R_MEMS = 0
R_QK = 8192
R_OX = 12288
R_SCR = 14336
R_KV = 16384
R_WB = 49152

S_MB = [22, 24]
S_PRD = 26
S_PST = [28, 50, 52, 54]
S_KVG = 30
S_KVM = 32
S_FKV = 34
S_FKVM = 36
S_PUBM = 42
S_C = 44
S_W4K = 46
S_FM = 56
S_FM1 = 58
S_DM = 100

L16, IDX, QKW, TRA, OWA, WLA, PST, KMO, VMO, PUB, SENT, POLL, MA1, ZERO, TRK, NEGM, FLG = 1, 2, 3, 4, 5, 6, 7, 8, 9, 10, 11, 12, 13, 16, 17, 18, 19
B = [20 + 8 * i for i in range(11)]
X4 = 108

class GenR:
    def r_init(self):
        a = self.a
        sc = self.sc
        LAY = S_TEAM
        a(f"s_lshl_b32 s{S_W4K}, s{S_WAVE}, 12")
        a(f"s_lshl_b32 s{S_T0}, s{LAY}, 25")
        a(f"s_lshl_b32 s{S_T1}, s{S_RANK}, 14")
        a(f"s_add_u32 s{S_T0}, s{S_T0}, s{S_T1}")
        a(f"s_add_u32 s{S_T0}, s{S_T0}, s{S_W4K}")
        add64(a, S_KVG, S_WS, f"s{S_T0}")
        a(f"s_lshl_b32 s{S_T0}, s{LAY}, 23")
        a(f"s_lshl_b32 s{S_T1}, s{S_RANK}, 12")
        a(f"s_add_u32 s{S_T0}, s{S_T0}, s{S_T1}")
        a(f"s_add_u32 s{S_T0}, s{S_T0}, {KVM_OFF[0]}")
        add64(a, S_KVM, S_WS, f"s{S_T0}")
        a(f"s_lshl_b32 s{S_T0}, s{LAY}, 13")
        a(f"s_lshl_b32 s{S_T1}, s{S_RANK}, 2")
        a(f"s_add_u32 s{S_T0}, s{S_T0}, s{S_T1}")
        a(f"s_add_u32 s{S_T1}, s{S_T0}, {FKV_OFF[0]}")
        add64(a, S_FKV, S_WS, f"s{S_T1}")
        a(f"s_lshl_b32 s{S_T0}, s{S_T0}, 2")
        a(f"s_lshl_b32 s{S_T1}, s{S_WAVE}, 2")
        a(f"s_add_u32 s{S_T0}, s{S_T0}, s{S_T1}")
        a(f"s_add_u32 s{S_T1}, s{S_T0}, {FKVM_OFF[0]}")
        add64(a, S_FKVM, S_WS, f"s{S_T1}")
        a(f"s_mov_b64 s[{S_FM}:{S_FM+1}], 0")
        add64(a, S_MB[0], S_TS, R_MEMB)
        add64(a, S_MB[1], S_TS, R_MEMB + 8192)
        for j in range(4):
            add64(a, S_PST[j], S_TS, R_PART + 32768 * j)
        a(f"s_lshl_b32 s{S_T0}, s{S_RANK}, 14")
        a(f"s_add_u32 s{S_T0}, s{S_T0}, s{S_W4K}")
        add64(a, S_PRD, S_PST[0], f"s{S_T0}")
        a(f"s_mov_b32 s{S_PUBM}, 0x00550055")
        a(f"s_mov_b32 s{S_PUBM+1}, 0x00550055")
        c = (128 ** -0.5) * math.log2(math.e)
        a(f"s_mov_b32 s{S_C}, {f32hex(c)}")
        a(f"s_mov_b32 s{S_C+1}, {f32hex(c)}")
        if self.stamps:
            a(f"s_lshl_b32 s{S_T0}, s{S_RANK}, 13")
            a(f"s_lshl_b32 s{S_T1}, s{LAY}, 18")
            a(f"s_add_u32 s{S_T0}, s{S_T0}, s{S_T1}")
            a(f"s_add_u32 s{S_T0}, s{S_T0}, {STAMP_OFF}")
            add64(a, S_ST, S_WS, f"s{S_T0}")
        a("v_and_b32 v16, 63, v0")
        a(f"v_lshlrev_b32 v{L16}, 4, v16")
        for i in range(4):
            a(f"v_mov_b32 v{20+i}, 0")
        a(f"v_mov_b32 v{SENT}, -1")
        for j in range(4):
            a(f"global_store_dwordx4 v{L16}, v[20:23], s[{S_PRD}:{S_PRD+1}] offset:{1024*j}{sc}")
        a(f"s_lshl_b32 s{S_T0}, s{S_RANK}, 8")
        a(f"v_lshlrev_b32 v{PUB}, 2, v16")
        a(f"v_add_u32 v{PUB}, s{S_T0}, v{PUB}")
        lskip = self.lab('minit')
        a(f"s_cmp_lg_u32 s{S_WAVE}, 0")
        a(f"s_cbranch_scc1 {lskip}")
        a(f"s_load_dwordx2 s[{S_P0}:{S_P0+1}], s[0:1], 8")
        a("v_bfe_u32 v17, v16, 2, 3")
        a("v_lshlrev_b32 v17, 10, v17")
        a("v_and_b32 v18, 3, v16")
        a("v_lshl_add_u32 v17, v18, 3, v17")
        a("v_lshrrev_b32 v18, 5, v16")
        a("v_lshl_add_u32 v17, v18, 2, v17")
        a(f"s_lshl_b32 s{S_T0}, s{S_RANK}, 5")
        a(f"v_add_u32 v17, s{S_T0}, v17")
        a("s_waitcnt lgkmcnt(0)")
        a(f"global_load_dword v18, v17, s[{S_P0}:{S_P0+1}]")
        a(f"global_store_dword v{PUB}, v{SENT}, s[{S_MB[1]}:{S_MB[1]+1}]{sc}")
        a("s_waitcnt vmcnt(0)")
        a("v_min_u32 v18, -2, v18")
        a(f"global_store_dword v{PUB}, v18, s[{S_MB[0]}:{S_MB[0]+1}]{sc}")
        a.label(lskip)
        a("s_waitcnt vmcnt(0)")
        a("s_barrier")

    def r_consts(self):
        a = self.a
        LN, T1, T2 = 20, 21, 22
        a(f"v_and_b32 v{LN}, 63, v0")
        a(f"v_lshlrev_b32 v{L16}, 4, v{LN}")
        a(f"v_mov_b32 v{SENT}, -1")
        a(f"v_mov_b32 v{ZERO}, 0")
        a(f"v_mov_b32 v{T1}, 0xff800000")
        a(f"v_cmp_le_u32 vcc, 32, v{LN}")
        a(f"v_cndmask_b32 v{NEGM}, v{ZERO}, v{T1}, vcc")
        a(f"v_bfe_u32 v{T1}, v{LN}, 1, 1")
        a(f"v_lshlrev_b32 v{PUB}, 7, v{T1}")
        a(f"v_bfe_u32 v{T1}, v{LN}, 2, 1")
        a(f"v_lshl_add_u32 v{PUB}, v{T1}, 6, v{PUB}")
        a(f"v_lshrrev_b32 v{T1}, 4, v{LN}")
        a(f"v_lshl_add_u32 v{PUB}, v{T1}, 4, v{PUB}")
        a(f"s_lshl_b32 s{S_T0}, s{S_RANK}, 8")
        a(f"s_lshl_b32 s{S_T1}, s{S_WAVE}, 2")
        a(f"s_add_u32 s{S_T0}, s{S_T0}, s{S_T1}")
        a(f"v_add_u32 v{PUB}, s{S_T0}, v{PUB}")
        a(f"v_and_b32 v{T1}, 8, v{LN}")
        a(f"v_cmp_ne_u32 vcc, 0, v{T1}")
        a(f"v_mov_b32 v{T1}, 0x4444")
        a(f"v_mov_b32 v{T2}, 0xeeee")
        a(f"v_cndmask_b32 v{IDX}, v{T1}, v{T2}, vcc")
        a(f"s_lshl_b32 s{S_T0}, s{S_WAVE}, 11")
        a(f"v_add_u32 v{POLL}, s{S_T0}, v{L16}")
        for p in range(1, 4):
            a(f"s_add_u32 s{S_T0}, s{S_WAVE}, {p}")
            a(f"s_and_b32 s{S_T0}, s{S_T0}, 3")
            a(f"s_lshl_b32 s{S_T0}, s{S_T0}, 11")
            a(f"v_add_u32 v{MA1+p-1}, s{S_T0}, v{L16}")
        a(f"v_lshrrev_b32 v{T1}, 5, v{LN}")
        a(f"v_lshlrev_b32 v{T1}, 4, v{T1}")
        a(f"v_and_b32 v{T2}, 15, v{LN}")
        a(f"v_add_u32 v{T1}, v{T1}, v{T2}")
        a(f"v_lshlrev_b32 v{T1}, 4, v{T1}")
        a(f"v_bfe_u32 v{T2}, v{LN}, 4, 1")
        a(f"v_lshl_add_u32 v{T1}, v{T2}, 3, v{T1}")
        a(f"s_lshl_b32 s{S_T0}, s{S_WAVE}, 9")
        a(f"v_add_u32 v{T1}, s{S_T0}, v{T1}")
        a(f"v_add_u32 v{QKW}, {R_QK}, v{T1}")
        a(f"v_add_u32 v{VMO}, 2048, v{T1}")
        a(f"v_lshrrev_b32 v{T1}, 4, v{LN}")
        a(f"v_lshlrev_b32 v{T1}, 2, v{T1}")
        a(f"v_bfe_u32 v{T2}, v{LN}, 2, 2")
        a(f"v_add_u32 v{T1}, v{T1}, v{T2}")
        a(f"v_lshlrev_b32 v{T1}, 4, v{T1}")
        a(f"v_and_b32 v{T2}, 1, v{LN}")
        a(f"v_lshl_add_u32 v{T1}, v{T2}, 3, v{T1}")
        a(f"v_add_u32 v{TRA}, {R_QK}, v{T1}")
        a(f"s_lshl_b32 s{S_T0}, s{S_WAVE}, 9")
        a(f"v_add_u32 v{TRK}, s{S_T0}, v{TRA}")
        a(f"v_and_b32 v{T1}, 7, v{LN}")
        a(f"v_lshlrev_b32 v{T1}, 4, v{T1}")
        a(f"v_lshrrev_b32 v{T2}, 4, v{LN}")
        a(f"v_lshl_add_u32 v{T1}, v{T2}, 2, v{T1}")
        a(f"s_lshl_b32 s{S_T0}, s{S_WAVE}, 9")
        a(f"s_add_u32 s{S_T0}, s{S_T0}, {R_OX}")
        a(f"v_add_u32 v{OWA}, s{S_T0}, v{T1}")
        a(f"s_mul_i32 s{S_T0}, s{S_WAVE}, {WPW}")
        a(f"s_add_u32 s{S_T0}, s{S_T0}, {R_WB}")
        a(f"v_add_u32 v{WLA}, s{S_T0}, v{L16}")
        a(f"v_lshrrev_b32 v{T1}, 5, v{LN}")
        a(f"v_lshlrev_b32 v{T1}, 14, v{T1}")
        a(f"v_bfe_u32 v{T2}, v{LN}, 2, 2")
        a(f"v_lshl_add_u32 v{T1}, v{T2}, 12, v{T1}")
        a(f"v_bfe_u32 v{T2}, v{LN}, 4, 1")
        a(f"v_lshl_add_u32 v{T1}, v{T2}, 6, v{T1}")
        a(f"v_and_b32 v{T2}, 3, v{LN}")
        a(f"v_lshl_add_u32 v{T1}, v{T2}, 4, v{T1}")
        a(f"s_lshl_b32 s{S_T0}, s{S_WAVE}, 17")
        a(f"s_lshl_b32 s{S_T1}, s{S_RANK}, 7")
        a(f"s_add_u32 s{S_T0}, s{S_T0}, s{S_T1}")
        a(f"v_add_u32 v{PST}, s{S_T0}, v{T1}")
        a(f"v_lshrrev_b32 v{T1}, 4, v{LN}")
        a(f"v_lshlrev_b32 v{T1}, 7, v{T1}")
        a(f"v_and_b32 v{T2}, 7, v{LN}")
        a(f"v_lshl_add_u32 v{T1}, v{T2}, 4, v{T1}")
        a(f"s_lshl_b32 s{S_T0}, s{S_WAVE}, 9")
        a(f"v_add_u32 v{KMO}, s{S_T0}, v{T1}")

    def r_main(self):
        a = self.a
        sc = self.sc
        ACC = B[4]
        MAS = lambda j: B[0] + 4 * j
        QBUF = {('qkv', 0, 0): B[1], ('qkv', 1, 0): B[2], ('qkv', 2, 0): B[3], ('qkv', 3, 0): B[9],
                ('qkv', 0, 1): B[10], ('qkv', 1, 1): B[7], ('qkv', 2, 1): B[8]}
        WBUF = {0: B[7], 1: B[8], 2: B[9], 3: B[10], 4: B[2], 5: B[4], 6: B[7]}
        def fetch(o, reg, q=None):
            hb = HOMES[o][1]
            assert HOMES[o][0] == 'lds'
            for hh in range(2):
                t = f"ds_read_b128 {vr(reg+4*hh,4)}, v{WLA} offset:{hb*2048+1024*hh}"
                q.issue(t, o) if q else a(t)
        def smf(t, j):
            o = ('qkv', t, j)
            b = vr(QBUF[o], 8) if o in QBUF else rr(HOMES[o][0], HOMES[o][1], 8)
            a(f"v_smfmac_f32_16x16x64_bf16 {vr(ACC+4*t,4)}, {vr(MAS(j),4)}, {b}, v{IDX}")
        def zero(reg, n):
            for i in range(0, n, 2):
                a(f"v_mov_b64 {vr(reg+i,2)}, 0")
        def spin_flag():
            lsp = self.lab('fsp')
            a(f"s_mov_b32 s{S_SPIN}, {SPIN_MAX}")
            a.label(lsp)
            a(f"global_load_dword v0, v{ZERO}, s[{S_FKV}:{S_FKV+1}] sc1")
            self.spin_dec()
            a("s_waitcnt vmcnt(0)")
            a(f"v_cmp_eq_u32 vcc, 0, v0")
            a(f"s_cbranch_vccnz {lsp}")
        def dma(par):
            a(f"s_add_u32 m0, s{S_W4K}, {R_KV + 16384*par}")
            for j in range(4):
                a(f"global_load_lds_dwordx4 v{L16}, s[{S_KVG}:{S_KVG+1}] offset:{1024*j} sc1")
        def poll_a(par):
            for hh in range(2):
                a(f"global_load_dwordx4 {vr(B[0]+4*hh,4)}, v{POLL}, s[{S_MB[par]}:{S_MB[par]+1}] offset:{1024*hh} sc1")
        def prep1():
            for o in (('qkv', 0, 0), ('qkv', 1, 0), ('qkv', 2, 0), ('qkv', 3, 0), ('qkv', 0, 1)):
                fetch(o, QBUF[o])
            zero(ACC, 24)
            for i in range(4):
                a(f"v_mov_b32 v{X4+i}, v{NEGM}")
        def prep2():
            for o in (('qkv', 1, 1), ('qkv', 2, 1)):
                fetch(o, QBUF[o])
        spin_flag()
        dma(0)
        add64(a, S_KVG, S_KVG, 512 * 1024)
        add64(a, S_FKV, S_FKV, 128)
        a(f"s_mov_b32 s{S_STEP}, 0")
        poll_a(0)
        prep1(); prep2()
        lexit = self.lab('rexit')

        def step(par):
            self.nstamp = 0
            self.stamp()
            la = self.lab('pa'); lgo = self.lab('pg')
            a(f"s_mov_b32 s{S_SPIN}, {SPIN_MAX}")
            a.label(la)
            a("s_waitcnt vmcnt(0) lgkmcnt(0)")
            x = B[0]
            a(f"v_max3_u32 v0, v{x}, v{x+1}, v{x+2}")
            a(f"v_max3_u32 v0, v0, v{x+3}, v{x+4}")
            a(f"v_max3_u32 v0, v0, v{x+5}, v{x+6}")
            a(f"v_max_u32 v0, v0, v{x+7}")
            a(f"v_cmp_eq_u32 vcc, -1, v0")
            a(f"s_cbranch_vccz {lgo}")
            a("s_mov_b64 exec, vcc")
            poll_a(par)
            a("s_mov_b64 exec, -1")
            self.spin_dec()
            a(f"s_branch {la}")
            a.label(lgo)
            for hh in range(2):
                a(f"ds_write_b128 v{POLL}, {vr(x+4*hh,4)} offset:{R_MEMS+1024*hh}")
            a(f"global_load_dword v{FLG}, v{ZERO}, s[{S_FKV}:{S_FKV+1}] sc1")
            self.stamp()
            for t in range(4):
                smf(t, 0)
            a("s_waitcnt lgkmcnt(0)")
            a("s_barrier")
            q = LdsQ(a)
            for j in range(2, 8):
                q.issue(f"ds_read_b128 {vr(MAS(j),4)}, v{MA1+(j>>1)-1} offset:{R_MEMS+1024*(j&1)}", ('m', j))
            smf(0, 1)
            smf(3, 1)
            smf(1, 1)
            a(f"s_add_u32 m0, s{S_W4K}, {R_KV + 16384*(par^1)}")
            smf(2, 1)
            KX = B[7]
            kxr = lambda f: q.issue(f"ds_read_b128 {vr(KX+4*f,4)}, v{L16} offset:{R_KV+16384*par+1024*f}", 'kx')
            order = [4, 5, 6, 7, 0, 1, 2, 3]
            smf(4, 0); kxr(order[0]); kxr(order[1])
            smf(5, 0); kxr(order[2]); kxr(order[3])
            smf(4, 1); kxr(order[4]); kxr(order[5])
            smf(5, 1); kxr(order[6]); kxr(order[7])
            extra = []
            for j in range(4):
                extra.append([f"s_mov_b64 exec, s[{S_DM}:{S_DM+1}]",
                              f"global_load_lds_dwordx4 v{L16}, s[{S_KVG}:{S_KVG+1}] offset:{1024*j} sc1",
                              "s_mov_b64 exec, -1"])
            for j in range(2, 8):
                q.wait(('m', j))
                for t in range(4):
                    smf(t, j)
            self.stamp()
            def cpart(p, stage):
                b0, b1 = ACC + 8 * p, ACC + 8 * p + 4
                if stage == 0:
                    for i in range(4):
                        a(f"v_permlane32_swap_b32 v{b0+i}, v{b1+i}")
                else:
                    for i in range(4):
                        a(f"v_add_f32 v{b0+i}, v{b0+i}, v{b1+i}")
                    a(f"v_cvt_pk_bf16_f32 v{b1}, v{b0}, v{b0+1}")
                    a(f"v_cvt_pk_bf16_f32 v{b1+1}, v{b0+2}, v{b0+3}")
                    a(f"ds_write_b64 v{QKW}, {vr(b1,2)} offset:{2048*p}")
            smf(4, 2); smf(5, 2)
            cpart(0, 0)
            smf(4, 3)
            cpart(1, 0)
            smf(5, 3)
            cpart(0, 1)
            smf(4, 4)
            cpart(1, 1)
            smf(5, 4)
            a("s_waitcnt lgkmcnt(0)")
            a("s_barrier")
            self.stamp()
            QF = [B[0], B[0] + 4, B[1], B[1] + 4]
            KF = [B[4], B[4] + 4, B[2], B[2] + 4]
            q = LdsQ(a)
            def trr(ks):
                for u in range(2):
                    q.issue(f"ds_read_b64_tr_b16 {vr(QF[ks]+2*u,2)}, v{TRA} offset:{ks*512+u*256}", ks)
                for u in range(2):
                    q.issue(f"ds_read_b64_tr_b16 {vr(KF[ks]+2*u,2)}, v{TRA} offset:{2048+ks*512+u*256}", ks)
            trr(0); smf(4, 5); trr(1)
            a("s_waitcnt vmcnt(0)")
            a(f"v_cmp_ne_u32 s[{S_DM}:{S_DM+1}], 0, v{FLG}")
            smf(5, 5); trr(2); smf(4, 6)
            for u in range(2):
                q.issue(f"ds_read_b64_tr_b16 {vr(QF[3]+2*u,2)}, v{TRA} offset:{3*512+u*256}", 3)
            q.issue(f"ds_read_b64_tr_b16 {vr(KF[3],2)}, v{TRA} offset:{2048+3*512}", 3)
            smf(5, 6)
            for l in extra.pop(0) + extra.pop(0): a(l)
            smf(4, 7)
            for l in extra.pop(0) + extra.pop(0): a(l)
            smf(5, 7)
            SM, SX = X4, [B[5], B[5] + 4]
            V = B[6]
            vs = []
            for i in range(4):
                vs.append(f"v_permlane32_swap_b32 v{V+i}, v{V+4+i}")
            for i in range(4):
                vs.append(f"v_add_f32 v{V+i}, v{V+i}, v{V+4+i}")
            vs.append(f"v_cvt_pk_bf16_f32 v{V+4}, v{V}, v{V+1}")
            vs.append(f"v_cvt_pk_bf16_f32 v{V+5}, v{V+2}, v{V+3}")
            vs.append(f"v_min_u32 v{V+4}, -2, v{V+4}")
            vs.append(f"v_min_u32 v{V+5}, -2, v{V+5}")
            vs.append(f"v_mov_b64 {vr(V+6,2)}, {vr(V+4,2)}")
            vs.append(f"global_store_dwordx2 v{VMO}, {vr(V+4,2)}, s[{S_KVM}:{S_KVM+1}] sc1")
            vs.append(f"v_permlane32_swap_b32 v{V+4}, v{V+6}")
            vs.append(f"v_permlane32_swap_b32 v{V+5}, v{V+7}")
            VMF = [V + 4, V + 6]
            n = 0
            for ks in range(4):
                q.wait(ks)
                if ks == 0:
                    q.issue(f"ds_read_b64_tr_b16 {vr(KF[3]+2,2)}, v{TRA} offset:{2048+3*512+256}", 3)
                for k_, (d, af) in enumerate(((SX[0], KX + 4 * ks), (SX[1], KX + 16 + 4 * ks), (SM, KF[ks]))):
                    c0 = '0' if (ks == 0 and k_ < 2) else vr(d, 4)
                    a(f"v_mfma_f32_16x16x32_bf16 {vr(d,4)}, {vr(af,4)}, {vr(QF[ks],4)}, {c0}")
                    n += 1
                    if n >= 3:
                        for _ in range(2):
                            if vs:
                                a(vs.pop(0))
            assert not vs
            self.stamp()
            VX, KMT = B[0], B[1]
            q = LdsQ(a)
            for t in range(2):
                q.issue(f"ds_read_b128 {vr(VX+4*t,4)}, v{POLL} offset:{R_KV+16384*par+8192+1024*t}", 'vx')
            for u in range(2):
                q.issue(f"ds_read_b64_tr_b16 {vr(KMT+2*u,2)}, v{TRK} offset:{2048+u*256}", 'km')
            for ct in range(5):
                fetch(('wo', ct, 1), WBUF[ct], q)
            M = B[1] + 4
            S = [SM + i for i in range(4)] + [SX[0] + i for i in range(8)]
            a(f"v_max3_f32 v{M}, v{S[4]}, v{S[5]}, v{S[6]}")
            a(f"v_max3_f32 v{M+1}, v{S[7]}, v{S[8]}, v{S[9]}")
            a(f"v_max3_f32 v{M}, v{M}, v{S[10]}, v{S[11]}")
            a(f"v_max3_f32 v{M+1}, v{M+1}, v{S[0]}, v{S[1]}")
            a(f"v_max3_f32 v{M}, v{M}, v{S[2]}, v{S[3]}")
            a(f"v_max_f32 v{M}, v{M}, v{M+1}")
            for sw in ('16', '32'):
                a(f"v_mov_b32 v{M+1}, v{M}")
                a(f"v_permlane{sw}_swap_b32 v{M+1}, v{M}")
                a(f"v_max_f32 v{M}, v{M}, v{M+1}")
            a(f"v_mul_f32 v{M}, s{S_C}, v{M}")
            q.wait('km')
            for i in range(4):
                a(f"v_min_u32 v{KMT+i}, -2, v{KMT+i}")
            a(f"global_store_dwordx4 v{KMO}, {vr(KMT,4)}, s[{S_KVM}:{S_KVM+1}] sc1")
            for i in range(6):
                a(f"v_pk_fma_f32 {vr(S[2*i],2)}, {vr(S[2*i],2)}, s[{S_C}:{S_C+1}], {vr(M,2)} op_sel_hi:[1,1,0] neg_lo:[0,0,1] neg_hi:[0,0,1]")
            PM, PX = B[3], B[3] + 4
            O = [B[4], B[4] + 4]
            for i in range(4):
                a(f"v_exp_f32 v{S[i]}, v{S[i]}")
            a(f"v_exp_f32 v{S[4]}, v{S[4]}")
            a(f"v_cvt_pk_bf16_f32 v{PM}, v{S[0]}, v{S[1]}")
            a(f"v_cvt_pk_bf16_f32 v{PM+1}, v{S[2]}, v{S[3]}")
            a(f"v_exp_f32 v{S[5]}, v{S[5]}")
            a(f"v_exp_f32 v{S[6]}, v{S[6]}")
            for t in range(2):
                a(f"v_mfma_f32_16x16x16_bf16 {vr(O[t],4)}, {vr(VMF[t],2)}, {vr(PM,2)}, 0")
            for i in range(7, 12):
                a(f"v_exp_f32 v{S[i]}, v{S[i]}")
            for i in range(4):
                a(f"v_cvt_pk_bf16_f32 v{PX+i}, v{S[4+2*i]}, v{S[5+2*i]}")
            q.wait('vx')
            self.stamp()
            a(f"v_add_f32 v{M}, v{S[0]}, v{S[1]}")
            a(f"v_add_f32 v{M+1}, v{S[2]}, v{S[3]}")
            for t in range(2):
                a(f"v_mfma_f32_16x16x32_bf16 {vr(O[t],4)}, {vr(VX+4*t,4)}, {vr(PX,4)}, {vr(O[t],4)}")
                a(f"v_add_f32 v{M}, v{M}, v{S[4+2*t]}")
                a(f"v_add_f32 v{M+1}, v{M+1}, v{S[5+2*t]}")
            for t in range(2, 4):
                a(f"v_add_f32 v{M}, v{M}, v{S[4+2*t]}")
                a(f"v_add_f32 v{M+1}, v{M+1}, v{S[5+2*t]}")
            a(f"v_add_f32 v{M}, v{M}, v{M+1}")
            for sw in ('16', '32'):
                a(f"v_mov_b32 v{M+1}, v{M}")
                a(f"v_permlane{sw}_swap_b32 v{M+1}, v{M}")
                a(f"v_add_f32 v{M}, v{M}, v{M+1}")
            a(f"v_rcp_f32 v{M}, v{M}")
            WA = [B[1], B[1] + 4, B[3], B[3] + 4, B[5], B[5] + 4, B[6], B[6] + 4]
            zero(B[5], 4)
            for t in range(2):
                for i in range(2):
                    a(f"v_pk_mul_f32 {vr(O[t]+2*i,2)}, {vr(O[t]+2*i,2)}, {vr(M,2)} op_sel_hi:[1,0]")
                a(f"v_cvt_pk_bf16_f32 v{O[t]}, v{O[t]}, v{O[t]+1}")
                a(f"v_cvt_pk_bf16_f32 v{O[t]+1}, v{O[t]+2}, v{O[t]+3}")
                a(f"ds_write2_b32 v{OWA}, v{O[t]}, v{O[t]+1} offset0:{64*t} offset1:{64*t+32}")
            zero(B[5] + 4, 4); zero(B[3], 8)
            a("s_waitcnt lgkmcnt(0)")
            a("s_barrier")
            OA = B[0]
            q = LdsQ(a)
            for hh in range(2):
                q.issue(f"ds_read_b128 {vr(OA+4*hh,4)}, v{L16} offset:{R_OX+1024*hh}", ('oa', hh))
            fetch(('wo', 5, 1), WBUF[5], q)
            add64(a, S_KVM, S_KVM, 128 * 1024)
            zero(B[6], 8); zero(B[1] + 4, 4); zero(B[1], 4)
            if par == 1:
                a(f"s_cmp_ge_u32 s{S_STEP}, {NSEG-2}")
                a(f"s_cbranch_scc1 {lexit}")
            self.stamp()
            def wo(ct, ks):
                o = ('wo', ct, ks)
                b = vr(WBUF[ct], 8) if HOMES[o][0] == 'lds' else rr(HOMES[o][0], HOMES[o][1], 8)
                a(f"v_smfmac_f32_16x16x64_bf16 {vr(WA[ct],4)}, {vr(OA+4*ks,4)}, {b}, v{IDX}")
            def jl(j):
                b0, b1 = WA[2 * j], WA[2 * j + 1]
                l = [f"v_permlane32_swap_b32 v{b0+i}, v{b1+i}" for i in range(4)]
                l += [f"v_add_f32 v{b0+i}, v{b0+i}, v{b1+i}" for i in range(4)]
                l += [f"v_or_b32 v{b0}, 1, v{b0}" if par == 0 else f"v_and_b32 v{b0}, -2, v{b0}"]
                l += [f"global_store_dwordx4 v{PST}, {vr(b0,4)}, s[{S_PST[j]}:{S_PST[j]+1}]{sc}"]
                return l
            q.wait(('oa', 0))
            for ct in range(4):
                wo(ct, 0)
            q.wait(('oa', 1))
            wo(0, 1); wo(1, 1)
            fetch(('wo', 6, 1), WBUF[6], q)
            wo(2, 1); wo(3, 1)
            pend = jl(0) + jl(1)
            seq = [(4, 0), (5, 0), (6, 0), (7, 0), (4, 1), (5, 1), (7, 1), (6, 1)]
            for n, (ct, ks) in enumerate(seq):
                if (ct, ks) == (5, 1):
                    q.wait(('wo', 5, 1))
                if (ct, ks) == (6, 1):
                    q.wait(('wo', 6, 1))
                wo(ct, ks)
                if n >= 1:
                    for _ in range(3):
                        if pend:
                            l = pend.pop(0)
                            for x_ in (l if isinstance(l, list) else [l]):
                                a(x_)
            assert not pend
            for l in jl(2) + jl(3):
                a(l)
            self.stamp()
            x = B[7]
            def poll_k():
                for j in range(4):
                    a(f"global_load_dwordx4 {vr(x+4*j,4)}, v{L16}, s[{S_PRD}:{S_PRD+1}] offset:{1024*j} sc1")
            poll_k()
            prep1()
            lk = self.lab('pk'); lgo = self.lab('kg')
            a(f"s_mov_b32 s{S_SPIN}, {SPIN_MAX}")
            a.label(lk)
            a("s_waitcnt vmcnt(0)")
            if par == 0:
                a(f"v_bitop3_b32 v0, v{x}, v{x+4}, v{x+8} bitop3:0x80")
                a(f"v_bitop3_b32 v0, v0, v{x+12}, 1 bitop3:0x80")
                a(f"v_cmp_eq_u32 vcc, 0, v0")
            else:
                a(f"v_or3_b32 v0, v{x}, v{x+4}, v{x+8}")
                a(f"v_bitop3_b32 v0, v0, v{x+12}, 1 bitop3:0xa8")
                a(f"v_cmp_ne_u32 vcc, 0, v0")
            a(f"s_cbranch_vccz {lgo}")
            a("s_mov_b64 exec, vcc")
            poll_k()
            a("s_mov_b64 exec, -1")
            self.spin_dec()
            a(f"s_branch {lk}")
            a.label(lgo)
            self.stamp()
            for i in range(2):
                a(f"v_pk_add_f32 {vr(x+2*i,2)}, {vr(x+2*i,2)}, {vr(x+4+2*i,2)}")
                a(f"v_pk_add_f32 {vr(x+8+2*i,2)}, {vr(x+8+2*i,2)}, {vr(x+12+2*i,2)}")
            for i in range(2):
                a(f"v_pk_add_f32 {vr(x+2*i,2)}, {vr(x+2*i,2)}, {vr(x+8+2*i,2)}")
            a(f"v_permlane32_swap_b32 v{x}, v{x+2}")
            a(f"v_permlane32_swap_b32 v{x+1}, v{x+3}")
            a(f"v_pk_add_f32 {vr(x,2)}, {vr(x,2)}, {vr(x+2,2)}")
            a(f"v_permlane16_swap_b32 v{x}, v{x+1}")
            a(f"v_add_f32 v{x}, v{x}, v{x+1}")
            D = "row_mask:0xf bank_mask:0xf"
            a(f"v_add_f32_dpp v{x+1}, v{x}, v{x} row_ror:8 {D}")
            a(f"v_mov_b32_dpp v{x+2}, v{x+1} quad_perm:[1,0,3,2] {D}")
            a(f"v_cvt_pk_bf16_f32 v{x+1}, v{x+1}, v{x+2}")
            a(f"v_min_u32 v{x+1}, -2, v{x+1}")
            a(f"s_mov_b64 exec, s[{S_PUBM}:{S_PUBM+1}]")
            a(f"global_store_dword v{PUB}, v{x+1}, s[{S_MB[par^1]}:{S_MB[par^1]+1}]{sc}")
            a(f"global_store_dword v{PUB}, v{SENT}, s[{S_MB[par]}:{S_MB[par]+1}]{sc}")
            a("s_mov_b64 exec, -1")
            self.stamp()
            lok = self.lab('p2')
            a(f"s_cmp_lg_u64 s[{S_DM}:{S_DM+1}], 0")
            a(f"s_cbranch_scc1 {lok}")
            spin_flag()
            dma(par ^ 1)
            a.label(lok)
            poll_a(par ^ 1)
            add64(a, S_KVG, S_KVG, 512 * 1024)
            add64(a, S_FKV, S_FKV, 128)
            if self.stamps:
                a("s_waitcnt lgkmcnt(0)")
                for i in range(self.nstamp):
                    a(f"v_writelane_b32 v{x+4}, s{S_STAMP0+2*i}, {i}")
                a(f"v_lshrrev_b32 v{x+5}, 2, v{L16}")
                l3 = self.lab('st')
                a(f"s_cmp_lg_u32 s{S_WAVE}, {self.stamp_wave}")
                a(f"s_cbranch_scc1 {l3}")
                a("s_mov_b64 exec, 0xffff")
                a(f"global_store_dword v{x+5}, v{x+4}, s[{S_ST}:{S_ST+1}]")
                a("s_mov_b64 exec, -1")
                a.label(l3)
                add64(a, S_ST, S_ST, 128)
            prep2()

        lloop = self.lab('rstep')
        a.label(lloop)
        step(0)
        step(1)
        a(f"s_add_u32 s{S_STEP}, s{S_STEP}, 2")
        a(f"s_branch {lloop}")
        a.label(lexit)
        a("s_waitcnt vmcnt(0)")
```

```python
from gcommon import *

HX = make_homes_x()

S_XT = 22
S_K = 23
S_SEG = 24
S_PAR = 25
S_A = 26
S_B = 27
S_Q0 = 28
S_Q1 = 30
S_Q2 = 32
S_Q3 = 34
S_TAG = 36
S_C = 44
S_X = 50
S_OUT = 52
S_B1 = 54
S_B2 = 56
S_PSB = 58
S_SC = 60
S_SA, S_SB = 62, 63

L16, GW, FR0, FL, WLA, GL0, GL1, PSV, PSV1, SENT = 1, 2, 3, 7, 8, 9, 10, 11, 12, 13
ZERO = 14
W0 = 16

P_SP = 8192 + 128
P_RG = 8 * P_SP + 128
P_BUF = 576 * KB
assert 8 * P_RG <= P_BUF
L_RX = 147456
X_DONE = 960 * KB

class GenX:
    def x_consts(self):
        a = self.a
        T = W0
        a(f"v_and_b32 v{T}, 63, v0")
        a(f"v_lshlrev_b32 v{L16}, 4, v{T}")
        a(f"v_and_b32 v{T+1}, 15, v{T}")
        a(f"v_lshrrev_b32 v{T+2}, 4, v{T}")
        a(f"s_and_b32 s{S_T0}, s{S_WAVE}, 1")
        a(f"s_lshl_b32 s{S_T0}, s{S_T0}, 3")
        a(f"v_xor_b32 v{T+3}, s{S_T0}, v{T+1}")
        a(f"v_lshlrev_b32 v{T+3}, 4, v{T+3}")
        a(f"v_lshl_add_u32 v{T+3}, v{T}, 8, v{T+3}")
        a(f"s_lshr_b32 s{S_T0}, s{S_WAVE}, 1")
        a(f"s_lshl_b32 s{S_T0}, s{S_T0}, 14")
        a(f"s_add_u32 s{S_T0}, s{S_T0}, {L_FB}")
        a(f"v_add_u32 v{GW}, s{S_T0}, v{T+3}")
        a(f"v_xor_b32 v{T+3}, v{T+1}, v{T+2}")
        a(f"v_lshlrev_b32 v{T+3}, 4, v{T+3}")
        a(f"v_lshl_add_u32 v{T+3}, v{T+2}, 8, v{T+3}")
        a(f"v_add_u32 v{FR0}, {L_FB}, v{T+3}")
        for m in range(1, 4):
            a(f"v_xor_b32 v{FR0+m}, {64*m}, v{FR0}")
        a(f"v_add_u32 v{FL}, {L_FB}, v{L16}")
        a(f"s_mul_i32 s{S_T0}, s{S_WAVE}, {WPW}")
        a(f"v_add_u32 v{WLA}, s{S_T0}, v{L16}")
        a(f"s_lshl_b32 s{S_T0}, s{S_WAVE}, 13")
        a(f"v_add_u32 v{GL0}, s{S_T0}, v{L16}")
        a(f"v_add_u32 v{GL1}, 4096, v{GL0}")
        a(f"v_mul_u32_u24 v{PSV}, {P_RG}, v{T+2}")
        a(f"v_lshl_add_u32 v{PSV}, v{T+1}, 4, v{PSV}")
        a(f"v_add_u32 v{PSV}, s{S_PSB}, v{PSV}")
        a(f"v_add_u32 v{PSV1}, {4*P_RG}, v{PSV}")
        a(f"v_mov_b32 v{SENT}, -1")
        a(f"v_mov_b32 v{ZERO}, 0")

    def row_frag_consts(self):
        a = self.a
        T = W0
        a(f"v_bfe_u32 v{T}, v{L16}, 4, 4")
        a(f"v_lshrrev_b32 v{T+1}, 8, v{L16}")
        a(f"v_xor_b32 v{T+1}, v{T+1}, v{T}")
        a(f"v_lshlrev_b32 v{T+1}, 4, v{T+1}")
        a(f"v_lshl_add_u32 v{T+1}, v{T}, 10, v{T+1}")
        a(f"v_add_u32 v{FR0}, {L_FB}, v{T+1}")
        for m in range(1, 4):
            a(f"v_xor_b32 v{FR0+m}, {64*m}, v{FR0}")
        a(f"s_and_b32 s{S_T0}, s{S_WAVE}, 1")
        a(f"s_lshl_b32 s{S_T0}, s{S_T0}, 7")
        a(f"v_xor_b32 v{GW}, s{S_T0}, v{GL0}")

    def dma_rows(self, base, s_m0, t):
        l = []
        for i in range(8):
            if (i & 3) == 0:
                l.append(f"s_add_u32 m0, s{s_m0}, {4096*(i>>2)}")
            if i:
                l.append(f"v_xor_b32 v{t+i}, {16*i + (4096 if i >= 4 else 0)}, v{GW}")
            l.append(f"global_load_lds_dwordx4 v{t+i if i else GW}, s[{base}:{base+1}] offset:{1024*(i&3)} sc1")
        return l

    def x_sconsts(self):
        a = self.a
        a(f"s_sub_u32 s{S_XT}, s{S_TEAM}, 2")
        a(f"s_lshr_b32 s{S_A}, s{S_RANK}, 2")
        a(f"s_and_b32 s{S_B}, s{S_RANK}, 3")
        a(f"s_mul_i32 s{S_PSB}, s{S_A}, {P_SP}")
        a(f"s_lshl_b32 s{S_T0}, s{S_B}, 11")
        a(f"s_add_u32 s{S_PSB}, s{S_PSB}, s{S_T0}")
        a(f"s_lshl_b32 s{S_T0}, s{S_WAVE}, 9")
        a(f"s_add_u32 s{S_PSB}, s{S_PSB}, s{S_T0}")
        c = (128 ** -0.5) * math.log2(math.e)
        a(f"s_mov_b32 s{S_C}, {f32hex(c)}")
        a(f"s_mov_b32 s{S_C+1}, {f32hex(c)}")
        a(f"s_load_dwordx2 s[{S_X}:{S_X+1}], s[0:1], 0")
        a("s_waitcnt lgkmcnt(0)")

    def allreduce(self, s, t):
        a = self.a
        D = "row_mask:0xf bank_mask:0xf"
        a(f"v_add_f32_dpp v{t}, v{s}, v{s} quad_perm:[1,0,3,2] {D}")
        a(f"v_add_f32_dpp v{s}, v{t}, v{t} quad_perm:[2,3,0,1] {D}")
        a(f"v_add_f32_dpp v{t}, v{s}, v{s} row_half_mirror {D}")
        a(f"v_add_f32_dpp v{s}, v{t}, v{t} row_mirror {D}")
        for sw in ('16', '32'):
            a(f"v_mov_b32 v{t}, v{s}")
            a(f"v_permlane{sw}_swap_b32 v{t}, v{s}")
            a(f"v_add_f32 v{s}, v{s}, v{t}")

    def unpack8(self, dst, src):
        a = self.a
        for i in range(4):
            a(f"v_lshlrev_b32 v{dst+2*i}, 16, v{src+i}")
            a(f"v_and_b32 v{dst+2*i+1}, 0xffff0000, v{src+i}")

    def pack8(self, dst, src):
        a = self.a
        for i in range(4):
            a(f"v_cvt_pk_bf16_f32 v{dst+i}, v{src+2*i}, v{src+2*i+1}")

    def bf16r(self, r):
        a = self.a
        a(f"v_cvt_pk_bf16_f32 v{r}, v{r}, v{r}")
        a(f"v_and_b32 v{r}, 0xffff0000, v{r}")

    def layernorm(self, X, D, P, T):
        a = self.a
        a(f"v_pk_add_f32 {vr(D,2)}, {vr(X,2)}, {vr(X+2,2)}")
        a(f"v_pk_add_f32 {vr(D+2,2)}, {vr(X+4,2)}, {vr(X+6,2)}")
        a(f"v_pk_add_f32 {vr(D,2)}, {vr(D,2)}, {vr(D+2,2)}")
        a(f"v_add_f32 v{T}, v{D}, v{D+1}")
        self.allreduce(T, T + 1)
        a(f"v_mul_f32 v{T}, {f32hex(1.0/512)}, v{T}")
        for i in range(4):
            a(f"v_pk_add_f32 {vr(D+2*i,2)}, {vr(X+2*i,2)}, {vr(T,2)} op_sel_hi:[1,0] neg_lo:[0,1] neg_hi:[0,1]")
        a(f"v_pk_mul_f32 {vr(T+2,2)}, {vr(D,2)}, {vr(D,2)}")
        for i in range(1, 4):
            a(f"v_pk_fma_f32 {vr(T+2,2)}, {vr(D+2*i,2)}, {vr(D+2*i,2)}, {vr(T+2,2)}")
        a(f"v_add_f32 v{T+2}, v{T+2}, v{T+3}")
        self.allreduce(T + 2, T + 3)
        a(f"v_mul_f32 v{T+2}, {f32hex(1.0/512)}, v{T+2}")
        self.bf16r(T)
        self.bf16r(T + 2)
        a(f"v_add_f32 v{T+2}, {f32hex(1e-5)}, v{T+2}")
        self.bf16r(T + 2)
        a(f"v_sqrt_f32 v{T+2}, v{T+2}")
        self.bf16r(T + 2)
        a(f"v_rcp_f32 v{T+2}, v{T+2}")
        for i in range(4):
            a(f"v_pk_add_f32 {vr(D+2*i,2)}, {vr(X+2*i,2)}, {vr(T,2)} op_sel_hi:[1,0] neg_lo:[0,1] neg_hi:[0,1]")
        self.pack8(P, D)
        self.unpack8(D, P)
        for i in range(4):
            a(f"v_pk_mul_f32 {vr(D+2*i,2)}, {vr(D+2*i,2)}, {vr(T+2,2)} op_sel_hi:[1,0]")
        self.pack8(P, D)
        a(f"v_min_u32 v{P}, -2, v{P}")

    def x_init(self):
        a = self.a
        sc = self.sc
        a("v_and_b32 v16, 63, v0")
        a("v_lshlrev_b32 v1, 4, v16")
        a("v_lshlrev_b32 v2, 4, v0")
        for i in range(4):
            a(f"v_mov_b32 v{4+i}, -1")
            a(f"v_mov_b32 v{8+i}, 0")
        a(f"s_lshl_b32 s{S_T0}, s{S_RANK}, 13")
        a(f"s_add_u32 s{S_T0}, s{S_T0}, {X_OB}")
        a(f"v_add_u32 v3, s{S_T0}, v2")
        for slot in range(2):
            for hh in range(2):
                a(f"v_add_u32 v12, {slot*256*KB + hh*4096}, v3")
                a(f"global_store_dwordx4 v12, v[4:7], s[{S_TS}:{S_TS+1}]{sc}")
        a(f"s_mul_i32 s{S_T0}, s{S_RANK}, {P_BUF//32}")
        a(f"s_add_u32 s{S_T0}, s{S_T0}, {X_PART}")
        a(f"v_add_u32 v3, s{S_T0}, v2")
        for bq in range(2):
            for hh in range(5):
                a(f"v_add_u32 v12, {bq*P_BUF + min(hh*4096, P_BUF//32-4096)}, v3")
                a(f"global_store_dwordx4 v12, v[8:11], s[{S_TS}:{S_TS+1}]{sc}")
        a(f"v_and_b32 v12, 0xf0, v1")
        a(f"v_add_u32 v12, {X_DONE}, v12")
        a(f"global_store_dwordx4 v12, v[8:11], s[{S_TS}:{S_TS+1}]{sc}")
        for it in range(4):
            lsk = self.lab('ln0')
            a(f"s_add_u32 s{S_T2}, s{S_WAVE}, {4*it}")
            a(f"s_mul_i32 s{S_T0}, s{S_T2}, {NX}")
            a(f"s_add_u32 s{S_T0}, s{S_T0}, s{S_XT}")
            a(f"s_cmp_ge_u32 s{S_T0}, {NSEG}")
            a(f"s_cbranch_scc1 {lsk}")
            a(f"s_lshl_b32 s{S_T0}, s{S_T0}, 5")
            a(f"s_add_u32 s{S_T0}, s{S_T0}, s{S_RANK}")
            a(f"s_lshl_b32 s{S_T0}, s{S_T0}, 10")
            a(f"v_add_u32 v12, s{S_T0}, v1")
            a(f"global_load_dwordx4 v[16:19], v12, s[{S_X}:{S_X+1}]")
            a("s_waitcnt vmcnt(0)")
            self.unpack8(20, 16)
            self.layernorm(20, 28, 36, 40)
            a(f"s_lshl_b32 s{S_T0}, s{S_T2}, 5")
            a(f"s_add_u32 s{S_T0}, s{S_T0}, s{S_RANK}")
            a(f"s_lshl_b32 s{S_T0}, s{S_T0}, 10")
            if X_XN0:
                a(f"s_add_u32 s{S_T0}, s{S_T0}, {X_XN0}")
            a(f"v_add_u32 v12, s{S_T0}, v1")
            a(f"global_store_dwordx4 v12, v[36:39], s[{S_TS}:{S_TS+1}]{sc}")
            a.label(lsk)
        a("s_waitcnt vmcnt(0)")
        a("s_barrier")

    def poll_flags32(self, off_imm, seg_sreg, t):
        a = self.a
        a(f"s_lshl_b32 s{S_T0}, s{seg_sreg}, 7")
        a(f"s_add_u32 s{S_T0}, s{S_T0}, {off_imm}")
        a(f"v_bfe_u32 v{t}, v{L16}, 4, 5")
        a(f"v_lshlrev_b32 v{t}, 2, v{t}")
        a(f"v_add_u32 v{t}, s{S_T0}, v{t}")
        lp = self.lab('pf')
        a(f"s_mov_b32 s{S_SPIN}, {SPIN_MAX}")
        a.label(lp)
        a(f"global_load_dword v{t+1}, v{t}, s[{S_WS}:{S_WS+1}] sc1")
        self.spin_dec()
        a("s_waitcnt vmcnt(0)")
        a(f"v_cmp_eq_u32 vcc, 0, v{t+1}")
        a(f"s_cbranch_vccnz {lp}")

    def poll8(self, LD, base, check=True):
        a = self.a
        lp = self.lab('p8')
        t = LD + 32
        if check:
            a(f"s_mov_b32 s{S_SPIN}, {SPIN_MAX}")
            a.label(lp)
        for i in range(8):
            a(f"global_load_dwordx4 {vr(LD+4*i,4)}, v{GL0 if i < 4 else GL1}, s[{base}:{base+1}] offset:{1024*(i%4)} sc1")
        if check:
            self.spin_dec()
        a("s_waitcnt vmcnt(0)")
        if check:
            a(f"v_max3_u32 v{t}, v{LD}, v{LD+4}, v{LD+8}")
            a(f"v_max3_u32 v{t+1}, v{LD+12}, v{LD+16}, v{LD+20}")
            a(f"v_max3_u32 v{t}, v{t}, v{LD+24}, v{LD+28}")
            a(f"v_max_u32 v{t}, v{t}, v{t+1}")
            a(f"v_cmp_eq_u32 vcc, -1, v{t}")
            a(f"s_cbranch_vccnz {lp}")

    def gather_rows(self, LD, base, check=True):
        a = self.a
        self.poll8(LD, base, check)
        a("s_barrier")
        t = LD + 32
        for i in range(8):
            if i:
                a(f"v_xor_b32 v{t+(i&1)}, {16*i}, v{GW}")
                a(f"ds_write_b128 v{t+(i&1)}, {vr(LD+4*i,4)}")
            else:
                a(f"ds_write_b128 v{GW}, {vr(LD,4)}")
        a("s_waitcnt lgkmcnt(0)")
        a("s_barrier")

    def gather_frags(self, LD, base):
        a = self.a
        self.poll8(LD, base)
        a("s_barrier")
        t = LD + 32
        a(f"s_lshl_b32 s{S_T0}, s{S_WAVE}, 12")
        a(f"v_add_u32 v{t}, s{S_T0}, v{FL}")
        for i in range(8):
            a(f"ds_write_b128 v{t}, {vr(LD+4*i,4)} offset:{(i>>2)*16384 + (i&3)*1024}")
        a("s_waitcnt lgkmcnt(0)")
        a("s_barrier")

    def gemm_res(self, tiles, ACC, XF, WBUF, swz):
        a = self.a
        q = LdsQ(a)
        def xread(ks):
            b = XF + 8 * (ks % 3)
            ar_ = (FR0 + (ks & 3)) if swz else FL
            for rt in range(2):
                q.issue(f"ds_read_b128 {vr(b+4*rt,4)}, v{ar_} offset:{rt*16384+ks*1024}", ('x', ks))
        def wread(k64):
            for t in tiles:
                hk, hb = HX[('qkv', t, k64)]
                if hk == 'lds':
                    b = WBUF + 8 * (k64 & 1)
                    q.issue(f"ds_read_b128 {vr(b,4)}, v{WLA} offset:{hb*2048}", ('w', k64))
                    q.issue(f"ds_read_b128 {vr(b+4,4)}, v{WLA} offset:{hb*2048+1024}", ('w', k64))
        xread(0); xread(1)
        for ks in range(16):
            k64 = ks >> 1
            if ks + 2 < 16:
                xread(ks + 2)
            if (ks & 1) == 0 and k64 + 1 < 8:
                wread(k64 + 1)
            q.wait(('x', ks))
            q.wait(('w', k64))
            xb = XF + 8 * (ks % 3)
            for ti, t in enumerate(tiles):
                hk, hb = HX[('qkv', t, k64)]
                if hk == 'lds':
                    hk, hb = 'v', WBUF + 8 * (k64 & 1)
                w = rr(hk, hb + 4 * (ks & 1), 4)
                for rt in range(2):
                    d = vr(ACC + (ti * 2 + rt) * 4, 4)
                    c = '0' if ks == 0 else d
                    x = vr(xb + 4 * rt, 4)
                    if t in (4, 5, 6, 7):
                        a(f"v_mfma_f32_16x16x32_bf16 {d}, {x}, {w}, {c}")
                    else:
                        a(f"v_mfma_f32_16x16x32_bf16 {d}, {w}, {x}, {c}")

    def store_partials(self, ACC, tag, rts=(0, 1), accmap=None, off=0, regs=None):
        a = self.a
        for rt in rts:
            for ct in range(2):
                b = accmap(ct, rt) if accmap else ACC + (ct * 2 + rt) * 4
                a(f"v_and_or_b32 v{b}, v{b}, -2, s{tag}")
                a(f"global_store_dwordx4 v{(regs or (PSV, PSV1))[rt]}, {vr(b,4)}, s[{S_Q3}:{S_Q3+1}] offset:{256*ct+off}{self.sc}")

    def warm(self, base, off_sreg, nchunks, shift=7, t=W0 + 90):
        a = self.a
        a(f"v_lshlrev_b32 v{t}, {shift-4}, v{L16}")
        a(f"v_add_u32 v{t}, s{off_sreg}, v{t}")
        for c in range(nchunks):
            if c:
                a(f"v_add_u32 v{t}, {64 << shift}, v{t}")
            a(f"global_load_dword v0, v{t}, s[{base}:{base+1}] sc1")

    def warm_xn0(self):
        a = self.a
        l = self.lab('wx')
        a(f"s_add_u32 s{S_T0}, s{S_SA}, {self.CA*NX}")
        a(f"s_cmp_ge_u32 s{S_T0}, {NSEG}")
        a(f"s_cbranch_scc1 {l}")
        a(f"s_add_u32 s{S_T0}, s{S_K}, {self.CA}")
        a(f"s_lshl_b32 s{S_T0}, s{S_T0}, 15")
        a(f"s_lshl_b32 s{S_T1}, s{S_WAVE}, 13")
        a(f"s_add_u32 s{S_T0}, s{S_T0}, s{S_T1}")
        if X_XN0:
            a(f"s_add_u32 s{S_T0}, s{S_T0}, {X_XN0}")
        self.warm(S_TS, S_T0, 1)
        a.label(l)

    def warm_xn2(self):
        a = self.a
        l = self.lab('wy')
        a(f"s_sub_u32 s{S_T2}, s{S_SA}, {NX}")
        a(f"s_cmp_ge_u32 s{S_T2}, {NSEG}")
        a(f"s_cbranch_scc1 {l}")
        a(f"s_lshl_b32 s{S_T0}, s{S_T2}, 15")
        a(f"s_lshl_b32 s{S_T1}, s{S_WAVE}, 13")
        a(f"s_add_u32 s{S_T0}, s{S_T0}, s{S_T1}")
        a(f"s_add_u32 s{S_T0}, s{S_T0}, {XN2_OFF}")
        self.warm(S_WS, S_T0, 1)
        a(f"s_lshl_b32 s{S_T0}, s{S_T2}, 7")
        a(f"s_add_u32 s{S_T0}, s{S_T0}, {FX2_OFF}")
        a(f"v_mov_b32 v{W0+90}, s{S_T0}")
        a(f"global_load_dword v0, v{W0+90}, s[{S_WS}:{S_WS+1}] sc1")
        a.label(l)

    def warm_next(self):
        a = self.a
        for slot in range(2):
            l = self.lab('wn'); l3 = self.lab('wn3')
            a(f"s_add_u32 s{S_T2}, s{S_SA}, {NX}") if slot == 0 else a(f"s_sub_u32 s{S_T2}, s{S_SA}, {NX*self.DB - NX}")
            a(f"s_cmp_ge_u32 s{S_T2}, {NSEG}")
            a(f"s_cbranch_scc1 {l}")
            a(f"s_lshl_b32 s{S_T2}, s{S_T2}, 5")
            a(f"s_add_u32 s{S_T2}, s{S_T2}, s{S_RANK}")
            a(f"s_cmp_eq_u32 s{S_WAVE}, 3")
            a(f"s_cbranch_scc1 {l3}")
            a(f"s_lshl_b32 s{S_T0}, s{S_T2}, 14")
            a(f"s_lshl_b32 s{S_T1}, s{S_WAVE}, 13")
            a(f"s_add_u32 s{S_T0}, s{S_T0}, s{S_T1}")
            if KV_OFF[slot]:
                a(f"s_add_u32 s{S_T0}, s{S_T0}, {KV_OFF[slot]}")
            a(f"s_lshl_b32 s{S_T1}, s{S_T2}, 13")
            a(f"s_add_u32 s{S_T1}, s{S_T1}, {Q_OFF[slot]}")
            a(f"s_cmp_eq_u32 s{S_WAVE}, 2")
            a(f"s_cselect_b32 s{S_T0}, s{S_T1}, s{S_T0}")
            self.warm(S_WS, S_T0, 1)
            a(f"s_branch {l}")
            a.label(l3)
            a(f"s_lshl_b32 s{S_T0}, s{S_T2}, 12")
            a(f"s_add_u32 s{S_T0}, s{S_T0}, {KVM_OFF[slot]}")
            self.warm(S_WS, S_T0, 1, shift=6)
            a(f"s_lshl_b32 s{S_T0}, s{S_T2}, 2")
            a(f"s_add_u32 s{S_T0}, s{S_T0}, {FKVM_OFF[slot]}")
            a(f"v_mov_b32 v{W0+90}, s{S_T0}")
            a(f"global_load_dword v0, v{W0+90}, s[{S_WS}:{S_WS+1}] sc1")
            a(f"s_lshl_b32 s{S_T0}, s{S_T2}, 10")
            if slot == 0:
                self.warm(S_X, S_T0, 1, shift=4)
            else:
                a(f"s_add_u32 s{S_T0}, s{S_T0}, {X2_OFF}")
                self.warm(S_WS, S_T0, 1, shift=4)
            a.label(l)

    def st_qkv(self, layer, sbase, src_off_sgpr_or_imm, check, hook=None):
        a = self.a
        add64(a, S_Q0, sbase, src_off_sgpr_or_imm)
        self.gather_rows(W0, S_Q0, check)
        ACC, XF, WB = W0, W0 + 48, W0 + 72
        if layer == 0: self.stamp()
        if hook:
            hook()
        if layer == 0: self.stamp()
        self.gemm_res([0, 1, 2, 3, 4, 5], ACC, XF, WB, True)
        if layer == 0: self.stamp()
        a(f"s_lshl_b32 s{S_T0}, s{S_SEG}, 5")
        a(f"s_add_u32 s{S_T0}, s{S_T0}, s{S_RANK}")
        a(f"s_lshl_b32 s{S_T1}, s{S_T0}, 14")
        if KV_OFF[layer]:
            a(f"s_add_u32 s{S_T1}, s{S_T1}, {KV_OFF[layer]}")
        add64(a, S_Q0, S_WS, f"s{S_T1}")
        a(f"s_lshl_b32 s{S_T1}, s{S_T0}, 13")
        a(f"s_add_u32 s{S_T1}, s{S_T1}, {Q_OFF[layer]}")
        add64(a, S_Q1, S_WS, f"s{S_T1}")
        a(f"s_lshl_b32 s{S_T1}, s{S_T0}, 2")
        a(f"s_add_u32 s{S_T1}, s{S_T1}, {FKV_OFF[layer]}")
        add64(a, S_Q2, S_WS, f"s{S_T1}")
        A1, A2 = XF + 24 - 2, XF + 24 - 1
        P = XF
        a(f"s_lshl_b32 s{S_T0}, s{S_WAVE}, 10")
        a(f"v_add_u32 v{WB}, s{S_T0}, v{L16}")
        a(f"v_add_u32 v{WB+1}, 4096, v{WB}")
        a(f"s_lshl_b32 s{S_T0}, s{S_WAVE}, 11")
        a(f"s_add_u32 s{S_T0}, s{S_T0}, 8192")
        a(f"v_add_u32 v{WB+2}, s{S_T0}, v{L16}")
        acc = lambda ti, rt: ACC + (ti * 2 + rt) * 4
        n = 0
        for m, ptr, scx in ((1, S_Q0, ' sc1'), ):
            for rt in range(2):
                p = P + 4 * n; n += 1
                for tt in range(2):
                    b = acc(2 * m + tt, rt)
                    a(f"v_cvt_pk_bf16_f32 v{p+2*tt}, v{b}, v{b+1}")
                    a(f"v_cvt_pk_bf16_f32 v{p+2*tt+1}, v{b+2}, v{b+3}")
                a(f"global_store_dwordx4 v{WB+rt}, {vr(p,4)}, s[{ptr}:{ptr+1}]{scx}")
        for tt in range(2):
            p = P + 4 * n; n += 1
            for rt in range(2):
                b = acc(4 + tt, rt)
                a(f"v_cvt_pk_bf16_f32 v{p+2*rt}, v{b}, v{b+1}")
                a(f"v_cvt_pk_bf16_f32 v{p+2*rt+1}, v{b+2}, v{b+3}")
            a(f"global_store_dwordx4 v{WB+2}, {vr(p,4)}, s[{S_Q0}:{S_Q0+1}] offset:{1024*tt} sc1")
        for rt in range(2):
            p = P + 4 * n; n += 1
            for tt in range(2):
                b = acc(tt, rt)
                a(f"v_cvt_pk_bf16_f32 v{p+2*tt}, v{b}, v{b+1}")
                a(f"v_cvt_pk_bf16_f32 v{p+2*tt+1}, v{b+2}, v{b+3}")
            a(f"global_store_dwordx4 v{WB+rt}, {vr(p,4)}, s[{S_Q1}:{S_Q1+1}]")
        if layer == 0: self.stamp()
        a("s_waitcnt vmcnt(0)")
        if layer == 0: self.stamp()
        a("s_barrier")
        lsk = self.lab('fl')
        a(f"s_cmp_lg_u32 s{S_WAVE}, 0")
        a(f"s_cbranch_scc1 {lsk}")
        a(f"v_mov_b32 v{W0}, 1")
        a("s_mov_b64 exec, 1")
        a(f"global_store_dword v{ZERO}, v{W0}, s[{S_Q2}:{S_Q2+1}] sc1")
        a("s_mov_b64 exec, -1")
        a.label(lsk)

    def st_attn(self, slot):
        a = self.a
        layer = slot
        a(f"s_lshl_b32 s{S_T0}, s{S_SEG}, 5")
        a(f"s_add_u32 s{S_T0}, s{S_T0}, s{S_RANK}")
        a(f"s_lshl_b32 s{S_T1}, s{S_T0}, 14")
        if KV_OFF[layer]:
            a(f"s_add_u32 s{S_T1}, s{S_T1}, {KV_OFF[layer]}")
        add64(a, S_Q0, S_WS, f"s{S_T1}")
        a(f"s_lshl_b32 s{S_T1}, s{S_T0}, 13")
        a(f"s_add_u32 s{S_T1}, s{S_T1}, {Q_OFF[layer]}")
        add64(a, S_Q1, S_WS, f"s{S_T1}")
        a(f"s_lshl_b32 s{S_T1}, s{S_T0}, 2")
        a(f"s_add_u32 s{S_T1}, s{S_T1}, {FKVM_OFF[layer]}")
        add64(a, S_Q2, S_WS, f"s{S_T1}")
        a(f"s_lshl_b32 s{S_T1}, s{S_T0}, 12")
        a(f"s_add_u32 s{S_T1}, s{S_T1}, {KVM_OFF[layer]}")
        add64(a, S_Q3, S_WS, f"s{S_T1}")
        QF, KM, KX, S = W0, W0 + 16, W0 + 32, W0 + 64
        T = W0 + 76
        a("s_barrier")
        a(f"s_lshl_b32 s{S_T0}, s{S_WAVE}, 12")
        a(f"v_add_u32 v{T}, s{S_T0}, v{L16}")
        a(f"s_add_u32 m0, s{S_T0}, {L_FB}")
        for j in range(4):
            a(f"global_load_lds_dwordx4 v{T}, s[{S_Q0}:{S_Q0+1}] offset:{1024*j} sc1")
        a(f"s_lshl_b32 s{S_T0}, s{S_WAVE}, 11")
        a(f"v_add_u32 v{T+1}, s{S_T0}, v{L16}")
        a(f"s_add_u32 m0, s{S_T0}, {L_FB+16384}")
        for j in range(2):
            a(f"global_load_lds_dwordx4 v{T+1}, s[{S_Q1}:{S_Q1+1}] offset:{1024*j} sc1")
        LN, L15, G = T + 2, T + 3, T + 4
        QA, KMA, VXA, VMA, THR, NEG = T + 5, T + 6, T + 7, T + 8, T + 9, T + 10
        a(f"v_lshrrev_b32 v{LN}, 4, v{L16}")
        a(f"v_and_b32 v{L15}, 15, v{LN}")
        a(f"v_lshrrev_b32 v{G}, 4, v{LN}")
        a(f"s_and_b32 s{S_T0}, s{S_WAVE}, 1")
        a(f"s_lshl_b32 s{S_T1}, s{S_T0}, 12")
        a(f"v_add_u32 v{QA}, s{S_T1}, v{FL}")
        a(f"s_lshl_b32 s{S_T1}, s{S_T0}, 4")
        a(f"v_add_u32 v{THR}, s{S_T1}, v{L15}")
        a(f"v_lshlrev_b32 v{T+11}, 2, v{G}")
        a(f"v_sub_u32 v{THR}, v{THR}, v{T+11}")
        a(f"v_and_b32 v{KMA}, 7, v{LN}")
        a(f"v_lshlrev_b32 v{KMA}, 4, v{KMA}")
        a(f"v_lshl_add_u32 v{KMA}, v{G}, 7, v{KMA}")
        a(f"v_add_u32 v{KMA}, {L_FB+24576}, v{KMA}")
        a(f"v_lshrrev_b32 v{VXA}, 3, v{L15}")
        a(f"v_lshlrev_b32 v{VXA}, 10, v{VXA}")
        a(f"v_lshl_add_u32 v{VXA}, v{G}, 8, v{VXA}")
        a(f"v_bfe_u32 v{T+11}, v{L15}, 2, 1")
        a(f"v_lshl_add_u32 v{VXA}, v{T+11}, 7, v{VXA}")
        a(f"v_and_b32 v{T+11}, 3, v{L15}")
        a(f"v_lshl_add_u32 v{VXA}, v{T+11}, 4, v{VXA}")
        a(f"s_lshr_b32 s{S_T1}, s{S_WAVE}, 1")
        a(f"s_lshl_b32 s{S_T2}, s{S_T1}, 12")
        a(f"s_add_u32 s{S_T2}, s{S_T2}, {L_FB+8192}")
        a(f"v_add_u32 v{VXA}, s{S_T2}, v{VXA}")
        a(f"v_lshrrev_b32 v{VMA}, 2, v{L15}")
        a(f"v_lshlrev_b32 v{VMA}, 7, v{VMA}")
        a(f"v_lshl_add_u32 v{VMA}, v{T+11}, 4, v{VMA}")
        a(f"v_and_b32 v{T+11}, 1, v{G}")
        a(f"v_lshl_add_u32 v{VMA}, v{T+11}, 3, v{VMA}")
        a(f"s_lshl_b32 s{S_T2}, s{S_T1}, 10")
        a(f"s_add_u32 s{S_T2}, s{S_T2}, {L_FB+26624}")
        a(f"v_add_u32 v{VMA}, s{S_T2}, v{VMA}")
        a(f"v_mov_b32 v{NEG}, 0xff800000")
        a(f"v_cmp_gt_u32 vcc, 2, v{G}")
        for i in range(4):
            a(f"v_cndmask_b32 v{S+i}, v{NEG}, v{ZERO}, vcc")
        for kt in range(2):
            for i in range(4):
                a(f"v_cmp_le_i32 vcc, {16*kt+i}, v{THR}")
                a(f"v_cndmask_b32 v{S+4+4*kt+i}, v{NEG}, v{ZERO}, vcc")
        lp = self.lab('fw')
        a(f"s_mov_b32 s{S_SPIN}, {SPIN_MAX}")
        a.label(lp)
        a(f"global_load_dword v{T+11}, v{ZERO}, s[{S_Q2}:{S_Q2+1}] sc1")
        self.spin_dec()
        a("s_waitcnt vmcnt(0)")
        a(f"v_readfirstlane_b32 s{S_T0}, v{T+11}")
        a(f"s_cmp_eq_u32 s{S_T0}, 0")
        a(f"s_cbranch_scc1 {lp}")
        a(f"s_lshl_b32 s{S_T0}, s{S_WAVE}, 10")
        a(f"v_add_u32 v{T}, s{S_T0}, v{L16}")
        a(f"s_add_u32 m0, s{S_T0}, {L_FB+24576}")
        a(f"global_load_lds_dwordx4 v{T}, s[{S_Q3}:{S_Q3+1}] sc1")
        a("s_waitcnt vmcnt(0)")
        a("s_barrier")
        q = LdsQ(a)
        for ks in range(4):
            q.issue(f"ds_read_b128 {vr(QF+4*ks,4)}, v{QA} offset:{16384+1024*ks}", ks)
            q.issue(f"ds_read_b128 {vr(KM+4*ks,4)}, v{KMA} offset:{512*ks}", ks)
            q.issue(f"ds_read_b128 {vr(KX+4*ks,4)}, v{FL} offset:{1024*ks}", ks)
            q.issue(f"ds_read_b128 {vr(KX+16+4*ks,4)}, v{FL} offset:{4096+1024*ks}", ks)
        for ks in range(4):
            q.wait(ks)
            a(f"v_mfma_f32_16x16x32_bf16 {vr(S,4)}, {vr(KM+4*ks,4)}, {vr(QF+4*ks,4)}, {vr(S,4)}")
            a(f"v_mfma_f32_16x16x32_bf16 {vr(S+4,4)}, {vr(KX+4*ks,4)}, {vr(QF+4*ks,4)}, {vr(S+4,4)}")
            a(f"v_mfma_f32_16x16x32_bf16 {vr(S+8,4)}, {vr(KX+16+4*ks,4)}, {vr(QF+4*ks,4)}, {vr(S+8,4)}")
        VX, VM = W0, W0 + 16
        a("s_nop 7")
        for kl in range(2):
            for u in range(2):
                a(f"ds_read_b128 {vr(VX+4*(2*kl+u),4)}, v{VXA} offset:{kl*2048+u*64}")
        for kl in range(2):
            for u in range(2):
                a(f"ds_read_b64 {vr(VM+2*(2*kl+u),2)}, v{VMA} offset:{kl*512+u*64}")
        M = T
        a(f"v_max3_f32 v{M}, v{S}, v{S+1}, v{S+2}")
        a(f"v_max3_f32 v{M+1}, v{S+3}, v{S+4}, v{S+5}")
        a(f"v_max3_f32 v{M+2}, v{S+6}, v{S+7}, v{S+8}")
        a(f"v_max3_f32 v{M+3}, v{S+9}, v{S+10}, v{S+11}")
        a(f"v_max3_f32 v{M}, v{M}, v{M+1}, v{M+2}")
        a(f"v_max_f32 v{M}, v{M}, v{M+3}")
        for sw in ('16', '32'):
            a(f"v_mov_b32 v{M+1}, v{M}")
            a(f"v_permlane{sw}_swap_b32 v{M+1}, v{M}")
            a(f"v_max_f32 v{M}, v{M}, v{M+1}")
        a(f"v_mul_f32 v{M}, s{S_C}, v{M}")
        for i in range(6):
            a(f"v_pk_fma_f32 {vr(S+2*i,2)}, {vr(S+2*i,2)}, s[{S_C}:{S_C+1}], {vr(M,2)} op_sel_hi:[1,1,0] neg_lo:[0,0,1] neg_hi:[0,0,1]")
        for i in range(12):
            a(f"v_exp_f32 v{S+i}, v{S+i}")
        a(f"v_pk_add_f32 {vr(M,2)}, {vr(S,2)}, {vr(S+2,2)}")
        a(f"v_pk_add_f32 {vr(M+2,2)}, {vr(S+4,2)}, {vr(S+6,2)}")
        a(f"v_pk_add_f32 {vr(M+4,2)}, {vr(S+8,2)}, {vr(S+10,2)}")
        a(f"v_pk_add_f32 {vr(M,2)}, {vr(M,2)}, {vr(M+2,2)}")
        a(f"v_pk_add_f32 {vr(M,2)}, {vr(M,2)}, {vr(M+4,2)}")
        a(f"v_add_f32 v{M}, v{M}, v{M+1}")
        for sw in ('16', '32'):
            a(f"v_mov_b32 v{M+1}, v{M}")
            a(f"v_permlane{sw}_swap_b32 v{M+1}, v{M}")
            a(f"v_add_f32 v{M}, v{M}, v{M+1}")
        a(f"v_rcp_f32 v{M}, v{M}")
        for i in range(6):
            a(f"v_pk_mul_f32 {vr(S+2*i,2)}, {vr(S+2*i,2)}, {vr(M,2)} op_sel_hi:[1,0]")
        PM, PX = M + 2, M + 4
        a(f"v_cvt_pk_bf16_f32 v{PM}, v{S}, v{S+1}")
        a(f"v_cvt_pk_bf16_f32 v{PM+1}, v{S+2}, v{S+3}")
        for i in range(4):
            a(f"v_cvt_pk_bf16_f32 v{PX+i}, v{S+4+2*i}, v{S+5+2*i}")
        a("s_waitcnt lgkmcnt(0)")
        O = KX
        for j in range(4):
            a(f"v_mfma_f32_16x16x32_bf16 {vr(O+4*j,4)}, {vr(VX+4*j,4)}, {vr(PX,4)}, 0")
        for j in range(4):
            a(f"v_mfma_f32_16x16x16_bf16 {vr(O+4*j,4)}, {vr(VM+2*j,2)}, {vr(PM,2)}, {vr(O+4*j,4)}")
        a(f"s_lshl_b32 s{S_T0}, s{S_RANK}, 13")
        a(f"s_and_b32 s{S_T1}, s{S_WAVE}, 1")
        a(f"s_lshl_b32 s{S_T1}, s{S_T1}, 12")
        a(f"s_add_u32 s{S_T0}, s{S_T0}, s{S_T1}")
        a(f"s_lshr_b32 s{S_T1}, s{S_WAVE}, 1")
        a(f"s_lshl_b32 s{S_T1}, s{S_T1}, 11")
        a(f"s_add_u32 s{S_T0}, s{S_T0}, s{S_T1}")
        a(f"s_add_u32 s{S_T0}, s{S_T0}, {X_OB + slot*256*KB}")
        add64(a, S_Q0, S_TS, f"s{S_T0}")
        OP = KX + 16
        for kl in range(2):
            p = OP + 4 * kl
            for u in range(2):
                b = O + 4 * (2 * kl + u)
                a(f"v_cvt_pk_bf16_f32 v{p+2*u}, v{b}, v{b+1}")
                a(f"v_cvt_pk_bf16_f32 v{p+2*u+1}, v{b+2}, v{b+3}")
            a(f"v_min_u32 v{p}, -2, v{p}")
            a(f"global_store_dwordx4 v{L16}, {vr(p,4)}, s[{S_Q0}:{S_Q0+1}] offset:{1024*kl}{self.sc}")

    def st_wo(self, slot, hook=None):
        a = self.a
        a(f"s_lshl_b32 s{S_T0}, s{S_A}, 15")
        a(f"s_add_u32 s{S_T0}, s{S_T0}, {X_OB + slot*256*KB}")
        add64(a, S_Q0, S_TS, f"s{S_T0}")
        add64(a, S_Q3, S_TS, X_PART + slot * P_BUF)
        self.gather_frags(W0, S_Q0)
        ACC, XF, WB = W0, W0 + 48, W0 + 72
        if hook:
            hook()
        self.gemm_res([6, 7], ACC, XF, WB, False)
        self.store_partials(ACC, S_TAG)

    def reduce_core(self, LD, T, tag_sreg):
        a = self.a
        for j in range(1, 8):
            a(f"v_add_u32 v{T+j}, {P_SP*j}, v{L16}")
        a(f"s_sub_u32 s{S_T2}, 0, s{tag_sreg}")
        lp = self.lab('rp'); lgo = self.lab('rg')
        def loads():
            for i in range(16):
                va = L16 if i < 2 else T + (i >> 1)
                a(f"global_load_dwordx4 {vr(LD+4*i,4)}, v{va}, s[{S_Q0}:{S_Q0+1}] offset:{1024*(i&1)} sc1")
        loads()
        a(f"s_mov_b32 s{S_SPIN}, {SPIN_MAX}")
        C = LD + 80
        a(f"v_lshrrev_b32 v{T}, 9, v{L16}")
        a(f"v_lshlrev_b32 v{T}, 7, v{T}")
        a(f"v_bfe_u32 v{C}, v{L16}, 6, 2")
        a(f"v_lshl_add_u32 v{T}, v{C}, 5, v{T}")
        a(f"v_bfe_u32 v{C}, v{L16}, 8, 1")
        a(f"v_lshl_add_u32 v{T}, v{C}, 4, v{T}")
        a(f"v_bfe_u32 v{C}, v{L16}, 4, 2")
        a(f"v_lshl_add_u32 v{T}, v{C}, 2, v{T}")
        a(f"s_lshl_b32 s{S_T0}, s{S_WAVE}, 9")
        a(f"s_add_u32 s{S_T0}, s{S_T0}, {L_RX}")
        a(f"v_add_u32 v{T}, s{S_T0}, v{T}")
        a(f"s_lshl_b32 s{S_T0}, s{S_WAVE}, 11")
        a(f"s_add_u32 s{S_T0}, s{S_T0}, {L_RX}")
        a(f"v_lshl_add_u32 v{T+8}, v{L16}, 1, s{S_T0}")
        a.label(lp)
        a("s_waitcnt vmcnt(0)")
        tt = 0
        for idx in range(8):
            x, y, z = (idx >> 2) & 1, (idx >> 1) & 1, idx & 1
            if (x ^ z) | (y ^ z):
                tt |= 1 << idx
        for i in range(8):
            a(f"v_bitop3_b32 v{C+i}, v{LD+8*i}, v{LD+8*i+4}, s{S_T2} bitop3:0x{tt:02x}")
        a(f"v_or3_b32 v{C}, v{C}, v{C+1}, v{C+2}")
        a(f"v_or3_b32 v{C+3}, v{C+3}, v{C+4}, v{C+5}")
        a(f"v_or3_b32 v{C}, v{C}, v{C+6}, v{C+7}")
        a(f"v_or_b32 v{C}, v{C}, v{C+3}")
        a(f"v_and_b32 v{C}, 1, v{C}")
        a(f"v_cmp_ne_u32 vcc, 0, v{C}")
        a(f"s_cbranch_vccz {lgo}")
        a("s_mov_b64 exec, vcc")
        loads()
        a("s_mov_b64 exec, -1")
        self.spin_dec()
        a(f"s_branch {lp}")
        a.label(lgo)
        for step in (4, 2, 1):
            for s_ in range(step):
                for e in range(4):
                    a(f"v_pk_add_f32 {vr(LD+8*s_+2*e,2)}, {vr(LD+8*s_+2*e,2)}, {vr(LD+8*(s_+step)+2*e,2)}")
        for i in range(4):
            a(f"ds_write2st64_b32 v{T}, v{LD+i}, v{LD+4+i} offset0:{8*i} offset1:{8*i+1}")
        a("s_waitcnt lgkmcnt(0)")
        a("s_barrier")
        a(f"ds_read_b128 {vr(LD,4)}, v{T+8}")
        a(f"ds_read_b128 {vr(LD+4,4)}, v{T+8} offset:16")
        a("s_waitcnt lgkmcnt(0)")

    def st_reduce(self, slot, seg_sreg):
        a = self.a
        sc = self.sc
        lsk = self.lab('rd')
        a(f"s_lshr_b32 s{S_T0}, s{S_RANK}, 3")
        a(f"s_cmp_lg_u32 s{S_T0}, {slot}")
        a(f"s_cbranch_scc1 {lsk}")
        a(f"s_cmp_ge_u32 s{seg_sreg}, {NSEG}")
        a(f"s_cbranch_scc1 {lsk}")
        LD = W0
        T = W0 + 64
        XR = W0 + 76
        a(f"s_and_b32 s{S_T1}, s{S_RANK}, 7")
        a(f"s_mul_i32 s{S_T0}, s{S_T1}, {P_RG}")
        a(f"s_lshl_b32 s{S_T2}, s{S_WAVE}, 11")
        a(f"s_add_u32 s{S_T0}, s{S_T0}, s{S_T2}")
        a(f"s_add_u32 s{S_T0}, s{S_T0}, {X_PART + slot*P_BUF}")
        add64(a, S_Q0, S_TS, f"s{S_T0}")
        a(f"s_lshl_b32 s{S_T1}, s{S_T1}, 2")
        a(f"s_add_u32 s{S_T1}, s{S_T1}, s{S_WAVE}")
        a(f"s_lshl_b32 s{S_T0}, s{seg_sreg}, 5")
        a(f"s_add_u32 s{S_T1}, s{S_T1}, s{S_T0}")
        a(f"s_lshl_b32 s{S_T0}, s{S_T1}, 10")
        if slot == 0:
            add64(a, S_Q1, S_X, f"s{S_T0}")
            a(f"global_load_dwordx4 {vr(XR,4)}, v{L16}, s[{S_Q1}:{S_Q1+1}]")
            add64(a, S_Q1, S_WS, f"s{S_T0}")
        else:
            add64(a, S_Q1, S_WS, f"s{S_T0}")
            a(f"v_add_u32 v{T}, {X2_OFF}, v{L16}")
            a(f"global_load_dwordx4 {vr(XR,4)}, v{T}, s[{S_Q1}:{S_Q1+1}] sc1")
        a(f"s_lshl_b32 s{S_T1}, s{S_T1}, 2")
        a(f"s_add_u32 s{S_T1}, s{S_T1}, {FX1_OFF[slot]}")
        add64(a, S_Q2, S_WS, f"s{S_T1}")
        self.reduce_core(LD, T, S_TAG)
        l0 = self.lab('dn')
        a(f"s_cmp_lg_u32 s{S_WAVE}, 0")
        a(f"s_cbranch_scc1 {l0}")
        a(f"s_lshl_b32 s{S_T0}, s{S_RANK}, 2")
        a(f"s_add_u32 s{S_T0}, s{S_T0}, {X_DONE}")
        a(f"v_mov_b32 v{T+3}, s{S_T0}")
        a(f"s_add_u32 s{S_T0}, s{S_K}, 1")
        a(f"v_mov_b32 v{T+4}, s{S_T0}")
        a("s_mov_b64 exec, 1")
        a(f"global_store_dword v{T+3}, v{T+4}, s[{S_TS}:{S_TS+1}]{sc}")
        a("s_mov_b64 exec, -1")
        a.label(l0)
        Y = LD
        X = LD + 8; D = LD + 16; P = LD + 24; TT = LD + 28
        self.pack8(P, Y)
        self.unpack8(Y, P)
        self.unpack8(X, XR)
        for e in range(4):
            a(f"v_pk_add_f32 {vr(X+2*e,2)}, {vr(X+2*e,2)}, {vr(Y+2*e,2)}")
        XP = LD + 32
        self.pack8(XP, X)
        a(f"v_add_u32 v{T}, {X1_OFF[slot]}, v{L16}")
        a(f"global_store_dwordx4 v{T}, {vr(XP,4)}, s[{S_Q1}:{S_Q1+1}] sc1")
        self.unpack8(X, XP)
        self.layernorm(X, D, P, TT)
        a(f"v_add_u32 v{T+2}, {XN1_OFF[slot]}, v{L16}")
        a(f"global_store_dwordx4 v{T+2}, {vr(P,4)}, s[{S_Q1}:{S_Q1+1}] sc1")
        a(f"v_mov_b32 v{T+4}, 1")
        a("s_waitcnt vmcnt(0)")
        a("s_mov_b64 exec, 1")
        a(f"global_store_dword v{ZERO}, v{T+4}, s[{S_Q2}:{S_Q2+1}] sc1")
        a("s_mov_b64 exec, -1")
        a.label(lsk)

    def st_wend(self):
        a = self.a
        sc = self.sc
        T = W0
        lsk = self.lab('we')
        a(f"s_min_u32 s{S_T0}, s{S_SA}, s{S_SB}")
        a(f"s_cmp_ge_u32 s{S_T0}, {NSEG}")
        a(f"s_cbranch_scc1 {lsk}")
        a(f"s_add_u32 s{S_T2}, s{S_K}, 1")
        a(f"s_cmp_lt_u32 s{S_SA}, {NSEG}")
        a(f"s_cselect_b32 s{S_T0}, s{S_T2}, 0")
        a(f"s_cmp_lt_u32 s{S_SB}, {NSEG}")
        a(f"s_cselect_b32 s{S_T1}, s{S_T2}, 0")
        a(f"v_mov_b32 v{T+2}, s{S_T0}")
        a(f"v_mov_b32 v{T+3}, s{S_T1}")
        a(f"v_and_b32 v{T}, 0x80, v{L16}")
        a(f"v_cmp_ne_u32 vcc, 0, v{T}")
        a(f"v_cndmask_b32 v{T+2}, v{T+2}, v{T+3}, vcc")
        a(f"v_bfe_u32 v{T}, v{L16}, 4, 4")
        a(f"v_lshlrev_b32 v{T}, 2, v{T}")
        a(f"v_add_u32 v{T}, {X_DONE}, v{T}")
        for i in range(4):
            a(f"v_mov_b32 v{T+4+i}, -1")
        lp = self.lab('wp')
        a(f"s_mov_b32 s{S_SPIN}, {SPIN_MAX}")
        a.label(lp)
        a(f"global_load_dword v{T+1}, v{T}, s[{S_TS}:{S_TS+1}] sc1")
        self.spin_dec()
        a("s_waitcnt vmcnt(0)")
        a(f"v_cmp_lt_u32 vcc, v{T+1}, v{T+2}")
        a(f"s_cbranch_vccnz {lp}")
        a(f"s_lshl_b32 s{S_T0}, s{S_RANK}, 13")
        a(f"s_and_b32 s{S_T1}, s{S_WAVE}, 1")
        a(f"s_lshl_b32 s{S_T1}, s{S_T1}, 12")
        a(f"s_add_u32 s{S_T0}, s{S_T0}, s{S_T1}")
        a(f"s_lshr_b32 s{S_T1}, s{S_WAVE}, 1")
        a(f"s_lshl_b32 s{S_T1}, s{S_T1}, 11")
        a(f"s_add_u32 s{S_T0}, s{S_T0}, s{S_T1}")
        a(f"s_add_u32 s{S_T0}, s{S_T0}, {X_OB}")
        add64(a, S_Q0, S_TS, f"s{S_T0}")
        a(f"v_add_u32 v{T}, {256*KB}, v{L16}")
        for kl in range(2):
            a(f"global_store_dwordx4 v{L16}, {vr(T+4,4)}, s[{S_Q0}:{S_Q0+1}] offset:{1024*kl}{sc}")
            a(f"global_store_dwordx4 v{T}, {vr(T+4,4)}, s[{S_Q0}:{S_Q0+1}] offset:{1024*kl}{sc}")
        a.label(lsk)

    def x_main(self):
        a = self.a
        DB, CA = self.DB, self.CA
        if self.stamps:
            a(f"s_lshl_b32 s{S_T0}, s{S_RANK}, 13")
            a(f"s_lshl_b32 s{S_T1}, s{S_TEAM}, 18")
            a(f"s_add_u32 s{S_T0}, s{S_T0}, s{S_T1}")
            a(f"s_add_u32 s{S_T0}, s{S_T0}, {STAMP_OFF}")
            add64(a, S_ST, S_WS, f"s{S_T0}")
        a(f"s_mov_b32 s{S_K}, {-CA}")
        lloop = self.lab('xw')
        a.label(lloop)
        self.nstamp = 0
        a(f"s_mul_i32 s{S_SA}, s{S_K}, {NX}")
        a(f"s_add_u32 s{S_SA}, s{S_SA}, s{S_XT}")
        a(f"s_sub_u32 s{S_SB}, s{S_SA}, {NX*DB}")
        assert DB == 2
        a(f"s_and_b32 s{S_TAG}, s{S_K}, 1")
        a(f"s_xor_b32 s{S_TAG}, s{S_TAG}, 1")
        def guarded(sreg, fn):
            l = self.lab('g')
            a(f"s_cmp_ge_u32 s{sreg}, {NSEG}")
            a(f"s_cbranch_scc1 {l}")
            a(f"s_mov_b32 s{S_SEG}, s{sreg}")
            fn()
            a.label(l)
        self.stamp()
        guarded(S_SA, lambda: self.st_attn(0)); self.stamp()
        guarded(S_SB, lambda: self.st_attn(1)); self.stamp()
        guarded(S_SA, lambda: self.st_wo(0)); self.stamp()
        guarded(S_SB, lambda: self.st_wo(1, self.warm_xn2)); self.stamp()
        self.st_reduce(0, S_SA)
        self.st_reduce(1, S_SB); self.stamp()
        a(f"s_sub_u32 s{S_SC}, s{S_SA}, {NX}")
        def q1st():
            self.poll_flags32(FX2_OFF, S_SEG, W0)
            a(f"s_lshl_b32 s{S_T2}, s{S_SEG}, 15")
            a(f"s_add_u32 s{S_T2}, s{S_T2}, {XN2_OFF}")
            self.st_qkv(1, S_WS, f"s{S_T2}", False, self.warm_xn0)
        guarded(S_SC, q1st); self.stamp()
        a(f"s_add_u32 s{S_SC}, s{S_SA}, {CA*NX}")
        def cst():
            a(f"s_add_u32 s{S_T2}, s{S_K}, {CA}")
            a(f"s_lshl_b32 s{S_T2}, s{S_T2}, 15")
            if X_XN0:
                a(f"s_add_u32 s{S_T2}, s{S_T2}, {X_XN0}")
            self.st_qkv(0, S_TS, f"s{S_T2}", False, self.warm_next)
        guarded(S_SC, cst)
        lw = self.lab('wnx')
        a(f"s_cmp_lt_u32 s{S_SC}, {NSEG}")
        a(f"s_cbranch_scc1 {lw}")
        self.warm_next()
        a.label(lw)
        self.st_wend()
        self.stamp()
        if self.stamps:
            ls = self.lab('ns')
            a(f"s_cmp_lg_u32 s{S_WAVE}, 3")
            a(f"s_cbranch_scc1 {ls}")
            self.flush_stamps(W0, W0 + 1)
            a.label(ls)
        a(f"s_add_u32 s{S_K}, s{S_K}, 1")
        a(f"s_cmp_lt_i32 s{S_K}, {NKW + DB}")
        lend = self.lab('xe')
        a(f"s_cbranch_scc0 {lend}")
        a(f"s_branch {lloop}")
        a.label(lend)
```

```python
from gcommon import *
from gx2 import *

GO = 9
FLG = 10
FLA = 15
Q_SP = 4096 + 128
Q_UN = 8 * Q_SP + 128
Q_BUF = 544 * KB
assert 16 * Q_UN <= Q_BUF
HOFF = [0, 16384, 32768]
S_M0 = 46
S_PFM = 25
S_MK = 52
S_Q4 = 54
S_FP = [56, 100, 42]
S_FE = 59
S_OB = 61
S_PB = 37
B_Q, B_C, B_KA, B_KB = 0, 1, 2, 3

class GenX3(GenX):
    def x3_consts(self):
        a = self.a
        T = W0
        a(f"v_and_b32 v{T}, 63, v0")
        a(f"v_lshlrev_b32 v{L16}, 4, v{T}")
        a(f"v_and_b32 v{T+1}, 15, v{T}")
        a(f"v_lshrrev_b32 v{T+2}, 4, v{T}")
        a(f"v_lshrrev_b32 v{T+3}, 5, v{T}")
        a(f"v_and_b32 v{T+4}, 31, v{T}")
        a(f"v_xor_b32 v{T+4}, v{T+4}, v{T+3}")
        a(f"s_and_b32 s{S_T0}, s{S_WAVE}, 1")
        a(f"s_lshl_b32 s{S_T0}, s{S_T0}, 3")
        a(f"v_xor_b32 v{T+4}, s{S_T0}, v{T+4}")
        a(f"v_lshlrev_b32 v{T+4}, 4, v{T+4}")
        a(f"v_lshl_add_u32 v{T+4}, v{T+3}, 10, v{T+4}")
        a(f"s_lshl_b32 s{S_T0}, s{S_WAVE}, 13")
        a(f"v_add_u32 v{GW}, s{S_T0}, v{T+4}")
        a(f"v_xor_b32 v{T+3}, v{T+1}, v{T+2}")
        a(f"v_lshlrev_b32 v{T+3}, 4, v{T+3}")
        a(f"v_lshl_add_u32 v{T+3}, v{T+1}, 9, v{T+3}")
        a(f"v_add_u32 v{FR0}, {L_FB}, v{T+3}")
        for m in range(1, 4):
            a(f"v_xor_b32 v{FR0+m}, {64*m}, v{FR0}")
        a(f"v_add_u32 v{FL}, {L_FB}, v{L16}")
        a(f"s_mul_i32 s{S_T0}, s{S_WAVE}, {WPW}")
        a(f"v_add_u32 v{WLA}, s{S_T0}, v{L16}")
        a(f"s_lshl_b32 s{S_T0}, s{S_WAVE}, 12")
        a(f"v_add_u32 v{GO}, s{S_T0}, v{L16}")
        a(f"s_add_u32 s{S_M0}, s{S_T0}, {L_FB}")
        a(f"v_mul_u32_u24 v{PSV}, {2*Q_UN}, v{T+2}")
        a(f"v_lshl_add_u32 v{PSV}, v{T+1}, 4, v{PSV}")
        a(f"s_mul_i32 s{S_T0}, s{S_A}, {Q_SP}")
        a(f"s_lshl_b32 s{S_T1}, s{S_B}, 10")
        a(f"s_add_u32 s{S_T0}, s{S_T0}, s{S_T1}")
        a(f"s_lshl_b32 s{S_T1}, s{S_WAVE}, 8")
        a(f"s_add_u32 s{S_T0}, s{S_T0}, s{S_T1}")
        a(f"v_add_u32 v{PSV}, s{S_T0}, v{PSV}")
        a(f"v_add_u32 v{PSV1}, {Q_UN}, v{PSV}")
        a(f"v_mov_b32 v{SENT}, -1")
        a(f"v_mov_b32 v{ZERO}, 0")

    def x3_init(self):
        a = self.a
        sc = self.sc
        a("v_and_b32 v16, 63, v0")
        a("v_lshlrev_b32 v1, 4, v16")
        a("v_lshlrev_b32 v2, 4, v0")
        for i in range(4):
            a(f"v_mov_b32 v{8+i}, 0")
        a(f"s_mul_i32 s{S_T0}, s{S_RANK}, {4*Q_BUF//32}")
        a(f"s_add_u32 s{S_T0}, s{S_T0}, {X_PART}")
        a(f"v_add_u32 v3, s{S_T0}, v2")
        for hh in range(4 * Q_BUF // 32 // 4096):
            a(f"global_store_dwordx4 v3, v[8:11], s[{S_TS}:{S_TS+1}]{sc}")
            a(f"v_add_u32 v3, 4096, v3")
        a(f"s_lshl_b32 s{S_T0}, s{S_RANK}, 4")
        a(f"s_add_u32 s{S_T0}, s{S_T0}, {X_OF}")
        a(f"v_mov_b32 v12, s{S_T0}")
        a(f"global_store_dwordx4 v12, v[8:11], s[{S_TS}:{S_TS+1}]{sc}")
        for it in range(4):
            lsk = self.lab('ln0')
            a(f"s_add_u32 s{S_T2}, s{S_WAVE}, {4*it}")
            a(f"s_mul_i32 s{S_T0}, s{S_T2}, {NX}")
            a(f"s_add_u32 s{S_T0}, s{S_T0}, s{S_XT}")
            a(f"s_cmp_ge_u32 s{S_T0}, {NSEG}")
            a(f"s_cbranch_scc1 {lsk}")
            a(f"s_lshl_b32 s{S_T0}, s{S_T0}, 5")
            a(f"s_add_u32 s{S_T0}, s{S_T0}, s{S_RANK}")
            a(f"s_lshl_b32 s{S_T0}, s{S_T0}, 10")
            a(f"v_add_u32 v12, s{S_T0}, v1")
            a(f"global_load_dwordx4 v[16:19], v12, s[{S_X}:{S_X+1}]")
            a("s_waitcnt vmcnt(0)")
            self.unpack8(20, 16)
            self.layernorm(20, 28, 36, 40)
            a(f"s_lshl_b32 s{S_T0}, s{S_T2}, 5")
            a(f"s_add_u32 s{S_T0}, s{S_T0}, s{S_RANK}")
            a(f"s_lshl_b32 s{S_T0}, s{S_T0}, 10")
            a(f"v_add_u32 v12, s{S_T0}, v1")
            a(f"global_store_dwordx4 v12, v[36:39], s[{S_TS}:{S_TS+1}]{sc}")
            a.label(lsk)
        a("s_waitcnt vmcnt(0)")
        a("s_barrier")

    def dl_rows(self, base, half, H, mask=None):
        DT = W0 + 88
        l = []
        for i in range(4):
            g = [f"s_add_u32 m0, s{S_M0}, {HOFF[H] + 1024*i - 512*half}" if HOFF[H] + 1024*i - 512*half >= 0 else f"s_sub_u32 m0, s{S_M0}, 512"]
            if i:
                g.append(f"v_xor_b32 v{DT+i}, {32*i + 2048*i}, v{GW}")
            l.append(g)
            ld = f"global_load_lds_dwordx4 v{DT+i if i else GW}, s[{base}:{base+1}] offset:{512*half} sc1"
            l.append([f"s_mov_b64 exec, s[{mask}:{mask+1}]", ld, "s_mov_b64 exec, -1"] if mask else [ld])
        return l

    def dl_lin(self, base, H, mask=None):
        l = [[f"s_add_u32 m0, s{S_M0}, {HOFF[H]}"]]
        for i in range(4):
            ld = f"global_load_lds_dwordx4 v{GO}, s[{base}:{base+1}] offset:{1024*i} sc1"
            l.append([f"s_mov_b64 exec, s[{mask}:{mask+1}]", ld, "s_mov_b64 exec, -1"] if mask else [ld])
        return l

    def emit(self, l):
        for g in l:
            for x in g:
                self.a(x)

    def mk(self, bit):
        return [f"s_bitcmp1_b32 s{S_PFM}, {bit}", f"s_cselect_b64 s[{S_MK}:{S_MK+1}], -1, 0"]

    def ptr(self, dst, base, seg, shift_seg, off, rank_shift=None):
        g = [f"s_lshl_b32 s{S_T0}, s{seg}, {shift_seg}"]
        if rank_shift is not None:
            g += [f"s_lshl_b32 s{S_T1}, s{S_RANK}, {rank_shift}", f"s_add_u32 s{S_T0}, s{S_T0}, s{S_T1}"]
        if off:
            g.append(f"s_add_u32 s{S_T0}, s{S_T0}, {off}")
        g += [f"s_add_u32 s{dst}, s{base}, s{S_T0}", f"s_addc_u32 s{dst+1}, s{base+1}, 0"]
        return g

    def fl_flush(self, bit, wave0):
        p = S_FP[bit]
        g = [f"s_bitcmp1_b32 s{S_FE}, {bit}", f"s_cselect_b64 exec, 1, 0",
             f"global_store_dword v{ZERO}, v{SENT}, s[{p}:{p+1}] sc1", "s_mov_b64 exec, -1", f"s_bitset0_b32 s{S_FE}, {bit}"]
        return [g]

    def gemm3(self, tiles, rows, Hs, hooks):
        a = self.a
        ACC, XF, WBUF = W0, W0 + 48, W0 + 72
        q = LdsQ(a)
        def xread(ks):
            b = XF + 8 * (ks % 3)
            k8 = ks & 7
            for rt in range(2):
                if rows:
                    q.issue(f"ds_read_b128 {vr(b+4*rt,4)}, v{FR0+(k8&3)} offset:{HOFF[Hs[ks>>3]] + rt*8192 + (k8>>2)*256}", ('x', ks))
                else:
                    q.issue(f"ds_read_b128 {vr(b+4*rt,4)}, v{FL} offset:{HOFF[Hs[ks>>3]] + (k8>>2)*8192 + rt*4096 + (k8&3)*1024}", ('x', ks))
        def wread(k64):
            for t in tiles:
                hk, hb = HX[('qkv', t, k64)]
                if hk == 'lds':
                    b = WBUF + 8 * (k64 & 1)
                    q.issue(f"ds_read_b128 {vr(b,4)}, v{WLA} offset:{hb*2048}", ('w', k64))
                    q.issue(f"ds_read_b128 {vr(b+4,4)}, v{WLA} offset:{hb*2048+1024}", ('w', k64))
        xread(0); xread(1)
        pend = []
        for ks in range(16):
            k64 = ks >> 1
            if ks + 2 < 16 and ks not in (6, 7):
                xread(ks + 2)
            if (ks & 1) == 0 and k64 + 1 < 8:
                wread(k64 + 1)
            q.wait(('x', ks))
            q.wait(('w', k64))
            if ks == 7:
                a("s_waitcnt vmcnt(0)")
                a("s_barrier")
                xread(8); xread(9)
            if ks == 15:
                a("s_barrier")
            pend += hooks.get(ks, [])
            xb = XF + 8 * (ks % 3)
            for ti, t in enumerate(tiles):
                hk, hb = HX[('qkv', t, k64)]
                if hk == 'lds':
                    hk, hb = 'v', WBUF + 8 * (k64 & 1)
                w = rr(hk, hb + 4 * (ks & 1), 4)
                for rt in range(2):
                    d = vr(ACC + (ti * 2 + rt) * 4, 4)
                    c = '0' if ks == 0 else d
                    x = vr(xb + 4 * rt, 4)
                    if t in (4, 5, 6, 7):
                        a(f"v_mfma_f32_16x16x32_bf16 {d}, {x}, {w}, {c}")
                    else:
                        a(f"v_mfma_f32_16x16x32_bf16 {d}, {w}, {x}, {c}")
                    if pend:
                        for x_ in pend.pop(0):
                            a(x_)
            assert not (pend and ks in (6, 15)), ks

    def s3_qkv(self, layer, Hs, hooks):
        a = self.a
        ACC, XF, WB = W0, W0 + 48, W0 + 72
        self.gemm3([0, 1, 2, 3, 4, 5], True, Hs, hooks)
        self.stamp()
        self.emit([self.ptr(S_Q0, S_WS, S_SEG, 19, KV_OFF[layer], 14), self.ptr(S_Q1, S_WS, S_SEG, 18, Q_OFF[layer], 13),
                   self.ptr(S_FP[0], S_WS, S_SEG, 7, FKV_OFF[layer], 2), self.ptr(S_Q2, S_WS, S_SEG, 17, KVM_OFF[layer], 12)])
        P = XF
        for i in range(4):
            a(f"v_mov_b32 v{WB+4+i}, -1")
        a(f"s_lshl_b32 s{S_T0}, s{S_WAVE}, 10")
        a(f"v_add_u32 v{WB}, s{S_T0}, v{L16}")
        a(f"v_add_u32 v{WB+1}, 4096, v{WB}")
        a(f"s_lshl_b32 s{S_T0}, s{S_WAVE}, 11")
        a(f"s_add_u32 s{S_T0}, s{S_T0}, 8192")
        a(f"v_add_u32 v{WB+2}, s{S_T0}, v{L16}")
        a("s_waitcnt vmcnt(0)")
        a(f"global_store_dwordx4 v{WB}, {vr(WB+4,4)}, s[{S_Q2}:{S_Q2+1}] sc1")
        acc = lambda ti, rt: ACC + (ti * 2 + rt) * 4
        n = 0
        for rt in range(2):
            p = P + 4 * n; n += 1
            for tt in range(2):
                b = acc(2 + tt, rt)
                a(f"v_cvt_pk_bf16_f32 v{p+2*tt}, v{b}, v{b+1}")
                a(f"v_cvt_pk_bf16_f32 v{p+2*tt+1}, v{b+2}, v{b+3}")
            a(f"global_store_dwordx4 v{WB+rt}, {vr(p,4)}, s[{S_Q0}:{S_Q0+1}] sc1")
        for tt in range(2):
            p = P + 4 * n; n += 1
            for rt in range(2):
                b = acc(4 + tt, rt)
                a(f"v_cvt_pk_bf16_f32 v{p+2*rt}, v{b}, v{b+1}")
                a(f"v_cvt_pk_bf16_f32 v{p+2*rt+1}, v{b+2}, v{b+3}")
            a(f"global_store_dwordx4 v{WB+2}, {vr(p,4)}, s[{S_Q0}:{S_Q0+1}] offset:{1024*tt} sc1")
        for rt in range(2):
            p = P + 4 * n; n += 1
            for tt in range(2):
                b = acc(tt, rt)
                a(f"v_cvt_pk_bf16_f32 v{p+2*tt}, v{b}, v{b+1}")
                a(f"v_cvt_pk_bf16_f32 v{p+2*tt+1}, v{b+2}, v{b+3}")
            a(f"global_store_dwordx4 v{WB+rt}, {vr(p,4)}, s[{S_Q1}:{S_Q1+1}]")
        a(f"s_cmp_eq_u32 s{S_WAVE}, 0")
        a(f"s_cselect_b32 s{S_T0}, 1, 0")
        a(f"s_or_b32 s{S_FE}, s{S_FE}, s{S_T0}")

    def kv_sync_flush(self):
        a = self.a
        a("s_waitcnt vmcnt(0)")
        a("s_barrier")
        self.emit(self.fl_flush(0, True))

    def s3_attn(self):
        a = self.a
        for bit, sreg, layer, H in ((B_KA, S_SA, 0, 0), (B_KB, S_SB, 1, 2)):
            l = self.lab('ka')
            a(f"s_bitcmp1_b32 s{S_PFM}, {bit}")
            a(f"s_cbranch_scc1 {l}")
            a(f"s_cmp_ge_u32 s{sreg}, {NSEG}")
            a(f"s_cbranch_scc1 {l}")
            a("s_waitcnt vmcnt(0)")
            a("s_barrier")
            self.emit([self.ptr(S_Q4, S_WS, sreg, 19, KV_OFF[layer], 14)])
            self.emit(self.dl_lin(S_Q4, H))
            a.label(l)
        KX, S, T, QF, KM, VM = W0, W0 + 32, W0 + 44, W0 + 48, W0 + 64, W0 + 80
        lskip = self.lab('as'); ldone = self.lab('ad')
        a(f"s_lshr_b32 s{S_T2}, s{S_WAVE}, 1")
        a(f"s_cmp_eq_u32 s{S_T2}, 0")
        a(f"s_cselect_b32 s{S_SEG}, s{S_SA}, s{S_SB}")
        a(f"s_cmp_ge_u32 s{S_SEG}, {NSEG}")
        a(f"s_cbranch_scc1 {lskip}")
        a(f"s_lshl_b32 s{S_SC}, s{S_T2}, 6")
        a(f"s_add_u32 s{S_SC}, s{S_SC}, s{S_SEG}")
        assert Q_OFF[1] - Q_OFF[0] == 64 << 18 and KVM_OFF[1] - KVM_OFF[0] == 64 << 17 and FKVM_OFF[1] - FKVM_OFF[0] == 64 << 9
        self.emit([self.ptr(S_Q1, S_WS, S_SC, 18, Q_OFF[0], 13), self.ptr(S_Q3, S_WS, S_SC, 17, KVM_OFF[0], 12)])
        X = KX
        LN, L15, G, KMA, VMA, THR, NEG, QA, U = X, X + 1, X + 2, X + 3, X + 4, X + 5, X + 6, X + 7, X + 8
        VXA, KXA = T, T + 1
        a(f"v_lshrrev_b32 v{LN}, 4, v{L16}")
        a(f"v_lshrrev_b32 v{G}, 4, v{LN}")
        a(f"v_and_b32 v{KMA}, 7, v{LN}")
        a(f"v_lshlrev_b32 v{KMA}, 4, v{KMA}")
        a(f"v_lshl_add_u32 v{KMA}, v{G}, 7, v{KMA}")
        def kml():
            for ks in range(4):
                a(f"global_load_dwordx4 {vr(KM+4*ks,4)}, v{KMA}, s[{S_Q3}:{S_Q3+1}] offset:{512*ks} sc1")
        def vml(va):
            for j in range(8):
                a(f"global_load_dwordx2 {vr(VM+2*j,2)}, v{va}, s[{S_Q3}:{S_Q3+1}] offset:{(j>>1)*512+(j&1)*64} sc1")
        def anysent(dst, r):
            a(f"v_max3_u32 v{dst}, v{r}, v{r+1}, v{r+2}")
            a(f"v_max3_u32 v{dst+1}, v{r+3}, v{r+4}, v{r+5}")
            for i in range(6, 14, 4):
                a(f"v_max3_u32 v{dst}, v{dst}, v{r+i}, v{r+i+1}")
                a(f"v_max3_u32 v{dst+1}, v{dst+1}, v{r+i+2}, v{r+i+3}")
            a(f"v_max3_u32 v{dst}, v{dst}, v{r+14}, v{r+15}")
            a(f"v_max_u32 v{dst}, v{dst}, v{dst+1}")
            a(f"v_cmp_eq_u32 vcc, -1, v{dst}")
        kml()
        a(f"s_and_b32 s{S_T0}, s{S_WAVE}, 1")
        a(f"s_lshl_b32 s{S_T1}, s{S_T0}, 12")
        a(f"v_add_u32 v{QA}, s{S_T1}, v{L16}")
        for ks in range(4):
            a(f"global_load_dwordx4 {vr(QF+4*ks,4)}, v{QA}, s[{S_Q1}:{S_Q1+1}] offset:{1024*ks} sc1")
        a(f"v_and_b32 v{L15}, 15, v{LN}")
        a(f"s_lshl_b32 s{S_T1}, s{S_T0}, 4")
        a(f"v_add_u32 v{THR}, s{S_T1}, v{L15}")
        a(f"v_lshlrev_b32 v{U}, 2, v{G}")
        a(f"v_sub_u32 v{THR}, v{THR}, v{U}")
        a(f"s_lshl_b32 s{S_T2}, s{S_T2}, 15")
        a(f"v_add_u32 v{KXA}, s{S_T2}, v{FL}")
        a(f"v_lshrrev_b32 v{VXA}, 3, v{L15}")
        a(f"v_lshlrev_b32 v{VXA}, 10, v{VXA}")
        a(f"v_lshl_add_u32 v{VXA}, v{G}, 8, v{VXA}")
        a(f"v_bfe_u32 v{U}, v{L15}, 2, 1")
        a(f"v_lshl_add_u32 v{VXA}, v{U}, 7, v{VXA}")
        a(f"v_and_b32 v{U}, 3, v{L15}")
        a(f"v_lshl_add_u32 v{VXA}, v{U}, 4, v{VXA}")
        a(f"s_add_u32 s{S_T2}, s{S_T2}, {L_FB+8192}")
        a(f"v_add_u32 v{VXA}, s{S_T2}, v{VXA}")
        a(f"v_lshrrev_b32 v{VMA}, 2, v{L15}")
        a(f"v_lshlrev_b32 v{VMA}, 7, v{VMA}")
        a(f"v_lshl_add_u32 v{VMA}, v{U}, 4, v{VMA}")
        a(f"v_and_b32 v{U}, 1, v{G}")
        a(f"v_lshl_add_u32 v{VMA}, v{U}, 3, v{VMA}")
        a(f"v_add_u32 v{T+2}, 2048, v{VMA}")
        a(f"v_mov_b32 v{NEG}, 0xff800000")
        a(f"v_cmp_gt_u32 vcc, 2, v{G}")
        for i in range(4):
            a(f"v_cndmask_b32 v{S+i}, v{NEG}, v{ZERO}, vcc")
        for kt in range(2):
            for i in range(4):
                a(f"v_cmp_le_i32 vcc, {16*kt+i}, v{THR}")
                a(f"v_cndmask_b32 v{S+4+4*kt+i}, v{NEG}, v{ZERO}, vcc")
        lp = self.lab('fw'); lgo = self.lab('fg')
        a(f"s_mov_b32 s{S_SPIN}, {SPIN_MAX}")
        a.label(lp)
        a("s_waitcnt vmcnt(0)")
        anysent(U, KM)
        a(f"s_cbranch_vccz {lgo}")
        a("s_mov_b64 exec, vcc")
        kml()
        a("s_mov_b64 exec, -1")
        self.spin_dec()
        a(f"s_branch {lp}")
        a.label(lgo)
        vml(T + 2)
        a("s_barrier")
        q = LdsQ(a)
        for ks in range(4):
            q.issue(f"ds_read_b128 {vr(KX+4*ks,4)}, v{KXA} offset:{1024*ks}", ks)
            q.issue(f"ds_read_b128 {vr(KX+16+4*ks,4)}, v{KXA} offset:{4096+1024*ks}", ks)
        for ks in range(4):
            q.wait(ks)
            a(f"v_mfma_f32_16x16x32_bf16 {vr(S+4,4)}, {vr(KX+4*ks,4)}, {vr(QF+4*ks,4)}, {vr(S+4,4)}")
            a(f"v_mfma_f32_16x16x32_bf16 {vr(S+8,4)}, {vr(KX+16+4*ks,4)}, {vr(QF+4*ks,4)}, {vr(S+8,4)}")
        VX = KX
        for j in range(8):
            a(f"ds_read_b128 {vr(VX+4*j,4)}, v{VXA} offset:{(j>>1)*2048+(j&1)*64}")
        for ks in range(4):
            a(f"v_mfma_f32_16x16x32_bf16 {vr(S,4)}, {vr(KM+4*ks,4)}, {vr(QF+4*ks,4)}, {vr(S,4)}")
        M = KM
        a(f"v_max3_f32 v{T}, v{S+4}, v{S+5}, v{S+6}")
        a(f"v_max3_f32 v{T+1}, v{S+7}, v{S+8}, v{S+9}")
        a(f"v_max3_f32 v{T}, v{T}, v{S+10}, v{S+11}")
        a(f"v_max_f32 v{T}, v{T}, v{T+1}")
        a(f"v_max3_f32 v{M}, v{T}, v{S}, v{S+1}")
        a(f"v_max3_f32 v{M}, v{M}, v{S+2}, v{S+3}")
        for sw in ('16', '32'):
            a(f"v_mov_b32 v{M+1}, v{M}")
            a(f"v_permlane{sw}_swap_b32 v{M+1}, v{M}")
            a(f"v_max_f32 v{M}, v{M}, v{M+1}")
        a(f"v_mul_f32 v{M}, s{S_C}, v{M}")
        for i in range(6):
            a(f"v_pk_fma_f32 {vr(S+2*i,2)}, {vr(S+2*i,2)}, s[{S_C}:{S_C+1}], {vr(M,2)} op_sel_hi:[1,1,0] neg_lo:[0,0,1] neg_hi:[0,0,1]")
        for i in range(12):
            a(f"v_exp_f32 v{S+i}, v{S+i}")
        a(f"v_pk_add_f32 {vr(M,2)}, {vr(S,2)}, {vr(S+2,2)}")
        a(f"v_pk_add_f32 {vr(M+2,2)}, {vr(S+4,2)}, {vr(S+6,2)}")
        a(f"v_pk_add_f32 {vr(M+4,2)}, {vr(S+8,2)}, {vr(S+10,2)}")
        a(f"v_pk_add_f32 {vr(M,2)}, {vr(M,2)}, {vr(M+2,2)}")
        a(f"v_pk_add_f32 {vr(M,2)}, {vr(M,2)}, {vr(M+4,2)}")
        a(f"v_add_f32 v{M}, v{M}, v{M+1}")
        for sw in ('16', '32'):
            a(f"v_mov_b32 v{M+1}, v{M}")
            a(f"v_permlane{sw}_swap_b32 v{M+1}, v{M}")
            a(f"v_add_f32 v{M}, v{M}, v{M+1}")
        a(f"v_rcp_f32 v{M}, v{M}")
        for i in range(6):
            a(f"v_pk_mul_f32 {vr(S+2*i,2)}, {vr(S+2*i,2)}, {vr(M,2)} op_sel_hi:[1,0]")
        PM, PX = S, S + 4
        a(f"v_cvt_pk_bf16_f32 v{PM}, v{S}, v{S+1}")
        a(f"v_cvt_pk_bf16_f32 v{PM+1}, v{S+2}, v{S+3}")
        for i in range(4):
            a(f"v_cvt_pk_bf16_f32 v{PX+i}, v{S+4+2*i}, v{S+5+2*i}")
        a("s_waitcnt lgkmcnt(0)")
        O = QF
        for j in range(8):
            a(f"v_mfma_f32_16x16x32_bf16 {vr(O+4*j,4)}, {vr(VX+4*j,4)}, {vr(PX,4)}, 0")
        lp = self.lab('vw'); lgo = self.lab('vg')
        a(f"s_mov_b32 s{S_SPIN}, {SPIN_MAX}")
        a.label(lp)
        a("s_waitcnt vmcnt(0)")
        anysent(T, VM)
        a(f"s_cbranch_vccz {lgo}")
        a("s_mov_b64 exec, vcc")
        vml(T + 2)
        a("s_mov_b64 exec, -1")
        self.spin_dec()
        a(f"s_branch {lp}")
        a.label(lgo)
        a(f"s_lshl_b32 s{S_T0}, s{S_RANK}, 13")
        a(f"s_and_b32 s{S_T1}, s{S_WAVE}, 1")
        a(f"s_lshl_b32 s{S_T1}, s{S_T1}, 12")
        a(f"s_add_u32 s{S_T0}, s{S_T0}, s{S_T1}")
        a(f"s_lshr_b32 s{S_T1}, s{S_WAVE}, 1")
        a(f"s_lshl_b32 s{S_T1}, s{S_T1}, 18")
        a(f"s_add_u32 s{S_T0}, s{S_T0}, s{S_T1}")
        a(f"s_add_u32 s{S_T0}, s{S_T0}, s{S_OB}")
        add64(a, S_Q0, S_TS, f"s{S_T0}")
        def ost(kl):
            p = O + 8 * kl
            for u in range(2):
                b = O + 4 * (2 * kl + u)
                a(f"v_cvt_pk_bf16_f32 v{p+2*u}, v{b}, v{b+1}")
                a(f"v_cvt_pk_bf16_f32 v{p+2*u+1}, v{b+2}, v{b+3}")
            a(f"global_store_dwordx4 v{L16}, {vr(p,4)}, s[{S_Q0}:{S_Q0+1}] offset:{1024*kl}{self.sc}")
        for j in range(8):
            a(f"v_mfma_f32_16x16x16_bf16 {vr(O+4*j,4)}, {vr(VM+2*j,2)}, {vr(PM,2)}, {vr(O+4*j,4)}")
            if j in (4, 6):
                ost((j - 4) >> 1)
        ost(2); ost(3)
        a(f"s_branch {ldone}")
        a.label(lskip)
        a("s_waitcnt vmcnt(0)")
        a("s_barrier")
        a.label(ldone)
        a(f"s_lshl_b32 s{S_T0}, s{S_RANK}, 4")
        a(f"s_lshl_b32 s{S_T1}, s{S_WAVE}, 2")
        a(f"s_add_u32 s{S_T0}, s{S_T0}, s{S_T1}")
        a(f"s_add_u32 s{S_T0}, s{S_T0}, {X_OF}")
        a(f"v_mov_b32 v{T}, s{S_T0}")
        a(f"s_add_u32 s{S_T2}, s{S_K}, 1")
        a(f"v_mov_b32 v{T+1}, s{S_T2}")
        a(f"s_lshl_b32 s{S_T0}, s{S_A}, 6")
        a(f"s_add_u32 s{S_T0}, s{S_T0}, {X_OF}")
        a(f"v_bfe_u32 v{T+2}, v{L16}, 4, 4")
        a(f"v_lshlrev_b32 v{T+2}, 2, v{T+2}")
        a(f"v_add_u32 v{T+2}, s{S_T0}, v{T+2}")
        a("s_waitcnt vmcnt(0)")
        a("s_mov_b64 exec, 1")
        a(f"global_store_dword v{T}, v{T+1}, s[{S_TS}:{S_TS+1}]{self.sc}")
        a("s_mov_b64 exec, -1")
        self.stamp()
        lp = self.lab('of')
        a(f"s_mov_b32 s{S_SPIN}, {SPIN_MAX}")
        a.label(lp)
        a(f"global_load_dword v{T+3}, v{T+2}, s[{S_TS}:{S_TS+1}] sc1")
        self.spin_dec()
        a("s_waitcnt vmcnt(0)")
        a(f"v_cmp_gt_u32 vcc, s{S_T2}, v{T+3}")
        a(f"s_cbranch_vccnz {lp}")

    def ob_ptr(self, dst, slot, half):
        return [f"s_lshl_b32 s{S_T0}, s{S_A}, 15", f"s_add_u32 s{S_T0}, s{S_T0}, s{S_OB}",
                f"s_add_u32 s{S_T0}, s{S_T0}, {slot*256*KB + half*16384}",
                f"s_add_u32 s{dst}, s{S_TS}, s{S_T0}", f"s_addc_u32 s{dst+1}, s{S_TS+1}, 0"]

    def s3_wo(self, slot, Hs, hooks):
        a = self.a
        self.gemm3([6, 7], False, Hs, hooks)
        ACC = W0
        a(f"s_add_u32 s{S_T0}, s{S_PB}, {slot*Q_BUF}")
        add64(a, S_Q3, S_TS, f"s{S_T0}")
        add64(a, S_Q2, S_Q3, 8 * Q_UN)
        a(f"s_xor_b32 s{S_T1}, s{S_TAG}, {slot}")
        for rt in range(2):
            b0, b1 = ACC + 4 * rt, ACC + 8 + 4 * rt
            a(f"v_swap_b32 v{b0+2}, v{b1}")
            a(f"v_swap_b32 v{b0+3}, v{b1+1}")
            for ih, b in enumerate((b0, b1)):
                a(f"v_and_or_b32 v{b}, v{b}, -2, s{S_T1}")
                p = (S_Q3, S_Q2)[rt]
                a(f"global_store_dwordx4 v{(PSV, PSV1)[ih]}, {vr(b,4)}, s[{p}:{p+1}]{self.sc}")

    def s3_reduce(self):
        a = self.a
        lsk = self.lab('rd'); lend = self.lab('re')
        LD, T, XR = W0, W0 + 32, W0 + 44
        RX = L_FB + HOFF[0]
        a(f"s_lshr_b32 s{S_T2}, s{S_RANK}, 4")
        a(f"s_cmp_eq_u32 s{S_T2}, 0")
        a(f"s_cselect_b32 s{S_SEG}, s{S_SA}, s{S_SB}")
        a(f"s_cmp_ge_u32 s{S_SEG}, {NSEG}")
        a(f"s_cbranch_scc1 {lsk}")
        a(f"s_and_b32 s{S_SC}, s{S_RANK}, 15")
        a(f"s_mul_i32 s{S_T0}, s{S_SC}, {Q_UN}")
        a(f"s_mul_i32 s{S_T1}, s{S_T2}, {Q_BUF}")
        a(f"s_add_u32 s{S_T0}, s{S_T0}, s{S_T1}")
        a(f"s_lshl_b32 s{S_T1}, s{S_WAVE}, 10")
        a(f"s_add_u32 s{S_T0}, s{S_T0}, s{S_T1}")
        a(f"s_add_u32 s{S_T0}, s{S_T0}, s{S_PB}")
        add64(a, S_Q0, S_TS, f"s{S_T0}")
        for j in range(1, 8):
            a(f"v_add_u32 v{T+j}, {Q_SP*j}, v{L16}")
        def loads():
            for i in range(8):
                a(f"global_load_dwordx4 {vr(LD+4*i,4)}, v{T+i if i else L16}, s[{S_Q0}:{S_Q0+1}] sc1")
        loads()
        a(f"s_lshl_b32 s{S_SC}, s{S_SC}, 1")
        a(f"s_and_b32 s{S_T0}, s{S_WAVE}, 1")
        a(f"s_add_u32 s{S_SC}, s{S_SC}, s{S_T0}")
        a(f"s_lshl_b32 s{S_T0}, s{S_SEG}, 5")
        a(f"s_add_u32 s{S_SC}, s{S_SC}, s{S_T0}")
        a(f"s_lshl_b32 s{S_T0}, s{S_SC}, 10")
        add64(a, S_Q1, S_WS, f"s{S_T0}")
        add64(a, S_Q2, S_X, f"s{S_T0}")
        add64(a, S_Q3, S_Q1, X2_OFF)
        a(f"s_cmp_eq_u32 s{S_T2}, 0")
        a(f"s_cselect_b64 s[{S_Q2}:{S_Q2+1}], s[{S_Q2}:{S_Q2+1}], s[{S_Q3}:{S_Q3+1}]")
        a(f"global_load_dwordx4 {vr(XR,4)}, v{L16}, s[{S_Q2}:{S_Q2+1}] sc1")
        a(f"s_lshl_b32 s{S_T0}, s{S_T2}, 21")
        add64(a, S_Q1, S_Q1, f"s{S_T0}")
        a(f"s_lshl_b32 s{S_T0}, s{S_T2}, 13")
        a(f"s_lshl_b32 s{S_T1}, s{S_SC}, 2")
        a(f"s_add_u32 s{S_T0}, s{S_T0}, s{S_T1}")
        a(f"s_add_u32 s{S_T0}, s{S_T0}, {FX1_OFF[0]}")
        add64(a, S_FP[1], S_WS, f"s{S_T0}")
        C = W0 + 48
        a(f"v_lshrrev_b32 v{T}, 6, v{L16}")
        a(f"v_lshlrev_b32 v{T}, 5, v{T}")
        a(f"v_bfe_u32 v{C}, v{L16}, 4, 2")
        a(f"v_lshl_add_u32 v{T}, v{C}, 2, v{T}")
        a(f"s_lshl_b32 s{S_T0}, s{S_WAVE}, 9")
        a(f"s_add_u32 s{S_T0}, s{S_T0}, {RX}")
        a(f"v_add_u32 v{T}, s{S_T0}, v{T}")
        a(f"s_lshl_b32 s{S_T0}, s{S_WAVE}, 11")
        a(f"s_add_u32 s{S_T0}, s{S_T0}, {RX}")
        a(f"v_lshl_add_u32 v{T+8}, v{L16}, 1, s{S_T0}")
        a(f"s_xor_b32 s{S_T2}, s{S_T2}, s{S_TAG}")
        a(f"s_sub_u32 s{S_T2}, 0, s{S_T2}")
        lp = self.lab('rp'); lgo = self.lab('rg')
        a(f"s_mov_b32 s{S_SPIN}, {SPIN_MAX}")
        a.label(lp)
        a("s_waitcnt vmcnt(0)")
        tt = 0
        for idx in range(8):
            x, y, z = (idx >> 2) & 1, (idx >> 1) & 1, idx & 1
            if (x ^ z) | (y ^ z):
                tt |= 1 << idx
        for i in range(4):
            a(f"v_bitop3_b32 v{C+i}, v{LD+8*i}, v{LD+8*i+4}, s{S_T2} bitop3:0x{tt:02x}")
        a(f"v_or3_b32 v{C}, v{C}, v{C+1}, v{C+2}")
        a(f"v_bitop3_b32 v{C}, v{C}, v{C+3}, 1 bitop3:0xa8")
        a(f"v_cmp_ne_u32 vcc, 0, v{C}")
        a(f"s_cbranch_vccz {lgo}")
        a("s_mov_b64 exec, vcc")
        loads()
        a("s_mov_b64 exec, -1")
        self.spin_dec()
        a(f"s_branch {lp}")
        a.label(lgo)
        for step in (4, 2, 1):
            for s_ in range(step):
                for e in range(2):
                    a(f"v_pk_add_f32 {vr(LD+4*s_+2*e,2)}, {vr(LD+4*s_+2*e,2)}, {vr(LD+4*(s_+step)+2*e,2)}")
        a(f"ds_write2_b32 v{T}, v{LD}, v{LD+2} offset0:0 offset1:4")
        a(f"v_add_u32 v{T+1}, 2048, v{T}")
        a(f"ds_write2_b32 v{T+1}, v{LD+1}, v{LD+3} offset0:0 offset1:4")
        a("s_waitcnt lgkmcnt(0)")
        a("s_barrier")
        a(f"s_cmp_ge_u32 s{S_WAVE}, 2")
        a(f"s_cbranch_scc1 {lend}")
        a(f"ds_read_b128 {vr(LD,4)}, v{T+8}")
        a(f"ds_read_b128 {vr(LD+4,4)}, v{T+8} offset:16")
        a("s_waitcnt lgkmcnt(0)")
        Y = LD
        X = LD + 8; D = LD + 16; P = LD + 24; TT = LD + 28
        self.pack8(P, Y)
        self.unpack8(Y, P)
        self.unpack8(X, XR)
        for e in range(4):
            a(f"v_pk_add_f32 {vr(X+2*e,2)}, {vr(X+2*e,2)}, {vr(Y+2*e,2)}")
        XP = C
        self.pack8(XP, X)
        a(f"v_add_u32 v{T}, {X1_OFF[0]}, v{L16}")
        a(f"global_store_dwordx4 v{T}, {vr(XP,4)}, s[{S_Q1}:{S_Q1+1}] sc1")
        self.unpack8(X, XP)
        self.layernorm(X, D, P, TT)
        a(f"v_add_u32 v{T+2}, {XN1_OFF[0]}, v{L16}")
        a(f"global_store_dwordx4 v{T+2}, {vr(P,4)}, s[{S_Q1}:{S_Q1+1}] sc1")
        a(f"s_bitset1_b32 s{S_FE}, 1")
        a.label(lsk)
        a.label(lend)

    def x3_main(self):
        a = self.a
        DB, CA = self.DB, self.CA
        if self.stamps:
            a(f"s_lshl_b32 s{S_T0}, s{S_RANK}, 13")
            a(f"s_lshl_b32 s{S_T1}, s{S_TEAM}, 18")
            a(f"s_add_u32 s{S_T0}, s{S_T0}, s{S_T1}")
            a(f"s_add_u32 s{S_T0}, s{S_T0}, {STAMP_OFF}")
            add64(a, S_ST, S_WS, f"s{S_T0}")
        S_S1, S_S2 = S_P0, S_P0 + 1
        S_NA, S_NB = S_P1, S_P1 + 1
        S_R = S_P2
        a(f"s_mov_b32 s{S_K}, {-CA}")
        a(f"s_mov_b32 s{S_PFM}, 0")
        a(f"s_mov_b32 s{S_FE}, 0")
        for p in S_FP[:2]:
            add64(a, p, S_TS, X_OF + 1024)
        lloop = self.lab('xw')
        a.label(lloop)
        self.nstamp = 0
        a(f"s_mul_i32 s{S_SA}, s{S_K}, {NX}")
        a(f"s_add_u32 s{S_SA}, s{S_SA}, s{S_XT}")
        a(f"s_sub_u32 s{S_SB}, s{S_SA}, {NX*DB}")
        a(f"s_sub_u32 s{S_S1}, s{S_SA}, {NX}")
        a(f"s_add_u32 s{S_S2}, s{S_SA}, {CA*NX}")
        a(f"s_add_u32 s{S_NA}, s{S_SA}, {NX}")
        a(f"s_add_u32 s{S_NB}, s{S_SB}, {NX}")
        a(f"s_bfe_u32 s{S_TAG}, s{S_K}, 0x10001")
        a(f"s_xor_b32 s{S_TAG}, s{S_TAG}, 1")
        a(f"s_and_b32 s{S_T0}, s{S_K}, 1")
        a(f"s_lshl_b32 s{S_OB}, s{S_T0}, 19")
        a(f"s_add_u32 s{S_OB}, s{S_OB}, {X_OB}")
        a(f"s_mul_i32 s{S_PB}, s{S_T0}, {2*Q_BUF}")
        a(f"s_add_u32 s{S_PB}, s{S_PB}, {X_PART}")
        def skip_if_invalid(sreg):
            l = self.lab('g')
            a(f"s_cmp_ge_u32 s{sreg}, {NSEG}")
            a(f"s_cbranch_scc1 {l}")
            return l
        def setbit(bit, sreg):
            return [f"s_cmp_lt_u32 s{sreg}, {NSEG}", f"s_cselect_b32 s{S_T0}, {1 << bit}, 0", f"s_or_b32 s{S_PFM}, s{S_PFM}, s{S_T0}"]
        fx2_addr = [[f"s_lshl_b32 s{S_T0}, s{S_S1}, 7", f"s_lshl_b32 s{S_T1}, s{S_WAVE}, 5", f"s_add_u32 s{S_T0}, s{S_T0}, s{S_T1}",
                     f"s_add_u32 s{S_T0}, s{S_T0}, {FX2_OFF}", f"v_bfe_u32 v{FLA}, v{L16}, 4, 3"],
                    [f"v_lshlrev_b32 v{FLA}, 2, v{FLA}", f"v_add_u32 v{FLA}, s{S_T0}, v{FLA}"]]
        self.stamp()
        a(f"s_min_u32 s{S_T0}, s{S_SA}, s{S_SB}")
        lnoatt = skip_if_invalid(S_T0)
        self.s3_attn()
        a(f"s_mov_b32 s{S_PFM}, 0")
        self.stamp()
        l = self.lab('tg')
        a(f"s_cmp_lt_u32 s{S_SA}, {NSEG}")
        a(f"s_cbranch_scc1 {l}")
        a(f"s_sub_u32 s{S_SC}, s{S_SB}, {2*NX}")
        self.poll_flags32(FX1_OFF[1], S_SC, W0)
        self.emit([self.ob_ptr(S_Q4, 1, 1)]); self.emit(self.dl_lin(S_Q4, 0))
        a.label(l)
        a(f"v_mov_b32 v{FLG}, 0")
        l = skip_if_invalid(S_SA)
        self.emit([self.ob_ptr(S_Q4, 0, 0)]); self.emit(self.dl_lin(S_Q4, 0))
        self.emit([self.ob_ptr(S_Q4, 0, 1)]); self.emit(self.dl_lin(S_Q4, 1))
        a.label(l)
        self.emit([self.ob_ptr(S_Q4, 1, 0)]); self.emit(self.dl_lin(S_Q4, 2))
        lq = skip_if_invalid(S_S1)
        self.emit(fx2_addr)
        a(f"global_load_dword v{FLG}, v{FLA}, s[{S_WS}:{S_WS+1}] sc1")
        a.label(lq)
        l = skip_if_invalid(S_SA)
        a("s_waitcnt vmcnt(8)")
        a("s_barrier")
        self.s3_wo(0, (0, 1), {7: [self.ob_ptr(S_Q4, 1, 1), [f"s_cmp_lt_u32 s{S_SB}, {NSEG}", f"s_cselect_b64 s[{S_MK}:{S_MK+1}], -1, 0"]] + self.dl_lin(S_Q4, 0, S_MK) + self.fl_flush(0, True)})
        a.label(l)
        self.stamp()
        l = skip_if_invalid(S_SB)
        lb = self.lab('wb')
        a(f"s_cmp_lt_u32 s{S_SA}, {NSEG}")
        a(f"s_cbranch_scc1 {lb}")
        a("s_waitcnt vmcnt(0)")
        a("s_barrier")
        a.label(lb)
        a(f"v_cmp_eq_u32 vcc, 0, v{FLG}")
        rq = self.ptr(S_R, S_WS, S_S1, 15, XN2_OFF)
        h0 = [rq, ["s_cmp_eq_u64 vcc, 0", f"s_cselect_b32 s{S_T0}, {1 << B_Q}, 0", f"s_or_b32 s{S_PFM}, s{S_PFM}, s{S_T0}"], self.mk(B_Q)] + self.dl_rows(S_R, 0, 1, S_MK)
        self.s3_wo(1, (2, 0), {0: h0, 7: self.dl_rows(S_R, 1, 2, S_MK)})
        a.label(l)
        self.stamp()
        self.s3_reduce()
        a.label(lnoatt)
        self.stamp()
        l = skip_if_invalid(S_S1)
        lpf = self.lab('q1p')
        a(f"s_bitcmp1_b32 s{S_PFM}, {B_Q}")
        a(f"s_cbranch_scc1 {lpf}")
        self.emit(fx2_addr)
        a("s_waitcnt vmcnt(0)")
        self.emit(self.fl_flush(1, False))
        lp = self.lab('pf')
        a(f"s_mov_b32 s{S_SPIN}, {SPIN_MAX}")
        a.label(lp)
        a(f"global_load_dword v{FLG}, v{FLA}, s[{S_WS}:{S_WS+1}] sc1")
        self.spin_dec()
        a("s_waitcnt vmcnt(0)")
        a(f"v_cmp_eq_u32 vcc, 0, v{FLG}")
        a(f"s_cbranch_vccnz {lp}")
        self.emit([rq]); self.emit(self.dl_rows(S_R, 0, 1)); self.emit(self.dl_rows(S_R, 1, 2))
        a("s_waitcnt vmcnt(4)")
        a.label(lpf)
        a("s_barrier")
        self.stamp()
        a(f"s_mov_b32 s{S_SEG}, s{S_S1}")
        rc = [f"s_add_u32 s{S_T0}, s{S_K}, {CA}", f"s_lshl_b32 s{S_T0}, s{S_T0}, 15", f"s_add_u32 s{S_R}, s{S_TS}, s{S_T0}", f"s_addc_u32 s{S_R+1}, s{S_TS+1}, 0"]
        assert X_XN0 == 0
        self.s3_qkv(1, (1, 2), {0: [rc, setbit(B_C, S_S2), self.mk(B_C)] + self.dl_rows(S_R, 0, 0, S_MK), 7: self.fl_flush(1, False) + self.dl_rows(S_R, 1, 1, S_MK)})
        a.label(l)
        self.stamp()
        lc = skip_if_invalid(S_S2)
        lpf = self.lab('cp')
        a(f"s_bitcmp1_b32 s{S_PFM}, {B_C}")
        a(f"s_cbranch_scc1 {lpf}")
        a("s_barrier")
        self.emit([rc]); self.emit(self.dl_rows(S_R, 0, 0)); self.emit(self.dl_rows(S_R, 1, 1))
        a("s_waitcnt vmcnt(4)")
        a.label(lpf)
        a("s_barrier")
        self.stamp()
        a(f"s_mov_b32 s{S_SEG}, s{S_S2}")
        hk = {7: self.fl_flush(0, True) + self.fl_flush(1, False)
                 + [setbit(B_KB, S_NB), self.mk(B_KB), self.ptr(S_Q4, S_WS, S_NB, 19, KV_OFF[1], 14)] + self.dl_lin(S_Q4, 2, S_MK)
                 + [setbit(B_KA, S_NA), self.mk(B_KA), self.ptr(S_Q4, S_WS, S_NA, 19, KV_OFF[0], 14)] + self.dl_lin(S_Q4, 0, S_MK)}
        self.s3_qkv(0, (0, 1), hk)
        lce = self.lab('ce')
        a(f"s_cmp_ge_i32 s{S_K}, -1")
        a(f"s_cbranch_scc1 {lce}")
        self.kv_sync_flush()
        a(f"s_branch {lce}")
        a.label(lc)
        a("s_waitcnt vmcnt(0)")
        self.emit(self.fl_flush(1, False))
        a("s_barrier")
        self.emit(self.fl_flush(0, True))
        a.label(lce)
        self.stamp()
        if self.stamps:
            ls = self.lab('ns')
            a(f"s_cmp_lg_u32 s{S_WAVE}, 1")
            a(f"s_cbranch_scc1 {ls}")
            a("s_waitcnt lgkmcnt(0)")
            for i in range(self.nstamp):
                a(f"v_writelane_b32 v{W0+90}, s{S_STAMP0+2*i}, {i}")
            a(f"v_lshrrev_b32 v{W0+91}, 2, v{L16}")
            a("s_mov_b64 exec, 0xffff")
            a(f"global_store_dword v{W0+91}, v{W0+90}, s[{S_ST}:{S_ST+1}]")
            a("s_mov_b64 exec, -1")
            a.label(ls)
            add64(a, S_ST, S_ST, 128)
        a(f"s_add_u32 s{S_K}, s{S_K}, 1")
        a(f"s_cmp_lt_i32 s{S_K}, {NKW + DB}")
        lend = self.lab('xe')
        a(f"s_cbranch_scc0 {lend}")
        a(f"s_branch {lloop}")
        a.label(lend)
```

```python
MB = 1 << 20
KB = 1024
NSEG = 64
H = 32
NX = 5
NKW = 13
KV_OFF = [0 * MB, 32 * MB]
Q_OFF = [64 * MB, 80 * MB]
KVM_OFF = [96 * MB, 104 * MB]
FLAG_OFF = 112 * MB
FKV_OFF = [FLAG_OFF, FLAG_OFF + 8192]
FX1_OFF = [FLAG_OFF + 16384, FLAG_OFF + 24576]
FX2_OFF = FLAG_OFF + 32768
FKVM_OFF = [FLAG_OFF + 65536, FLAG_OFF + 98304]
FLAG_BYTES = 131072
XN1_OFF = [114 * MB, 116 * MB]
X1_OFF = [118 * MB, 120 * MB]
XN2_OFF = 122 * MB
X2_OFF = 124 * MB
STAMP_OFF = 126 * MB
TEAM_OFF = 128 * MB
TEAM_BYTES = 8 * MB
R_MEMB = 0
R_PART = 65536
X_XN0 = 0
X_OB = 1024 * KB
X_OF = 960 * KB
X_PART = 2048 * KB
F_PART = 0

XN0_OFF = 140 * MB
```

```python
import sys, math, struct
from asmb import Asm, vr, ar, sr
from layout import *

KNAME = "interleave_layers__memory_aug_recurrent_mem_tr__dense_activation_gelu__prompt_kernel"
HEADER = open('interleave_layers__memory_aug_recurrent_mem_tr__dense_activation_gelu__prompt.s.ref').read().split('; Override launch')[0]

def f32hex(x):
    return '0x%08x' % struct.unpack('<I', struct.pack('<f', x))[0]

L_W = 0
WPW = 28672
L_KV = 114688
L_FB = 114688
L_MEMS = 147456
L_QK = 155648
L_OX = 159744
L_RED = 161792
L_X1 = 147456
LDS_BYTES = 163840

REGS = [('v', 112 + 8 * i) for i in range(18)] + [('a', 8 * i) for i in range(32)]

def make_homes_r():
    lds_ops = [('qkv', 4, 7), ('qkv', 5, 7), ('qkv', 4, 6), ('qkv', 5, 6), ('qkv', 4, 5), ('qkv', 5, 5), ('qkv', 5, 4),
               ('wo', 7, 1), ('wo', 6, 1), ('wo', 5, 1), ('wo', 4, 1), ('wo', 3, 1), ('wo', 2, 1), ('wo', 1, 1)]
    homes = {}
    for i, o in enumerate(lds_ops):
        homes[o] = ('lds', i)
    regs = list(REGS)
    for t in range(6):
        for ks in range(8):
            o = ('qkv', t, ks)
            if o not in homes:
                homes[o] = regs.pop(0)
    for ct in range(8):
        for ks in range(2):
            o = ('wo', ct, ks)
            if o not in homes:
                homes[o] = regs.pop(0)
    assert not regs
    return homes

def make_homes_r2():
    lds_ops = [('qkv', 0, 0), ('qkv', 1, 0), ('qkv', 2, 0), ('qkv', 3, 0), ('qkv', 0, 1), ('qkv', 1, 1), ('qkv', 2, 1)] + [('wo', ct, 1) for ct in range(7)]
    homes = {}
    for i, o in enumerate(lds_ops):
        homes[o] = ('lds', i)
    regs = list(REGS)
    for t in range(6):
        for ks in range(8):
            o = ('qkv', t, ks)
            if o not in homes:
                homes[o] = regs.pop(0)
    for ct in range(8):
        for ks in range(2):
            o = ('wo', ct, ks)
            if o not in homes:
                homes[o] = regs.pop(0)
    assert not regs
    return homes

def make_homes_x():
    homes = {}
    i = 0
    for t in (5, 7):
        for ks in range(1, 8):
            homes[('qkv', t, ks)] = ('lds', i); i += 1
    regs = list(REGS)
    for t in range(8):
        for ks in range(8):
            o = ('qkv', t, ks)
            if o not in homes:
                homes[o] = regs.pop(0)
    assert not regs
    return homes

def rr(kind, b, n):
    return vr(b, n) if kind == 'v' else ar(b, n)

S_WS = 4
S_TEAM = 6
S_RANK = 7
S_STEP = 8
S_WAVE = 9
S_DBG = 10
S_P0 = 12
S_P1 = 14
S_P2 = 16
S_P3 = 18
S_TS = 20
S_T0 = 38
S_T1 = 39
S_T2 = 40
S_SPIN = 41
S_GRANK = 47
S_ST = 48
S_STAMP0 = 64

SPIN_MAX = 1 << 21

def add64(a, dst, src, off):
    a(f"s_add_u32 s{dst}, s{src}, {off}")
    a(f"s_addc_u32 s{dst+1}, s{src+1}, 0")

class LdsQ:
    def __init__(self, a):
        self.a = a
        self.q = []
    def issue(self, text, tag=None):
        self.a(text)
        self.q.append(tag)
    def wait(self, tag):
        idx = max(i for i, t in enumerate(self.q) if t == tag) if tag in self.q else -1
        if idx < 0:
            return
        n = len(self.q) - 1 - idx
        self.a(f"s_waitcnt lgkmcnt({min(n, 15)})")
        if n <= 15:
            self.q = self.q[idx + 1:]
        else:
            self.q = self.q[len(self.q) - 15:]
    def all(self):
        self.a("s_waitcnt lgkmcnt(0)")
        self.q = []

class GenBase:
    def __init__(self, stamps=False):
        self.a = Asm()
        self.stamps = stamps
        self.nlab = 0
        self.nstamp = 0
        self.sc = ''
        self.end = 'L_end'

    def lab(self, base):
        self.nlab += 1
        return f"L_{base}_{self.nlab}"

    def stamp(self):
        if not self.stamps:
            return
        i = self.nstamp
        self.nstamp += 1
        assert i < 18
        self.a(f"s_memtime s[{S_STAMP0+2*i}:{S_STAMP0+1+2*i}]")

    def flush_stamps(self, t0, t1):
        a = self.a
        if not self.stamps:
            return
        a("s_waitcnt lgkmcnt(0)")
        for i in range(self.nstamp):
            a(f"v_mov_b32 v{t0}, s{S_STAMP0+2*i}")
            a(f"v_mov_b32 v{t1}, {4*i}")
            a(f"global_store_dword v{t1}, v{t0}, s[{S_ST}:{S_ST+1}]")
        add64(a, S_ST, S_ST, 128)

    def spin_dec(self):
        a = self.a
        a(f"s_sub_u32 s{S_SPIN}, s{S_SPIN}, 1")
        a(f"s_cmp_eq_u32 s{S_SPIN}, 0")
        a(f"s_cbranch_scc1 {self.end}")

    def dbg_atomic(self, idx_text, ret):
        a = self.a
        a(f"v_mov_b32 v1, {idx_text}")
        a("v_mov_b32 v2, 1")
        a("s_mov_b64 exec, 1")
        if ret:
            a(f"global_atomic_add v3, v1, v2, s[{S_DBG}:{S_DBG+1}] sc0 sc1")
        else:
            a(f"global_atomic_add v1, v2, s[{S_DBG}:{S_DBG+1}] sc1")
        a("s_mov_b64 exec, -1")

    def wait_dbg(self, off, target, t=17):
        a = self.a
        lw = self.lab('dw')
        a(f"v_mov_b32 v{t}, {off}")
        a(f"s_mov_b32 s{S_SPIN}, {SPIN_MAX}")
        a.label(lw)
        a(f"global_load_dword v{t+1}, v{t}, s[{S_DBG}:{S_DBG+1}] sc1")
        a("s_waitcnt vmcnt(0)")
        a(f"v_readfirstlane_b32 s{S_T0}, v{t+1}")
        self.spin_dec()
        a(f"s_cmp_lt_u32 s{S_T0}, {target}")
        a(f"s_cbranch_scc1 {lw}")

    def load_weights(self, kind, HOMES, L_KV=L_KV, L_WB=0, rot=False):
        a = self.a
        a(f"s_load_dwordx2 s[{S_P0}:{S_P0+1}], s[0:1], 16")
        a(f"s_load_dwordx2 s[{S_P1}:{S_P1+1}], s[0:1], 24")
        a(f"s_load_dwordx2 s[{S_P2}:{S_P2+1}], s[0:1], 32")
        a(f"s_load_dwordx2 s[{S_P3}:{S_P3+1}], s[0:1], 40")
        a("v_lshrrev_b32 v1, 4, v0")
        a("v_and_b32 v2, 15, v0")
        a("v_lshlrev_b32 v3, 13, v1")
        a("v_lshl_add_u32 v3, v2, 4, v3")
        a(f"s_lshl_b32 s{S_T0}, s{S_RANK}, 8")
        a(f"v_add_u32 v3, s{S_T0}, v3")
        if kind == 'r':
            a("v_lshlrev_b32 v4, 10, v1")
            a("v_lshrrev_b32 v5, 2, v2")
            a("v_lshl_add_u32 v4, v5, 8, v4")
            a("v_and_b32 v5, 3, v2")
            a("v_lshl_add_u32 v4, v5, 4, v4")
            a(f"s_lshl_b32 s{S_T0}, s{S_RANK}, 17")
            a(f"v_add_u32 v4, s{S_T0}, v4")
        else:
            a("v_lshlrev_b32 v4, 10, v1")
            a("v_lshl_add_u32 v4, v2, 4, v4")
            a(f"s_lshr_b32 s{S_T0}, s{S_RANK}, 2")
            a(f"s_lshl_b32 s{S_T0}, s{S_T0}, 19")
            a(f"s_and_b32 s{S_T1}, s{S_RANK}, 3")
            a(f"s_lshl_b32 s{S_T1}, s{S_T1}, 8")
            a(f"s_add_u32 s{S_T0}, s{S_T0}, s{S_T1}")
            a(f"v_add_u32 v4, s{S_T0}, v4")
        a("v_and_b32 v5, 3, v1")
        a("v_lshlrev_b32 v5, 5, v5")
        a("v_bfe_u32 v6, v1, 3, 1")
        a("v_lshlrev_b32 v6, 7, v6")
        a("v_xor_b32 v5, v5, v6")
        a("v_lshlrev_b32 v6, 4, v2")
        a("v_xor_b32 v5, v5, v6")
        a("v_lshl_add_u32 v5, v1, 8, v5")
        a(f"v_add_u32 v5, {L_KV}, v5")
        a("v_and_b32 v6, 63, v0")
        a("v_lshrrev_b32 v7, 4, v6")
        a("v_bfe_u32 v8, v6, 2, 2")
        a("v_and_b32 v9, 3, v6")
        a("v_lshl_add_u32 v10, v7, 3, v8")
        a("v_lshlrev_b32 v10, 8, v10")
        a(f"v_add_u32 v10, {L_KV}, v10")
        a("v_lshlrev_b32 v8, 5, v8")
        a("v_and_b32 v7, 1, v7")
        a("v_lshlrev_b32 v7, 7, v7")
        a("v_xor_b32 v8, v8, v7")
        a(f"s_lshl_b32 s{S_T0}, s{S_WAVE}, 6")
        a("v_lshlrev_b32 v12, 3, v9")
        a(f"v_add_u32 v12, s{S_T0}, v12")
        a("v_xor_b32 v12, v12, v8")
        a("v_add_u32 v6, v10, v12")
        a("v_xor_b32 v12, 32, v12")
        a("v_add_u32 v7, v10, v12")
        if kind == 'x':
            a("v_lshlrev_b32 v12, 4, v9")
            a(f"v_add_u32 v12, s{S_T0}, v12")
            a("v_xor_b32 v12, v12, v8")
            a("v_add_u32 v13, v10, v12")
            a("v_add_u32 v14, 8, v13")
        a("v_and_b32 v8, 63, v0")
        a("v_lshlrev_b32 v8, 4, v8")
        a(f"s_mul_i32 s{S_T0}, s{S_WAVE}, {WPW}")
        if L_WB:
            a(f"s_add_u32 s{S_T0}, s{S_T0}, {L_WB}")
        a(f"v_add_u32 v8, s{S_T0}, v8")
        if rot:
            a("v_lshrrev_b32 v15, 2, v2")
            a("v_lshlrev_b32 v15, 20, v15")
        a("s_waitcnt lgkmcnt(0)")
        if kind == 'r':
            chunks = [('qkv', m, ks) for m in (1, 2, 0) for ks in range(8)] + [('wo', j, ks) for ks in range(2) for j in range(4)]
        else:
            chunks = [('qkv', m, ks) for m in (1, 2, 0, 3) for ks in range(8)]
        DEPTH = 5
        LAND = 16
        TMP = 96
        def issue(ci):
            knd, x, ks = chunks[ci]
            base = LAND + 16 * (ci % DEPTH)
            for i in range(4):
                if knd == 'qkv' and x < 3:
                    sp = [S_P0, S_P1, S_P2][x]
                    off = (64 * ks + 16 * i) * 8192
                    src = 3
                elif knd == 'qkv':
                    sp = S_P3
                    off = (64 * ks + 16 * i) * 1024
                    src = 4
                else:
                    sp = S_P3
                    off = (64 * ks + 16 * i) * 1024 + x * 64
                    src = 4
                if rot and knd == 'qkv' and x < 3:
                    a(f"v_add_u32 v11, {ks << 19}, v15")
                    a(f"v_and_b32 v11, 0x3fffff, v11")
                    a(f"v_add3_u32 v11, v11, v3, s{S_T1+0 if False else S_T1}") if False else None
                    a(f"v_add_u32 v11, v11, v3")
                    if i:
                        a(f"v_add_u32 v11, {16*i*8192}, v11")
                else:
                    a(f"v_add_u32 v11, {off}, v{src}") if off else a(f"v_mov_b32 v11, v{src}")
                a(f"global_load_dwordx4 {vr(base+4*i,4)}, v11, s[{sp}:{sp+1}]")
        for ci in range(DEPTH):
            issue(ci)
        n = len(chunks)
        for ci in range(n):
            knd, x, ks = chunks[ci]
            base = LAND + 16 * (ci % DEPTH)
            sb = (ci & 1) * 16384
            inflight = min(DEPTH, n - ci)
            a(f"s_waitcnt vmcnt({4*(inflight-1)})")
            for i in range(4):
                a(f"ds_write_b128 v5, {vr(base+4*i,4)} offset:{sb + 4096*i}")
            a("s_waitcnt lgkmcnt(0)")
            if ci + DEPTH < n:
                issue(ci + DEPTH)
            a("s_barrier")
            for tt in range(2):
                op = (knd, 2 * x + tt, ks)
                hk, hb = HOMES[op]
                dk, db = (('v', TMP) if hk == 'lds' else (hk, hb))
                areg = (13 + tt) if (kind == 'x' and x == 3) else (6 + tt)
                for hbk in range(2):
                    for u in range(2):
                        off = sb + (32 * hbk + 4 * u) * 256
                        a(f"ds_read_b64_tr_b16 {rr(dk, db + 4*hbk + 2*u, 2)}, v{areg} offset:{off}")
                if hk == 'lds':
                    a("s_waitcnt lgkmcnt(0)")
                    a(f"ds_write_b128 v8, {vr(TMP,4)} offset:{hb*2048}")
                    a(f"ds_write_b128 v8, {vr(TMP+4,4)} offset:{hb*2048+1024}")
            a("s_waitcnt lgkmcnt(0)")
        a("s_barrier")

    def finish(self, launch_lines):
        body = self.a.text()
        s = HEADER + launch_lines + '\n'
        s += '.amdgcn_target "amdgcn-amd-amdhsa--gfx950"\n.text\n'
        s += f'.globl {KNAME}\n.p2align 8\n.type {KNAME},@function\n{KNAME}:\n'
        s += body
        s += 'L_end:\n    s_endpgm\n'
        s += f'''.section .rodata,"a"
.p2align 6
.amdhsa_kernel {KNAME}
  .amdhsa_next_free_vgpr 512
  .amdhsa_next_free_sgpr 102
  .amdhsa_accum_offset 256
  .amdhsa_group_segment_fixed_size 0
  .amdhsa_kernarg_size 120
  .amdhsa_user_sgpr_count 2
  .amdhsa_user_sgpr_kernarg_segment_ptr 1
  .amdhsa_system_sgpr_workgroup_id_x 1
.end_amdhsa_kernel
'''
        return s
```

```python
import sys
from gcommon import *
from gx3 import GenX3 as GenX, HX
from gr2 import GenR, HOMES as HR, R_KV, R_WB, R_SCR
from gf import GenF

TEAM_OFF_SAFE = 192 * MB
OUT = 'interleave_layers__memory_aug_recurrent_mem_tr__dense_activation_gelu__prompt.s'

class Gen(GenBase, GenX, GenR, GenF):
    DB = 2
    CA = 2
    def arrive(self, off_text):
        a = self.a
        lskip = self.lab('arr')
        a(f"s_cmp_lg_u32 s{S_WAVE}, 0")
        a(f"s_cbranch_scc1 {lskip}")
        self.dbg_atomic(off_text, False)
        a.label(lskip)

    def prologue(self):
        a = self.a
        a(f"s_cmp_ge_u32 s2, 256")
        a("s_cbranch_scc1 L_end0")
        a(f"s_load_dwordx2 s[{S_WS}:{S_WS+1}], s[0:1], 112")
        a(f"s_load_dwordx2 s[{S_DBG}:{S_DBG+1}], s[0:1], 104")
        a(f"s_getreg_b32 s{S_TEAM}, hwreg(HW_REG_XCC_ID)")
        a(f"s_and_b32 s{S_TEAM}, s{S_TEAM}, 7")
        a("v_lshrrev_b32 v1, 6, v0")
        a(f"v_readfirstlane_b32 s{S_WAVE}, v1")
        a("s_waitcnt lgkmcnt(0)")
        l1 = self.lab('reg')
        a(f"s_cmp_lg_u32 s{S_WAVE}, 0")
        a(f"s_cbranch_scc1 {l1}")
        a(f"s_lshl_b32 s{S_T0}, s2, 9")
        a(f"s_add_u32 s{S_T0}, s{S_T0}, {FLAG_OFF}")
        a("v_lshlrev_b32 v1, 3, v0")
        a(f"v_add_u32 v1, s{S_T0}, v1")
        a("v_mov_b32 v2, 0")
        a("v_mov_b32 v3, 0")
        a(f"global_store_dwordx2 v1, v[2:3], s[{S_WS}:{S_WS+1}] sc1")
        a("s_waitcnt vmcnt(0)")
        a(f"s_lshl_b32 s{S_T0}, s{S_TEAM}, 2")
        self.dbg_atomic(f"s{S_T0}", True)
        a("s_waitcnt vmcnt(0)")
        a("v_mov_b32 v4, v3")
        self.dbg_atomic("32", True)
        a("s_waitcnt vmcnt(0)")
        a("s_mov_b64 exec, 1")
        a(f"v_mov_b32 v1, {L_RED}")
        a("ds_write2_b32 v1, v4, v3 offset0:0 offset1:1")
        a("s_waitcnt lgkmcnt(0)")
        a("s_mov_b64 exec, -1")
        a.label(l1)
        a("s_barrier")
        a(f"v_mov_b32 v1, {L_RED}")
        a("ds_read_b64 v[2:3], v1")
        a("s_waitcnt lgkmcnt(0)")
        a(f"v_readfirstlane_b32 s{S_RANK}, v2")
        a(f"v_readfirstlane_b32 s{S_GRANK}, v3")
        a("s_barrier")
        a("s_branch L_start")
        a.label("L_end0")
        a("s_endpgm")
        a.label("L_start")

    def team_base(self, off):
        a = self.a
        a(f"s_lshl_b32 s{S_T0}, s{S_TEAM}, 23")
        a(f"s_add_u32 s{S_T0}, s{S_T0}, {off}")
        add64(a, S_TS, S_WS, f"s{S_T0}")

    stamp_wave = 0
    def wait_global(self, lsafe, L_RED=L_RED):
        a = self.a
        l1 = self.lab('wg'); lp = self.lab('wgp')
        a(f"s_cmp_lg_u32 s{S_WAVE}, 0")
        a(f"s_cbranch_scc1 {l1}")
        a("v_and_b32 v16, 15, v0")
        a("v_lshlrev_b32 v16, 2, v16")
        a("v_mov_b32 v17, 0")
        a(f"s_mov_b32 s{S_SPIN}, {SPIN_MAX}")
        a("s_mov_b64 exec, 0x1ff")
        a.label(lp)
        a(f"global_atomic_add v18, v16, v17, s[{S_DBG}:{S_DBG+1}] sc0 sc1")
        a("s_waitcnt vmcnt(0)")
        a(f"v_readlane_b32 s{S_T0}, v18, 8")
        self.spin_dec()
        a(f"s_cmp_lt_u32 s{S_T0}, 256")
        a(f"s_cbranch_scc1 {lp}")
        a(f"global_atomic_add v18, v16, v17, s[{S_DBG}:{S_DBG+1}] sc0 sc1")
        a("s_waitcnt vmcnt(0)")
        a("s_mov_b64 exec, 0xff")
        a("v_cmp_ne_u32 vcc, 32, v18")
        a("s_mov_b64 exec, -1")
        a("v_mov_b32 v18, vcc_lo")
        if self.force_safe:
            a("v_mov_b32 v18, 1")
        a(f"v_mov_b32 v16, {L_RED}")
        a("ds_write_b32 v16, v18")
        a("s_waitcnt lgkmcnt(0)")
        a.label(l1)
        a("s_barrier")
        a(f"v_mov_b32 v16, {L_RED}")
        a("ds_read_b32 v18, v16")
        a("s_waitcnt lgkmcnt(0)")
        a(f"v_readfirstlane_b32 s{S_T0}, v18")
        a("s_barrier")
        a(f"s_cmp_lg_u32 s{S_T0}, 0")
        a(f"s_cbranch_scc1 {lsafe}")

    def role(self, kind, safe):
        a = self.a
        cnt = 96 if safe else 64
        self.end = self.lab('end')
        if kind == 'r':
            self.r_init()
        elif kind == 'x':
            self.x_sconsts()
            self.x3_init()
        else:
            self.f_sconsts()
            self.f_init()
        a(f"s_lshl_b32 s{S_T0}, s{S_TEAM}, 2")
        a(f"s_add_u32 s{S_T0}, s{S_T0}, {cnt}")
        self.arrive(f"s{S_T0}")
        if kind == 'f':
            self.x_consts()
            self.f_load_weights()
        else:
            if kind == 'r':
                self.load_weights(kind, HR, L_KV=R_KV, L_WB=R_WB, rot=True)
            else:
                self.load_weights(kind, HX)
        if not safe:
            self.wait_global('L_safe_far_' + kind, R_SCR if kind == 'r' else L_RED)
        if kind == 'r':
            self.r_consts()
        elif kind == 'x':
            self.x3_consts()
        a(f"s_lshl_b32 s{S_T1}, s{S_TEAM}, 2")
        a(f"s_add_u32 s{S_T1}, s{S_T1}, {cnt}")
        self.wait_dbg(f"s{S_T1}", 32, 20 if kind == 'r' else 17)
        if kind == 'r':
            self.r_main()
        elif kind == 'x':
            self.x3_main()
        else:
            self.f_main()
        a.label(self.end)
        a("s_endpgm")

def gen_full(stamps, force_safe=False):
    g = Gen(stamps=stamps)
    g.force_safe = force_safe
    a = g.a
    g.prologue()
    g.team_base(TEAM_OFF)
    a(f"s_cmp_ge_u32 s{S_RANK}, 32")
    a("s_cbranch_scc1 L_norank")
    a(f"s_cmp_eq_u32 s{S_TEAM}, 7")
    a("s_cbranch_scc1 L_fast_f")
    a(f"s_cmp_ge_u32 s{S_TEAM}, 2")
    a("s_cbranch_scc1 L_fast_x")
    a("s_branch L_fast_r")
    a.label("L_norank")
    g.end = 'L_end0'
    g.wait_global('L_safe_far_r')
    a.label("L_safe_far_r")
    a("s_branch L_safe")
    a.label("L_fast_r")
    g.role('r', False)
    a.label("L_fast_x")
    g.role('x', False)
    a.label("L_fast_f")
    g.role('f', False)
    a.label("L_safe_far_x")
    a.label("L_safe_far_f")
    a.label("L_safe")
    g.sc = ' sc1'
    a(f"s_lshr_b32 s{S_TEAM}, s{S_GRANK}, 5")
    a(f"s_and_b32 s{S_RANK}, s{S_GRANK}, 31")
    g.team_base(TEAM_OFF_SAFE)
    a(f"s_cmp_eq_u32 s{S_TEAM}, 7")
    a("s_cbranch_scc1 L_safe_f")
    a(f"s_cmp_ge_u32 s{S_TEAM}, 2")
    a("s_cbranch_scc1 L_safe_x")
    g.role('r', True)
    a.label("L_safe_x")
    g.role('x', True)
    a.label("L_safe_f")
    g.role('f', True)
    return g.finish(f"; @launch grid=(256,1,1) block=(256,1,1) lds={LDS_BYTES}")

if __name__ == '__main__':
    mode = sys.argv[1]
    if mode == 'final':
        open(OUT, 'w').write(gen_full(stamps=False))
    elif mode == 'stamps':
        open('full.s', 'w').write(gen_full(stamps=True))
    elif mode == 'plain':
        open('plain.s', 'w').write(gen_full(stamps=False))
    elif mode == 'safe':
        open('fullsafe.s', 'w').write(gen_full(stamps=False, force_safe=True))
```

```python
import sys, math, struct
from asmb import Asm, vr, ar, sr
from layout import *

KNAME = "interleave_layers__memory_aug_recurrent_mem_tr__dense_activation_gelu__prompt_kernel"
HEADER = open('interleave_layers__memory_aug_recurrent_mem_tr__dense_activation_gelu__prompt.s.ref').read().split('; Override launch')[0]

def f32hex(x):
    return '0x%08x' % struct.unpack('<I', struct.pack('<f', x))[0]

L_W = 0
WPW = 28672
L_KV = 114688
L_FB = 114688
L_MEMS = 147456
L_QK = 155648
L_OX = 159744
L_RED = 161792
L_X1 = 147456
LDS_BYTES = 163840

REGS = [('v', 112 + 8 * i) for i in range(18)] + [('a', 8 * i) for i in range(32)]

def make_homes_r():
    lds_ops = [('qkv', 4, 7), ('qkv', 5, 7), ('qkv', 4, 6), ('qkv', 5, 6), ('qkv', 4, 5), ('qkv', 5, 5), ('qkv', 5, 4),
               ('wo', 7, 1), ('wo', 6, 1), ('wo', 5, 1), ('wo', 4, 1), ('wo', 3, 1), ('wo', 2, 1), ('wo', 1, 1)]
    homes = {}
    for i, o in enumerate(lds_ops):
        homes[o] = ('lds', i)
    regs = list(REGS)
    for t in range(6):
        for ks in range(8):
            o = ('qkv', t, ks)
            if o not in homes:
                homes[o] = regs.pop(0)
    for ct in range(8):
        for ks in range(2):
            o = ('wo', ct, ks)
            if o not in homes:
                homes[o] = regs.pop(0)
    assert not regs
    return homes

def make_homes_r2():
    lds_ops = [('qkv', 0, 0), ('qkv', 1, 0), ('qkv', 2, 0), ('qkv', 3, 0), ('qkv', 0, 1), ('qkv', 1, 1), ('qkv', 2, 1)] + [('wo', ct, 1) for ct in range(7)]
    homes = {}
    for i, o in enumerate(lds_ops):
        homes[o] = ('lds', i)
    regs = list(REGS)
    for t in range(6):
        for ks in range(8):
            o = ('qkv', t, ks)
            if o not in homes:
                homes[o] = regs.pop(0)
    for ct in range(8):
        for ks in range(2):
            o = ('wo', ct, ks)
            if o not in homes:
                homes[o] = regs.pop(0)
    assert not regs
    return homes

def make_homes_x():
    homes = {}
    i = 0
    for t in (5, 7):
        for ks in range(1, 8):
            homes[('qkv', t, ks)] = ('lds', i); i += 1
    regs = list(REGS)
    for t in range(8):
        for ks in range(8):
            o = ('qkv', t, ks)
            if o not in homes:
                homes[o] = regs.pop(0)
    assert not regs
    return homes

def rr(kind, b, n):
    return vr(b, n) if kind == 'v' else ar(b, n)

S_WS = 4
S_TEAM = 6
S_RANK = 7
S_STEP = 8
S_WAVE = 9
S_DBG = 10
S_P0 = 12
S_P1 = 14
S_P2 = 16
S_P3 = 18
S_TS = 20
S_T0 = 38
S_T1 = 39
S_T2 = 40
S_SPIN = 41
S_GRANK = 47
S_ST = 48
S_STAMP0 = 64

SPIN_MAX = 1 << 21

def add64(a, dst, src, off):
    a(f"s_add_u32 s{dst}, s{src}, {off}")
    a(f"s_addc_u32 s{dst+1}, s{src+1}, 0")

class LdsQ:
    def __init__(self, a):
        self.a = a
        self.q = []
    def issue(self, text, tag=None):
        self.a(text)
        self.q.append(tag)
    def wait(self, tag):
        idx = max(i for i, t in enumerate(self.q) if t == tag) if tag in self.q else -1
        if idx < 0:
            return
        n = len(self.q) - 1 - idx
        self.a(f"s_waitcnt lgkmcnt({min(n, 15)})")
        if n <= 15:
            self.q = self.q[idx + 1:]
        else:
            self.q = self.q[len(self.q) - 15:]
    def all(self):
        self.a("s_waitcnt lgkmcnt(0)")
        self.q = []

class GenBase:
    def __init__(self, stamps=False):
        self.a = Asm()
        self.stamps = stamps
        self.nlab = 0
        self.nstamp = 0
        self.sc = ''
        self.end = 'L_end'

    def lab(self, base):
        self.nlab += 1
        return f"L_{base}_{self.nlab}"

    def stamp(self):
        if not self.stamps:
            return
        i = self.nstamp
        self.nstamp += 1
        assert i < 18
        import os
        self.a(f"{'s_memrealtime' if os.environ.get('RT') else 's_memtime'} s[{S_STAMP0+2*i}:{S_STAMP0+1+2*i}]")

    def flush_stamps(self, t0, t1):
        a = self.a
        if not self.stamps:
            return
        a("s_waitcnt lgkmcnt(0)")
        for i in range(self.nstamp):
            a(f"v_mov_b32 v{t0}, s{S_STAMP0+2*i}")
            a(f"v_mov_b32 v{t1}, {4*i}")
            a(f"global_store_dword v{t1}, v{t0}, s[{S_ST}:{S_ST+1}]")
        add64(a, S_ST, S_ST, 128)

    def spin_dec(self):
        a = self.a
        a(f"s_sub_u32 s{S_SPIN}, s{S_SPIN}, 1")
        a(f"s_cmp_eq_u32 s{S_SPIN}, 0")
        a(f"s_cbranch_scc1 {self.end}")

    def dbg_atomic(self, idx_text, ret):
        a = self.a
        a(f"v_mov_b32 v1, {idx_text}")
        a("v_mov_b32 v2, 1")
        a("s_mov_b64 exec, 1")
        if ret:
            a(f"global_atomic_add v3, v1, v2, s[{S_DBG}:{S_DBG+1}] sc0 sc1")
        else:
            a(f"global_atomic_add v1, v2, s[{S_DBG}:{S_DBG+1}] sc1")
        a("s_mov_b64 exec, -1")

    def wait_dbg(self, off, target, t=17):
        a = self.a
        lw = self.lab('dw')
        a(f"v_mov_b32 v{t}, {off}")
        a(f"s_mov_b32 s{S_SPIN}, {SPIN_MAX}")
        a.label(lw)
        a(f"global_load_dword v{t+1}, v{t}, s[{S_DBG}:{S_DBG+1}] sc1")
        a("s_waitcnt vmcnt(0)")
        a(f"v_readfirstlane_b32 s{S_T0}, v{t+1}")
        self.spin_dec()
        a(f"s_cmp_lt_u32 s{S_T0}, {target}")
        a(f"s_cbranch_scc1 {lw}")

    def load_weights(self, kind, HOMES, L_KV=L_KV, L_WB=0, rot=False, after_issue=None, mid={}):
        a = self.a
        a(f"s_load_dwordx2 s[{S_P0}:{S_P0+1}], s[0:1], 16")
        a(f"s_load_dwordx2 s[{S_P1}:{S_P1+1}], s[0:1], 24")
        a(f"s_load_dwordx2 s[{S_P2}:{S_P2+1}], s[0:1], 32")
        a(f"s_load_dwordx2 s[{S_P3}:{S_P3+1}], s[0:1], 40")
        a("v_lshrrev_b32 v1, 4, v0")
        a("v_and_b32 v2, 15, v0")
        a("v_lshlrev_b32 v3, 13, v1")
        a("v_lshl_add_u32 v3, v2, 4, v3")
        a(f"s_lshl_b32 s{S_T0}, s{S_RANK}, 8")
        a(f"v_add_u32 v3, s{S_T0}, v3")
        if kind == 'r':
            a("v_lshlrev_b32 v4, 10, v1")
            a("v_lshrrev_b32 v5, 2, v2")
            a("v_lshl_add_u32 v4, v5, 8, v4")
            a("v_and_b32 v5, 3, v2")
            a("v_lshl_add_u32 v4, v5, 4, v4")
            a(f"s_lshl_b32 s{S_T0}, s{S_RANK}, 17")
            a(f"v_add_u32 v4, s{S_T0}, v4")
        else:
            a("v_lshlrev_b32 v4, 10, v1")
            a("v_lshl_add_u32 v4, v2, 4, v4")
            a(f"s_lshr_b32 s{S_T0}, s{S_RANK}, 2")
            a(f"s_lshl_b32 s{S_T0}, s{S_T0}, 19")
            a(f"s_and_b32 s{S_T1}, s{S_RANK}, 3")
            a(f"s_lshl_b32 s{S_T1}, s{S_T1}, 8")
            a(f"s_add_u32 s{S_T0}, s{S_T0}, s{S_T1}")
            a(f"v_add_u32 v4, s{S_T0}, v4")
        a("v_and_b32 v5, 3, v1")
        a("v_lshlrev_b32 v5, 5, v5")
        a("v_bfe_u32 v6, v1, 3, 1")
        a("v_lshlrev_b32 v6, 7, v6")
        a("v_xor_b32 v5, v5, v6")
        a("v_lshlrev_b32 v6, 4, v2")
        a("v_xor_b32 v5, v5, v6")
        a("v_lshl_add_u32 v5, v1, 8, v5")
        a(f"v_add_u32 v5, {L_KV}, v5")
        a("v_and_b32 v6, 63, v0")
        a("v_lshrrev_b32 v7, 4, v6")
        a("v_bfe_u32 v8, v6, 2, 2")
        a("v_and_b32 v9, 3, v6")
        a("v_lshl_add_u32 v10, v7, 3, v8")
        a("v_lshlrev_b32 v10, 8, v10")
        a(f"v_add_u32 v10, {L_KV}, v10")
        a("v_lshlrev_b32 v8, 5, v8")
        a("v_and_b32 v7, 1, v7")
        a("v_lshlrev_b32 v7, 7, v7")
        a("v_xor_b32 v8, v8, v7")
        a(f"s_lshl_b32 s{S_T0}, s{S_WAVE}, 6")
        a("v_lshlrev_b32 v12, 3, v9")
        a(f"v_add_u32 v12, s{S_T0}, v12")
        a("v_xor_b32 v12, v12, v8")
        a("v_add_u32 v6, v10, v12")
        a("v_xor_b32 v12, 32, v12")
        a("v_add_u32 v7, v10, v12")
        if kind == 'x':
            a("v_lshlrev_b32 v12, 4, v9")
            a(f"v_add_u32 v12, s{S_T0}, v12")
            a("v_xor_b32 v12, v12, v8")
            a("v_add_u32 v13, v10, v12")
            a("v_add_u32 v14, 8, v13")
        a("v_and_b32 v8, 63, v0")
        a("v_lshlrev_b32 v8, 4, v8")
        a(f"s_mul_i32 s{S_T0}, s{S_WAVE}, {WPW}")
        if L_WB:
            a(f"s_add_u32 s{S_T0}, s{S_T0}, {L_WB}")
        a(f"v_add_u32 v8, s{S_T0}, v8")
        if rot:
            a("v_lshrrev_b32 v15, 2, v2")
            a("v_lshlrev_b32 v15, 20, v15")
        a("s_waitcnt lgkmcnt(0)")
        if kind == 'r':
            chunks = [('qkv', m, ks) for m in (1, 2, 0) for ks in range(8)] + [('wo', j, ks) for ks in range(2) for j in range(4)]
        else:
            chunks = [('qkv', m, ks) for m in (1, 2, 0, 3) for ks in range(8)]
        DEPTH = 5
        LAND = 16
        TMP = 96
        def issue(ci):
            knd, x, ks = chunks[ci]
            base = LAND + 16 * (ci % DEPTH)
            for i in range(4):
                if knd == 'qkv' and x < 3:
                    sp = [S_P0, S_P1, S_P2][x]
                    off = (64 * ks + 16 * i) * 8192
                    src = 3
                elif knd == 'qkv':
                    sp = S_P3
                    off = (64 * ks + 16 * i) * 1024
                    src = 4
                else:
                    sp = S_P3
                    off = (64 * ks + 16 * i) * 1024 + x * 64
                    src = 4
                if rot and knd == 'qkv' and x < 3:
                    a(f"v_add_u32 v11, {ks << 19}, v15")
                    a(f"v_and_b32 v11, 0x3fffff, v11")
                    a(f"v_add3_u32 v11, v11, v3, s{S_T1+0 if False else S_T1}") if False else None
                    a(f"v_add_u32 v11, v11, v3")
                    if i:
                        a(f"v_add_u32 v11, {16*i*8192}, v11")
                else:
                    a(f"v_add_u32 v11, {off}, v{src}") if off else a(f"v_mov_b32 v11, v{src}")
                a(f"global_load_dwordx4 {vr(base+4*i,4)}, v11, s[{sp}:{sp+1}]")
        for ci in range(DEPTH):
            issue(ci)
        if after_issue:
            after_issue()
        n = len(chunks)
        for ci in range(n):
            knd, x, ks = chunks[ci]
            base = LAND + 16 * (ci % DEPTH)
            sb = (ci & 1) * 16384
            inflight = min(DEPTH, n - ci)
            a(f"s_waitcnt vmcnt({4*(inflight-1)})")
            for i in range(4):
                a(f"ds_write_b128 v5, {vr(base+4*i,4)} offset:{sb + 4096*i}")
            a("s_waitcnt lgkmcnt(0)")
            if ci + DEPTH < n:
                issue(ci + DEPTH)
            a("s_barrier")
            for tt in range(2):
                op = (knd, 2 * x + tt, ks)
                hk, hb = HOMES[op]
                dk, db = (('v', TMP) if hk == 'lds' else (hk, hb))
                areg = (13 + tt) if (kind == 'x' and x == 3) else (6 + tt)
                for hbk in range(2):
                    for u in range(2):
                        off = sb + (32 * hbk + 4 * u) * 256
                        a(f"ds_read_b64_tr_b16 {rr(dk, db + 4*hbk + 2*u, 2)}, v{areg} offset:{off}")
                if hk == 'lds':
                    a("s_waitcnt lgkmcnt(0)")
                    a(f"ds_write_b128 v8, {vr(TMP,4)} offset:{hb*2048}")
                    a(f"ds_write_b128 v8, {vr(TMP+4,4)} offset:{hb*2048+1024}")
            a("s_waitcnt lgkmcnt(0)")
            if ci in mid:
                mid[ci]()
        a("s_barrier")

    def finish(self, launch_lines):
        body = self.a.text()
        s = HEADER + launch_lines + '\n'
        s += '.amdgcn_target "amdgcn-amd-amdhsa--gfx950"\n.text\n'
        s += f'.globl {KNAME}\n.p2align 8\n.type {KNAME},@function\n{KNAME}:\n'
        s += body
        s += 'L_end:\n    s_endpgm\n'
        s += f'''.section .rodata,"a"
.p2align 6
.amdhsa_kernel {KNAME}
  .amdhsa_next_free_vgpr 512
  .amdhsa_next_free_sgpr 102
  .amdhsa_accum_offset 256
  .amdhsa_group_segment_fixed_size 0
  .amdhsa_kernarg_size 120
  .amdhsa_user_sgpr_count 2
  .amdhsa_user_sgpr_kernarg_segment_ptr 1
  .amdhsa_system_sgpr_workgroup_id_x 1
.end_amdhsa_kernel
'''
        return s
```

```python
from gcommon import *
from gx2 import *
Q_SP = 2048 + 128
Q_UN = 8 * Q_SP + 128
assert 16 * Q_UN <= P_BUF

S_U = 22
S_N = 23
S_J = 26
S_L = 27
S_FP = 60
S_XN1 = 61
S_X1 = 62
S_FX1 = 63

L_HL = 0
L_STG = 16384

B1R = 128
B2R = 140

def w1home(i, ks):
    return ('a', 4 * (i * 16 + ks))
def w2home(bq, c):
    n = bq * 11 + c
    return ('a', 192 + 4 * n) if n < 16 else ('v', 144 + 4 * (n - 16))

class GenF:
    def f_sconsts(self):
        a = self.a
        a(f"s_lshr_b32 s{S_U}, s{S_RANK}, 3")
        a(f"s_and_b32 s{S_J}, s{S_RANK}, 7")
        a(f"s_and_b32 s{S_L}, s{S_U}, 1")
        a(f"s_mul_i32 s{S_PSB}, s{S_J}, {P_SP}")
        a(f"s_lshl_b32 s{S_T0}, s{S_WAVE}, 9")
        a(f"s_add_u32 s{S_PSB}, s{S_PSB}, s{S_T0}")
        a(f"s_mul_i32 s{S_FP}, s{S_U}, {2*P_BUF}")
        if F_PART:
            a(f"s_add_u32 s{S_FP}, s{S_FP}, {F_PART}")
        a(f"s_cmp_eq_u32 s{S_L}, 0")
        a(f"s_cselect_b32 s{S_XN1}, {XN1_OFF[0]}, {XN1_OFF[1]}") if False else None
        a(f"s_lshl_b32 s{S_T0}, s{S_L}, 21")
        a(f"s_add_u32 s{S_XN1}, s{S_T0}, {XN1_OFF[0]}")
        a(f"s_add_u32 s{S_X1}, s{S_T0}, {X1_OFF[0]}")
        a(f"s_lshl_b32 s{S_T0}, s{S_L}, 13")
        a(f"s_add_u32 s{S_FX1}, s{S_T0}, {FX1_OFF[0]}")
        assert XN1_OFF[1] - XN1_OFF[0] == 2 * MB and X1_OFF[1] - X1_OFF[0] == 2 * MB and FX1_OFF[1] - FX1_OFF[0] == 8192
        a(f"s_load_dwordx2 s[{S_OUT}:{S_OUT+1}], s[0:1], 96")
        a(f"s_load_dwordx2 s[{S_B1}:{S_B1+1}], s[0:1], 72")
        a(f"s_load_dwordx2 s[{S_B2}:{S_B2+1}], s[0:1], 88")
        a("s_waitcnt lgkmcnt(0)")

    def f_init(self):
        a = self.a
        sc = self.sc
        a("v_lshlrev_b32 v2, 4, v0")
        for i in range(4):
            a(f"v_mov_b32 v{8+i}, 0")
        a(f"s_mul_i32 s{S_T0}, s{S_J}, {P_BUF//8}")
        a(f"s_add_u32 s{S_T0}, s{S_T0}, s{S_FP}")
        a(f"v_add_u32 v3, s{S_T0}, v2")
        for bq in range(2):
            for hh in range(18):
                a(f"v_add_u32 v12, {bq*P_BUF + hh*4096}, v3")
                a(f"global_store_dwordx4 v12, v[8:11], s[{S_TS}:{S_TS+1}]{sc}")
        a("s_waitcnt vmcnt(0)")
        a("s_barrier")

    def f_load_weights(self):
        a = self.a
        R0 = W0
        A1, A2, A3, A4 = W0 + 92, W0 + 93, W0 + 94, W0 + 95
        a(f"s_load_dwordx2 s[{S_Q0}:{S_Q0+1}], s[0:1], 64")
        a(f"s_load_dwordx2 s[{S_Q1}:{S_Q1+1}], s[0:1], 80")
        a(f"s_mul_i32 s{S_T2}, s{S_WAVE}, {16*KB}")
        a(f"s_add_u32 s{S_T2}, s{S_T2}, {L_STG}")
        a(f"v_add_u32 v{A2}, s{S_T2}, v{L16}")
        a(f"v_lshrrev_b32 v{A3}, 8, v{L16}")
        a(f"v_lshlrev_b32 v{A3}, 8, v{A3}")
        a(f"v_bfe_u32 v{A1}, v{L16}, 6, 2")
        a(f"v_lshl_add_u32 v{A3}, v{A1}, 5, v{A3}")
        a(f"v_bfe_u32 v{A1}, v{L16}, 4, 2")
        a(f"v_lshl_add_u32 v{A3}, v{A1}, 3, v{A3}")
        a(f"v_add_u32 v{A3}, s{S_T2}, v{A3}")
        a("s_waitcnt lgkmcnt(0)")
        for i in range(3):
            lzero = self.lab('f1z'); ldone = self.lab('f1d')
            for e in range(4):
                a(f"v_mov_b32 v{B1R+4*i+e}, 0")
            a(f"s_add_u32 s{S_T1}, s{S_WAVE}, {4*i}")
            a(f"s_cmp_ge_u32 s{S_T1}, 11")
            a(f"s_cbranch_scc1 {lzero}")
            a(f"s_mul_i32 s{S_T0}, s{S_J}, 11")
            a(f"s_add_u32 s{S_T0}, s{S_T0}, s{S_T1}")
            a(f"s_cmp_ge_u32 s{S_T0}, 86")
            a(f"s_cbranch_scc1 {lzero}")
            a(f"s_lshl_b32 s{S_T0}, s{S_T0}, 5")
            a(f"v_lshrrev_b32 v{A4}, 8, v{L16}")
            a(f"v_lshlrev_b32 v{A4}, 3, v{A4}")
            a(f"v_add_u32 v{A4}, s{S_T0}, v{A4}")
            a(f"global_load_dwordx2 {vr(R0+64,2)}, v{A4}, s[{S_B1}:{S_B1+1}]")
            a(f"v_lshrrev_b32 v{A1}, 5, v{L16}")
            a(f"v_mul_u32_u24 v{A1}, 2752, v{A1}")
            a(f"v_and_b32 v{A4}, 16, v{L16}")
            a(f"v_add_u32 v{A1}, v{A1}, v{A4}")
            a(f"v_add_u32 v{A1}, s{S_T0}, v{A1}")
            for ks in range(16):
                a(f"global_load_dwordx4 {vr(R0+4*ks,4)}, v{A1}, s[{S_Q0}:{S_Q0+1}]")
                if ks < 15:
                    a(f"v_add_u32 v{A1}, {32*2752}, v{A1}")
            a("s_waitcnt vmcnt(0)")
            for ks in range(16):
                a(f"ds_write_b128 v{A2}, {vr(R0+4*ks,4)} offset:{1024*ks}")
            a(f"v_lshlrev_b32 v{B1R+4*i}, 16, v{R0+64}")
            a(f"v_and_b32 v{B1R+4*i+1}, 0xffff0000, v{R0+64}")
            a(f"v_lshlrev_b32 v{B1R+4*i+2}, 16, v{R0+65}")
            a(f"v_and_b32 v{B1R+4*i+3}, 0xffff0000, v{R0+65}")
            a("s_waitcnt lgkmcnt(0)")
            for ks in range(16):
                hk, hb = w1home(i, ks)
                for u in range(2):
                    a(f"ds_read_b64_tr_b16 {rr(hk, hb+2*u, 2)}, v{A3} offset:{1024*ks+128*u}")
            a("s_waitcnt lgkmcnt(0)")
            a(f"s_branch {ldone}")
            a.label(lzero)
            for ks in range(16):
                hk, hb = w1home(i, ks)
                for e in range(4):
                    a(f"v_accvgpr_write_b32 a{hb+e}, 0")
            a.label(ldone)
        a(f"v_lshrrev_b32 v{A3}, 8, v{L16}")
        a(f"v_lshlrev_b32 v{A3}, 8, v{A3}")
        a(f"v_bfe_u32 v{A1}, v{L16}, 6, 2")
        a(f"v_lshl_add_u32 v{A3}, v{A1}, 6, v{A3}")
        a(f"v_bfe_u32 v{A1}, v{L16}, 4, 2")
        a(f"v_lshl_add_u32 v{A3}, v{A1}, 4, v{A3}")
        a(f"v_add_u32 v{A3}, s{S_T2}, v{A3}")
        a(f"global_load_dwordx4 {vr(B2R,4)}, v{L16}, s[{S_B2}:{S_B2+1}]")
        for bq in range(4):
            a(f"v_lshrrev_b32 v{A1}, 6, v{L16}")
            a(f"v_lshlrev_b32 v{A1}, 10, v{A1}")
            a(f"v_and_b32 v{A4}, 48, v{L16}")
            a(f"v_add_u32 v{A1}, v{A1}, v{A4}")
            a(f"s_mul_i32 s{S_T0}, s{S_J}, {176*1024}")
            a(f"s_lshl_b32 s{S_T1}, s{S_WAVE}, 6")
            a(f"s_add_u32 s{S_T0}, s{S_T0}, s{S_T1}")
            a(f"s_add_u32 s{S_T0}, s{S_T0}, {256*bq}")
            a(f"v_add_u32 v{A1}, s{S_T0}, v{A1}")
            for i in range(9):
                a(f"global_load_dwordx4 {vr(R0+4*i,4)}, v{A1}, s[{S_Q1}:{S_Q1+1}]")
                a(f"v_add_u32 v{A1}, {16*1024}, v{A1}")
            for i in range(8):
                a(f"v_mov_b32 v{R0+36+i}, 0")
            l7 = self.lab('f2z')
            a(f"s_cmp_eq_u32 s{S_J}, 7")
            a(f"s_cbranch_scc1 {l7}")
            for i in range(9, 11):
                a(f"global_load_dwordx4 {vr(R0+4*i,4)}, v{A1}, s[{S_Q1}:{S_Q1+1}]")
                a(f"v_add_u32 v{A1}, {16*1024}, v{A1}")
            a.label(l7)
            a("s_waitcnt vmcnt(0)")
            for i in range(11):
                a(f"ds_write_b128 v{A2}, {vr(R0+4*i,4)} offset:{1024*i}")
            a("s_waitcnt lgkmcnt(0)")
            for p in range(5):
                for ct in range(2):
                    hk, hb = w2home(bq, 2 * p + ct)
                    for u in range(2):
                        a(f"ds_read_b64_tr_b16 {rr(hk, hb+2*u, 2)}, v{A3} offset:{(2*p+u)*1024+8*ct}")
            hk, hb = w2home(bq, 10)
            for ct in range(2):
                a(f"ds_read_b64_tr_b16 {rr(hk, hb+2*ct, 2)}, v{A3} offset:{10*1024+8*ct}")
            a("s_waitcnt lgkmcnt(0)")
        a("s_barrier")

    def f_main(self):
        a = self.a
        sc = self.sc
        if self.stamps:
            a(f"s_lshl_b32 s{S_T0}, s{S_RANK}, 13")
            a(f"s_lshl_b32 s{S_T1}, s{S_TEAM}, 18")
            a(f"s_add_u32 s{S_T0}, s{S_T0}, s{S_T1}")
            a(f"s_add_u32 s{S_T0}, s{S_T0}, {STAMP_OFF}")
            add64(a, S_ST, S_WS, f"s{S_T0}")
        S_PF = 50
        S_FL = 100
        S_K3 = 44
        S_M0 = 46
        A = [16, 44]; XF = 28; U = 56; P = 68; K1, HW, FLGN, ONE, L8, FLA = 74, 75, 76, 77, 78, 79
        Hh = 16; AC = [80, 40]; DT = 112
        XR = 124; FLV = 15
        a(f"v_mov_b32 v{WLA}, -1")
        a(f"v_lshrrev_b32 v{PSV1}, 8, v{L16}")
        a(f"v_mul_u32_u24 v{PSV}, {2*Q_UN}, v{PSV1}")
        a(f"v_and_b32 v{PSV1}, 0xf0, v{L16}")
        a(f"v_add_u32 v{PSV}, v{PSV}, v{PSV1}")
        a(f"s_mul_i32 s{S_T0}, s{S_J}, {Q_SP}")
        a(f"s_lshl_b32 s{S_T1}, s{S_WAVE}, 8")
        a(f"s_add_u32 s{S_T0}, s{S_T0}, s{S_T1}")
        a(f"v_add_u32 v{PSV}, s{S_T0}, v{PSV}")
        a(f"v_add_u32 v{PSV1}, {Q_UN}, v{PSV}")
        S_R1, S_UB, S_MV, S_2C = S_P0, S_P1, S_P2, S_P3
        a(f"s_mov_b32 s{S_2C}, 0")
        self.row_frag_consts()
        k1 = -2.0 * math.log2(math.e) * math.sqrt(2.0 / math.pi)
        k3 = k1 * 0.044715
        a(f"s_mov_b32 s{S_K3}, {f32hex(k3)}")
        a(f"s_mov_b32 s{S_K3+1}, {f32hex(k3)}")
        a(f"s_lshl_b32 s{S_M0}, s{S_WAVE}, 13")
        a(f"s_add_u32 s{S_M0}, s{S_M0}, {L_FB}")
        a(f"s_mov_b64 s[{S_PF}:{S_PF+1}], 0")
        a(f"s_mov_b64 s[{S_FL}:{S_FL+1}], 0")
        a(f"v_mov_b32 v{FLV}, {FX2_OFF + 8192}")
        a(f"s_mov_b32 s{S_N}, 0")
        def flag_addr(seg_add):
            a(f"s_add_u32 s{S_T0}, s{S_SEG}, {seg_add}")
            a(f"s_lshl_b32 s{S_T0}, s{S_T0}, 7")
            a(f"s_add_u32 s{S_T0}, s{S_T0}, s{S_FX1}")
            a(f"s_lshl_b32 s{S_T1}, s{S_WAVE}, 5")
            a(f"s_add_u32 s{S_T0}, s{S_T0}, s{S_T1}")
            a(f"v_bfe_u32 v{FLA}, v{L16}, 4, 3")
            a(f"v_lshlrev_b32 v{FLA}, 2, v{FLA}")
            a(f"v_add_u32 v{FLA}, s{S_T0}, v{FLA}")
        def rows_ptr(seg_add):
            a(f"s_add_u32 s{S_T0}, s{S_SEG}, {seg_add}")
            a(f"s_lshl_b32 s{S_T0}, s{S_T0}, 15")
            a(f"s_add_u32 s{S_T0}, s{S_T0}, s{S_XN1}")
            add64(a, S_Q0, S_WS, f"s{S_T0}")
        def flag_flush():
            a("s_waitcnt vmcnt(0)")
            a(f"s_mov_b64 exec, s[{S_FL}:{S_FL+1}]")
            a(f"global_store_dword v{FLV}, v{WLA}, s[{S_WS}:{S_WS+1}] sc1")
            a("s_mov_b64 exec, -1")
            a(f"s_mov_b64 s[{S_FL}:{S_FL+1}], 0")
        lloop = self.lab('fj')
        a.label(lloop)
        self.nstamp = 0
        self.stamp()
        a(f"s_lshr_b32 s{S_SEG}, s{S_U}, 1")
        a(f"s_lshl_b32 s{S_T0}, s{S_N}, 1")
        a(f"s_add_u32 s{S_SEG}, s{S_SEG}, s{S_T0}")
        a(f"s_and_b32 s{S_PAR}, s{S_N}, 1")
        a(f"s_mul_i32 s{S_PAR}, s{S_PAR}, {P_BUF}")
        a(f"s_add_u32 s{S_PAR}, s{S_PAR}, s{S_FP}")
        a(f"s_bfe_u32 s{S_TAG}, s{S_N}, 0x10001")
        a(f"s_xor_b32 s{S_TAG}, s{S_TAG}, 1")
        lpf = self.lab('fpf')
        a(f"s_cmp_lg_u64 s[{S_PF}:{S_PF+1}], 0")
        a(f"s_cbranch_scc1 {lpf}")
        flag_flush()
        flag_addr(0)
        lp = self.lab('pf')
        a(f"s_mov_b32 s{S_SPIN}, {SPIN_MAX}")
        a.label(lp)
        a(f"global_load_dword v{FLGN}, v{FLA}, s[{S_WS}:{S_WS+1}] sc1")
        self.spin_dec()
        a("s_waitcnt vmcnt(0)")
        a(f"v_cmp_eq_u32 vcc, 0, v{FLGN}")
        a(f"s_cbranch_vccnz {lp}")
        rows_ptr(0)
        for l in self.dma_rows(S_Q0, S_M0, DT):
            a(l)
        a("s_waitcnt vmcnt(0)")
        a.label(lpf)
        l2c = self.lab('f2c')
        a(f"s_cmp_eq_u32 s{S_2C}, 0")
        a(f"s_cbranch_scc1 {l2c}")
        a("s_waitcnt vmcnt(1)")
        a(f"s_mov_b32 s{S_2C}, 0")
        a.label(l2c)
        a("s_barrier")
        self.stamp()
        a(f"v_mov_b32 v{K1}, {f32hex(k1)}")
        a(f"v_mov_b32 v{ONE}, 1.0")
        a(f"v_lshrrev_b32 v{L8}, 1, v{L16}")
        a(f"s_lshl_b32 s{S_T0}, s{S_WAVE}, 9")
        a(f"v_add_u32 v{HW}, s{S_T0}, v{L8}")
        a(f"v_mov_b32 v{FLGN}, 0")
        def gelu(rt):
            X = A[rt]; l = []
            def up(i):
                r = []
                for e in range(2):
                    r.append(f"v_cvt_pk_bf16_f32 v{P+2*i+e}, v{X+4*i+2*e}, v{X+4*i+2*e+1}")
                for e in range(2):
                    r.append(f"v_lshlrev_b32 v{X+4*i+2*e}, 16, v{P+2*i+e}")
                    r.append(f"v_and_b32 v{X+4*i+2*e+1}, 0xffff0000, v{P+2*i+e}")
                return r
            for i in range(3):
                l += up(i)
                for e in range(4):
                    l.append(f"v_add_f32 v{X+4*i+e}, v{X+4*i+e}, v{B1R+4*i+e}")
                l += up(i)
            for e in range(12):
                l.append(f"v_mul_f32 v{U+e}, v{X+e}, v{X+e}")
            for e in range(12):
                l.append(f"v_fma_f32 v{U+e}, v{U+e}, s{S_K3}, v{K1}")
            for e in range(12):
                l.append(f"v_mul_f32 v{U+e}, v{U+e}, v{X+e}")
            for e in range(12):
                l.append(f"v_exp_f32 v{U+e}, v{U+e}")
            for e in range(12):
                l.append(f"v_add_f32 v{U+e}, 1.0, v{U+e}")
            for e in range(12):
                l.append(f"v_rcp_f32 v{U+e}, v{U+e}")
            for e in range(12):
                l.append(f"v_mul_f32 v{U+e}, v{U+e}, v{X+e}")
            for e in range(6):
                l.append(f"v_cvt_pk_bf16_f32 v{P+e}, v{U+2*e}, v{U+2*e+1}")
            for i in range(3):
                l.append(f"ds_write_b64 v{HW}, {vr(P+2*i,2)} offset:{L_HL+rt*6144+2048*i}")
            return l
        class Mix:
            def __init__(s, fill, budget=12, delay=2):
                s.fill = list(fill); s.budget = budget; s.delay = delay; s.acc = 0
            def slot(s):
                if s.delay > 0:
                    s.delay -= 1; return
                s.acc += s.budget
                while s.fill:
                    c = 8 if s.fill[0].split()[0] in ('v_exp_f32', 'v_rcp_f32') else 4
                    if c > s.acc: break
                    s.acc -= c
                    a(s.fill.pop(0))
            def flush(s):
                for l in s.fill: a(l)
                s.fill = []
        q = LdsQ(a)
        def xread(n):
            rt, ks = n >> 4, n & 15
            q.issue(f"ds_read_b128 {vr(XF+4*(n&3),4)}, v{FR0+(ks&3)} offset:{rt*16384+(ks>>2)*256}", n)
        for n in range(3):
            xread(n)
        mix = Mix([])
        for n in range(32):
            rt, ks = n >> 4, n & 15
            if n + 3 < 32:
                xread(n + 3)
            if n == 16:
                mix = Mix(gelu(0)[:-3], budget=14)
            q.wait(n)
            for i in range(3):
                hk, hb = w1home(i, ks)
                d = vr(A[rt] + 4 * i, 4)
                a(f"v_mfma_f32_16x16x32_bf16 {d}, {rr(hk,hb,4)}, {vr(XF+4*(n&3),4)}, {'0' if ks == 0 else d}")
                mix.slot()
            if n == 10:
                flag_flush()
                a(f"s_lshl_b32 s{S_T1}, s{S_J}, 1")
                a(f"s_and_b32 s{S_T0}, s{S_WAVE}, 1")
                a(f"s_add_u32 s{S_T1}, s{S_T1}, s{S_T0}")
                a(f"s_lshr_b32 s{S_T0}, s{S_WAVE}, 1")
                a(f"s_lshl_b32 s{S_T0}, s{S_T0}, 4")
                a(f"s_add_u32 s{S_T1}, s{S_T1}, s{S_T0}")
                a(f"s_lshl_b32 s{S_T0}, s{S_SEG}, 5")
                a(f"s_add_u32 s{S_T1}, s{S_T1}, s{S_T0}")
                a(f"s_lshl_b32 s{S_T0}, s{S_T1}, 10")
                add64(a, S_Q1, S_WS, f"s{S_T0}")
                add64(a, S_Q2, S_OUT, f"s{S_T0}")
            if n == 11:
                a(f"v_add_u32 v{DT}, s{S_X1}, v{L16}")
                a(f"global_load_dwordx4 {vr(XR,4)}, v{DT}, s[{S_Q1}:{S_Q1+1}] sc1")
                a(f"s_lshl_b32 s{S_T1}, s{S_T1}, 2")
                a(f"v_mov_b32 v{FLV}, s{S_T1}")
                a(f"v_add_u32 v{FLV}, {FX2_OFF}, v{FLV}")
            if n == 12:
                flag_addr(2)
            if n == 13:
                rows_ptr(2)
                add64(a, S_Q3, S_TS, f"s{S_PAR}")
            if n == 14:
                add64(a, S_R1, S_Q3, 8 * Q_UN)
                a(f"s_lshr_b32 s{S_T0}, s{S_WAVE}, 1")
                a(f"s_lshl_b32 s{S_T0}, s{S_T0}, 3")
                a(f"s_add_u32 s{S_T0}, s{S_T0}, s{S_J}")
                a(f"s_mul_i32 s{S_T0}, s{S_T0}, {Q_UN}")
                a(f"s_and_b32 s{S_T1}, s{S_WAVE}, 1")
                a(f"s_lshl_b32 s{S_T1}, s{S_T1}, 10")
                a(f"s_add_u32 s{S_T0}, s{S_T0}, s{S_T1}")
                add64(a, S_UB, S_Q3, f"s{S_T0}")
        mix.flush()
        for l in gelu(0)[-3:]:
            a(l)
        a("s_waitcnt lgkmcnt(0)")
        a("s_barrier")
        self.stamp()
        def stores(rt, bqs):
            l = []
            p = (S_Q3, S_R1)[rt]
            b = AC[rt] + 8 * bqs[0]
            for d, s_ in ((0, 0), (1, 4), (4, 2), (2, 8), (3, 12)):
                l.append(f"v_cvt_pk_bf16_f32 v{b+d}, v{b+s_}, v{b+s_+1}")
            l.append(f"v_and_or_b32 v{b}, v{b}, -2, s{S_TAG}")
            l.append(f"global_store_dwordx4 v{PSV}, {vr(b,4)}, s[{p}:{p+1}] offset:{512*bqs[0]}{sc}")
            for d, s_ in ((5, 6), (6, 10), (7, 14)):
                l.append(f"v_cvt_pk_bf16_f32 v{b+d}, v{b+s_}, v{b+s_+1}")
            l.append(f"v_and_or_b32 v{b+4}, v{b+4}, -2, s{S_TAG}")
            l.append(f"global_store_dwordx4 v{PSV1}, {vr(b+4,4)}, s[{p}:{p+1}] offset:{512*bqs[0]}{sc}")
            return l
        def uloads(LD):
            l = [f"s_mov_b64 s[{S_MV}:{S_MV+1}], s[{S_UB}:{S_UB+1}]"]
            for i in range(8):
                t = f"global_load_dwordx4 {vr(LD+4*i,4)}, v{L16}, s[{S_MV}:{S_MV+1}] sc1"
                if i < 7:
                    t += f"\ns_add_u32 s{S_MV}, s{S_MV}, {Q_SP}\ns_addc_u32 s{S_MV+1}, s{S_MV+1}, 0"
                l.append(t)
            return l
        def am(t):
            for x_ in t.split('\n'):
                a(x_)
        pend = []
        for rt in range(2):
            q = LdsQ(a)
            if rt == 1:
                a(f"v_cmp_eq_u32 vcc, 0, v{FLGN}")
            for p in range(5):
                q.issue(f"ds_read2_b64 {vr(Hh+4*p,4)}, v{L8} offset0:{(L_HL+rt*6144+1024*p)//8 - (512 if rt else 0)} offset1:{(L_HL+rt*6144+1024*p)//8+64 - (512 if rt else 0)}" if False else
                        f"ds_read2st64_b64 {vr(Hh+4*p,4)}, v{L8} offset0:{(L_HL+rt*6144)//512+2*p} offset1:{(L_HL+rt*6144)//512+2*p+1}", p)
            q.issue(f"ds_read_b64 {vr(Hh+20,2)}, v{L8} offset:{L_HL+rt*6144+5120}", 5)
            if rt == 0:
                a(f"global_load_dword v{FLGN}, v{FLA}, s[{S_WS}:{S_WS+1}] sc1")
                mix = Mix(gelu(1)[:-3], budget=12, delay=0)
                for _ in range(8):
                    mix.slot()
            else:
                a(f"s_cmp_eq_u64 vcc, 0")
                a(f"s_cselect_b64 s[{S_PF}:{S_PF+1}], -1, 0")
                dl = self.dma_rows(S_Q0, S_M0, DT)
                fl = []
                for l in dl:
                    if l.startswith('global_load_lds'):
                        fl.append(f"s_mov_b64 exec, s[{S_PF}:{S_PF+1}]\n{l}\ns_mov_b64 exec, -1")
                    else:
                        fl.append(l)
                mix = Mix(fl, budget=4, delay=8)
            for g in range(2):
                n = 0
                for p in range(6):
                    q.wait(p)
                    for bq in (2 * g, 2 * g + 1):
                        for ct in range(2):
                            d = vr(AC[rt] + 8 * bq + 4 * ct, 4)
                            if p < 5:
                                hk, hb = w2home(bq, 2 * p + ct)
                                a(f"v_mfma_f32_16x16x32_bf16 {d}, {vr(Hh+4*p,4)}, {rr(hk,hb,4)}, {'0' if p == 0 else d}")
                            else:
                                hk, hb = w2home(bq, 10)
                                a(f"v_mfma_f32_16x16x16_bf16 {d}, {vr(Hh+20,2)}, {rr(hk,hb+2*ct,2)}, {d}")
                            mix.slot()
                            n += 1
                            if pend and n >= 3 and n % 4 == 3:
                                a(pend.pop(0)); a(pend.pop(0))
                assert not pend
                pend = stores(rt, (2 * g, 2 * g + 1))
            mix.flush()
            if rt == 0:
                for l in gelu(1)[-3:]:
                    a(l)
                a("s_waitcnt lgkmcnt(0)")
                a("s_barrier")
                self.stamp()
        for l in pend:
            a(l)
        self.stamp()
        a(f"global_load_dword v{FLGN}, v{FLA}, s[{S_WS}:{S_WS+1}] sc1")
        LD = W0
        for t in uloads(LD):
            am(t)
        T, C, SU, TM = 48, 52, 80, 88
        a(f"v_lshrrev_b32 v{T}, 6, v{L16}")
        a(f"v_lshlrev_b32 v{T}, 5, v{T}")
        a(f"v_bfe_u32 v{C}, v{L16}, 4, 2")
        a(f"v_lshl_add_u32 v{T}, v{C}, 2, v{T}")
        a(f"s_lshr_b32 s{S_T0}, s{S_WAVE}, 1")
        a(f"s_lshl_b32 s{S_T0}, s{S_T0}, 12")
        a(f"s_and_b32 s{S_T1}, s{S_WAVE}, 1")
        a(f"s_lshl_b32 s{S_T1}, s{S_T1}, 10")
        a(f"s_add_u32 s{S_T0}, s{S_T0}, s{S_T1}")
        a(f"s_add_u32 s{S_T0}, s{S_T0}, {L_RX}")
        a(f"v_add_u32 v{T}, s{S_T0}, v{T}")
        a(f"v_add_u32 v{T+1}, 2048, v{T}")
        a(f"s_lshl_b32 s{S_T0}, s{S_WAVE}, 11")
        a(f"s_add_u32 s{S_T0}, s{S_T0}, {L_RX}")
        a(f"v_lshl_add_u32 v{T+2}, v{L16}, 1, s{S_T0}")
        a(f"s_sub_u32 s{S_T2}, 0, s{S_TAG}")
        tt = 0
        for idx in range(8):
            x, y, z = (idx >> 2) & 1, (idx >> 1) & 1, idx & 1
            if (x ^ z) | (y ^ z):
                tt |= 1 << idx
        lp = self.lab('rp'); lgo = self.lab('rg')
        a(f"s_mov_b32 s{S_SPIN}, {SPIN_MAX}")
        a.label(lp)
        for i in range(8):
            a(f"s_waitcnt vmcnt({7-i})")
            self.unpack8(SU if i == 0 else TM, LD + 4 * i)
            if i:
                for e in range(4):
                    a(f"v_pk_add_f32 {vr(SU+2*e,2)}, {vr(SU+2*e,2)}, {vr(TM+2*e,2)}")
            if i & 1:
                a(f"v_bitop3_b32 v{C+(i>>1)}, v{LD+4*i-4}, v{LD+4*i}, s{S_T2} bitop3:0x{tt:02x}")
        a(f"v_or3_b32 v{C}, v{C}, v{C+1}, v{C+2}")
        a(f"v_bitop3_b32 v{C}, v{C}, v{C+3}, 1 bitop3:0xa8")
        a(f"v_cmp_ne_u32 vcc, 0, v{C}")
        a(f"s_cbranch_vccz {lgo}")
        a("s_mov_b64 exec, vcc")
        for t in uloads(LD):
            am(t)
        a("s_mov_b64 exec, -1")
        self.spin_dec()
        a(f"s_branch {lp}")
        a.label(lgo)
        a(f"v_cmp_eq_u32 vcc, 0, v{FLGN}")
        for r in range(2):
            a(f"ds_write2_b32 v{T+r}, v{SU+r}, v{SU+2+r} offset0:0 offset1:4")
            a(f"ds_write2_b32 v{T+r}, v{SU+4+r}, v{SU+6+r} offset0:128 offset1:132")
        a("s_nop 1")
        lsk = self.lab('f2s')
        a(f"s_or_b64 vcc, vcc, s[{S_PF}:{S_PF+1}]")
        a(f"s_cbranch_scc1 {lsk}")
        for l in self.dma_rows(S_Q0, S_M0, DT):
            a(l)
        a(f"s_mov_b64 s[{S_PF}:{S_PF+1}], -1")
        a(f"s_mov_b32 s{S_2C}, 1")
        a.label(lsk)
        a("s_waitcnt lgkmcnt(0)")
        a("s_barrier")
        LD = W0
        a(f"ds_read_b128 {vr(LD,4)}, v{T+2}")
        a(f"ds_read_b128 {vr(LD+4,4)}, v{T+2} offset:16")
        a("s_waitcnt lgkmcnt(0)")
        T = W0 + 64
        self.stamp()
        Y = LD
        X = LD + 8; D = LD + 16; P = LD + 24; TT = LD + 28
        self.pack8(P, Y)
        self.unpack8(Y, P)
        self.unpack8(X, B2R)
        for e in range(4):
            a(f"v_pk_add_f32 {vr(Y+2*e,2)}, {vr(Y+2*e,2)}, {vr(X+2*e,2)}")
        self.pack8(P, Y)
        self.unpack8(Y, P)
        self.unpack8(X, XR)
        for e in range(4):
            a(f"v_pk_add_f32 {vr(X+2*e,2)}, {vr(X+2*e,2)}, {vr(Y+2*e,2)}")
        XP = LD + 32
        self.pack8(XP, X)
        l1 = self.lab('fl1'); l2 = self.lab('fl2')
        a(f"s_cmp_lg_u32 s{S_L}, 0")
        a(f"s_cbranch_scc1 {l1}")
        a(f"v_add_u32 v{T}, {X2_OFF}, v{L16}")
        a(f"global_store_dwordx4 v{T}, {vr(XP,4)}, s[{S_Q1}:{S_Q1+1}] sc1")
        self.unpack8(X, XP)
        self.layernorm(X, D, P, TT)
        a(f"v_add_u32 v{T+1}, {XN2_OFF}, v{L16}")
        a(f"global_store_dwordx4 v{T+1}, {vr(P,4)}, s[{S_Q1}:{S_Q1+1}] sc1")
        a(f"s_mov_b64 s[{S_FL}:{S_FL+1}], 1")
        a(f"s_branch {l2}")
        a.label(l1)
        a(f"global_store_dwordx4 v{L16}, {vr(XP,4)}, s[{S_Q2}:{S_Q2+1}]")
        a.label(l2)
        self.stamp()
        if self.stamps:
            ls = self.lab('ns')
            a(f"s_cmp_lg_u32 s{S_WAVE}, 3")
            a(f"s_cbranch_scc1 {ls}")
            self.flush_stamps(W0 + 70, W0 + 71)
            a.label(ls)
        a(f"s_add_u32 s{S_N}, s{S_N}, 1")
        a(f"s_cmp_lt_u32 s{S_N}, 32")
        a(f"s_cbranch_scc1 {lloop}")
        flag_flush()
```

```python
import os
from gcommon import *

HOMES = make_homes_r2()

R_MEMS = 0
R_QK = 8192
R_OX = 12288
R_SCR = 14336
R_KV = 16384
R_WB = 49152

S_MB = [22, 24]
S_PRD = 26
S_PST = [28, 50, 52, 54]
S_KVG = 30
S_KVM = 32
S_FKV = 34
S_FKVM = 36
S_PUBM = 42
S_C = 44
S_W4K = 46
S_FM = 56
S_FM1 = 58
S_DM = 100

L16, IDX, QKW, TRA, OWA, WLA, PST, KMO, VMO, PUB, SENT, POLL, MA1, ZERO, TRK, NEGM, FLG = 1, 2, 3, 4, 5, 6, 7, 8, 9, 10, 11, 12, 13, 16, 17, 18, 19
B = [20 + 8 * i for i in range(11)]
X4 = 108

class GenR:
    def r_init(self):
        a = self.a
        sc = self.sc
        LAY = S_TEAM
        a(f"s_lshl_b32 s{S_W4K}, s{S_WAVE}, 12")
        a(f"s_lshl_b32 s{S_T0}, s{LAY}, 25")
        a(f"s_lshl_b32 s{S_T1}, s{S_RANK}, 14")
        a(f"s_add_u32 s{S_T0}, s{S_T0}, s{S_T1}")
        a(f"s_add_u32 s{S_T0}, s{S_T0}, s{S_W4K}")
        add64(a, S_KVG, S_WS, f"s{S_T0}")
        a(f"s_lshl_b32 s{S_T0}, s{LAY}, 23")
        a(f"s_lshl_b32 s{S_T1}, s{S_RANK}, 12")
        a(f"s_add_u32 s{S_T0}, s{S_T0}, s{S_T1}")
        a(f"s_add_u32 s{S_T0}, s{S_T0}, {KVM_OFF[0]}")
        add64(a, S_KVM, S_WS, f"s{S_T0}")
        a(f"s_lshl_b32 s{S_T0}, s{LAY}, 13")
        a(f"s_lshl_b32 s{S_T1}, s{S_RANK}, 2")
        a(f"s_add_u32 s{S_T0}, s{S_T0}, s{S_T1}")
        a(f"s_add_u32 s{S_T1}, s{S_T0}, {FKV_OFF[0]}")
        add64(a, S_FKV, S_WS, f"s{S_T1}")
        a(f"s_lshl_b32 s{S_T0}, s{S_T0}, 2")
        a(f"s_lshl_b32 s{S_T1}, s{S_WAVE}, 2")
        a(f"s_add_u32 s{S_T0}, s{S_T0}, s{S_T1}")
        a(f"s_add_u32 s{S_T1}, s{S_T0}, {FKVM_OFF[0]}")
        add64(a, S_FKVM, S_WS, f"s{S_T1}")
        a(f"s_mov_b64 s[{S_FM}:{S_FM+1}], 0")
        add64(a, S_MB[0], S_TS, R_MEMB)
        add64(a, S_MB[1], S_TS, R_MEMB + 8192)
        for j in range(4):
            add64(a, S_PST[j], S_TS, R_PART + 32768 * j)
        a(f"s_lshl_b32 s{S_T0}, s{S_RANK}, 14")
        a(f"s_add_u32 s{S_T0}, s{S_T0}, s{S_W4K}")
        add64(a, S_PRD, S_PST[0], f"s{S_T0}")
        a(f"s_mov_b32 s{S_PUBM}, 0x00550055")
        a(f"s_mov_b32 s{S_PUBM+1}, 0x00550055")
        c = (128 ** -0.5) * math.log2(math.e)
        a(f"s_mov_b32 s{S_C}, {f32hex(c)}")
        a(f"s_mov_b32 s{S_C+1}, {f32hex(c)}")
        if self.stamps:
            a(f"s_lshl_b32 s{S_T0}, s{S_RANK}, 13")
            a(f"s_lshl_b32 s{S_T1}, s{LAY}, 18")
            a(f"s_add_u32 s{S_T0}, s{S_T0}, s{S_T1}")
            a(f"s_add_u32 s{S_T0}, s{S_T0}, {STAMP_OFF}")
            add64(a, S_ST, S_WS, f"s{S_T0}")
        lskip = self.lab('minit')
        a(f"s_cmp_lg_u32 s{S_WAVE}, 0")
        a(f"s_cbranch_scc1 {lskip}")
        a(f"s_load_dwordx2 s[{S_P0}:{S_P0+1}], s[0:1], 8")
        a("v_bfe_u32 v17, v0, 2, 3")
        a("v_lshlrev_b32 v17, 10, v17")
        a("v_and_b32 v18, 3, v0")
        a("v_lshl_add_u32 v17, v18, 3, v17")
        a("v_lshrrev_b32 v18, 5, v0")
        a("v_lshl_add_u32 v17, v18, 2, v17")
        a(f"s_lshl_b32 s{S_T0}, s{S_RANK}, 5")
        a(f"v_add_u32 v17, s{S_T0}, v17")
        a("s_waitcnt lgkmcnt(0)")
        a(f"global_load_dword v107, v17, s[{S_P0}:{S_P0+1}]")
        a.label(lskip)

    def r_init2(self):
        a = self.a
        sc = self.sc
        a("v_and_b32 v100, 63, v0")
        a("v_lshlrev_b32 v101, 4, v100")
        for i in range(4):
            a(f"v_mov_b32 v{96+i}, 0")
        lskip = self.lab('minit')
        a(f"s_cmp_lg_u32 s{S_WAVE}, 0")
        a(f"s_cbranch_scc1 {lskip}")
        a(f"s_lshl_b32 s{S_T0}, s{S_RANK}, 8")
        a(f"v_lshlrev_b32 v102, 2, v100")
        a(f"v_add_u32 v102, s{S_T0}, v102")
        a("v_mov_b32 v103, -1")
        a("s_waitcnt vmcnt(20)")
        a("v_min_u32 v107, -2, v107")
        a(f"global_store_dword v102, v103, s[{S_MB[1]}:{S_MB[1]+1}]{sc}")
        a(f"global_store_dword v102, v107, s[{S_MB[0]}:{S_MB[0]+1}]{sc}")
        a.label(lskip)
        for j in range(4):
            a(f"global_store_dwordx4 v101, v[96:99], s[{S_PRD}:{S_PRD+1}] offset:{1024*j}{sc}")

    def r_xn0(self):
        a = self.a
        lsk = self.lab('xn0'); lp = self.lab('xnl')
        a(f"s_cmp_lg_u32 s{S_TEAM}, 1")
        a(f"s_cbranch_scc1 {lsk}")
        a(f"s_load_dwordx2 s[{S_P1}:{S_P1+1}], s[0:1], 0")
        add64(a, S_P2, S_WS, XN0_OFF)
        a("v_lshlrev_b32 v12, 4, v0")
        a(f"s_lshl_b32 s{S_T0}, s{S_RANK}, 12")
        a(f"v_add_u32 v12, s{S_T0}, v12")
        a(f"s_mov_b32 s{S_T2}, 0")
        a("s_waitcnt lgkmcnt(0)")
        a.label(lp)
        for i in range(4):
            a(f"v_add_u32 v{4+i}, {i*128*1024}, v12")
            a(f"global_load_dwordx4 {vr(16+4*i,4)}, v{4+i}, s[{S_P1}:{S_P1+1}]")
        for i in range(4):
            a(f"s_waitcnt vmcnt(3)")
            self.unpack8(32, 16 + 4 * i)
            self.layernorm(32, 40, 48 + 4 * i, 64)
            a(f"global_store_dwordx4 v{4+i}, {vr(48+4*i,4)}, s[{S_P2}:{S_P2+1}] sc1")
        a(f"v_add_u32 v12, {512*1024}, v12")
        a(f"s_add_u32 s{S_T2}, s{S_T2}, 1")
        a(f"s_cmp_lt_u32 s{S_T2}, 4")
        a(f"s_cbranch_scc1 {lp}")
        a("s_waitcnt vmcnt(0)")
        a("s_barrier")
        self.arrive(str(self.xcnt))
        for i in range(self.R1SLEEP):
            a("s_sleep 127")
        a.label(lsk)

    def r_consts(self):
        a = self.a
        LN, T1, T2 = 20, 21, 22
        a(f"v_and_b32 v{LN}, 63, v0")
        a(f"v_lshlrev_b32 v{L16}, 4, v{LN}")
        a(f"v_mov_b32 v{SENT}, -1")
        a(f"v_mov_b32 v{ZERO}, 0")
        a(f"v_mov_b32 v{T1}, 0xff800000")
        a(f"v_cmp_le_u32 vcc, 32, v{LN}")
        a(f"v_cndmask_b32 v{NEGM}, v{ZERO}, v{T1}, vcc")
        a(f"v_bfe_u32 v{T1}, v{LN}, 1, 1")
        a(f"v_lshlrev_b32 v{PUB}, 7, v{T1}")
        a(f"v_bfe_u32 v{T1}, v{LN}, 2, 1")
        a(f"v_lshl_add_u32 v{PUB}, v{T1}, 6, v{PUB}")
        a(f"v_lshrrev_b32 v{T1}, 4, v{LN}")
        a(f"v_lshl_add_u32 v{PUB}, v{T1}, 4, v{PUB}")
        a(f"s_lshl_b32 s{S_T0}, s{S_RANK}, 8")
        a(f"s_lshl_b32 s{S_T1}, s{S_WAVE}, 2")
        a(f"s_add_u32 s{S_T0}, s{S_T0}, s{S_T1}")
        a(f"v_add_u32 v{PUB}, s{S_T0}, v{PUB}")
        a(f"v_and_b32 v{T1}, 8, v{LN}")
        a(f"v_cmp_ne_u32 vcc, 0, v{T1}")
        a(f"v_mov_b32 v{T1}, 0x4444")
        a(f"v_mov_b32 v{T2}, 0xeeee")
        a(f"v_cndmask_b32 v{IDX}, v{T1}, v{T2}, vcc")
        a(f"s_lshl_b32 s{S_T0}, s{S_WAVE}, 11")
        a(f"v_add_u32 v{POLL}, s{S_T0}, v{L16}")
        for p in range(1, 4):
            a(f"s_add_u32 s{S_T0}, s{S_WAVE}, {p}")
            a(f"s_and_b32 s{S_T0}, s{S_T0}, 3")
            a(f"s_lshl_b32 s{S_T0}, s{S_T0}, 11")
            a(f"v_add_u32 v{MA1+p-1}, s{S_T0}, v{L16}")
        a(f"v_lshrrev_b32 v{T1}, 5, v{LN}")
        a(f"v_lshlrev_b32 v{T1}, 4, v{T1}")
        a(f"v_and_b32 v{T2}, 15, v{LN}")
        a(f"v_add_u32 v{T1}, v{T1}, v{T2}")
        a(f"v_lshlrev_b32 v{T1}, 4, v{T1}")
        a(f"v_bfe_u32 v{T2}, v{LN}, 4, 1")
        a(f"v_lshl_add_u32 v{T1}, v{T2}, 3, v{T1}")
        a(f"s_lshl_b32 s{S_T0}, s{S_WAVE}, 9")
        a(f"v_add_u32 v{T1}, s{S_T0}, v{T1}")
        a(f"v_add_u32 v{QKW}, {R_QK}, v{T1}")
        a(f"v_add_u32 v{VMO}, 2048, v{T1}")
        a(f"v_lshrrev_b32 v{T1}, 4, v{LN}")
        a(f"v_lshlrev_b32 v{T1}, 2, v{T1}")
        a(f"v_bfe_u32 v{T2}, v{LN}, 2, 2")
        a(f"v_add_u32 v{T1}, v{T1}, v{T2}")
        a(f"v_lshlrev_b32 v{T1}, 4, v{T1}")
        a(f"v_and_b32 v{T2}, 1, v{LN}")
        a(f"v_lshl_add_u32 v{T1}, v{T2}, 3, v{T1}")
        a(f"v_add_u32 v{TRA}, {R_QK}, v{T1}")
        a(f"s_lshl_b32 s{S_T0}, s{S_WAVE}, 9")
        a(f"v_add_u32 v{TRK}, s{S_T0}, v{TRA}")
        a(f"v_and_b32 v{T1}, 7, v{LN}")
        a(f"v_lshlrev_b32 v{T1}, 4, v{T1}")
        a(f"v_lshrrev_b32 v{T2}, 4, v{LN}")
        a(f"v_lshl_add_u32 v{T1}, v{T2}, 2, v{T1}")
        a(f"s_lshl_b32 s{S_T0}, s{S_WAVE}, 9")
        a(f"s_add_u32 s{S_T0}, s{S_T0}, {R_OX}")
        a(f"v_add_u32 v{OWA}, s{S_T0}, v{T1}")
        a(f"s_mul_i32 s{S_T0}, s{S_WAVE}, {WPW}")
        a(f"s_add_u32 s{S_T0}, s{S_T0}, {R_WB}")
        a(f"v_add_u32 v{WLA}, s{S_T0}, v{L16}")
        a(f"v_lshrrev_b32 v{T1}, 5, v{LN}")
        a(f"v_lshlrev_b32 v{T1}, 14, v{T1}")
        a(f"v_bfe_u32 v{T2}, v{LN}, 2, 2")
        a(f"v_lshl_add_u32 v{T1}, v{T2}, 12, v{T1}")
        a(f"v_bfe_u32 v{T2}, v{LN}, 4, 1")
        a(f"v_lshl_add_u32 v{T1}, v{T2}, 6, v{T1}")
        a(f"v_and_b32 v{T2}, 3, v{LN}")
        a(f"v_lshl_add_u32 v{T1}, v{T2}, 4, v{T1}")
        a(f"s_lshl_b32 s{S_T0}, s{S_WAVE}, 17")
        a(f"s_lshl_b32 s{S_T1}, s{S_RANK}, 7")
        a(f"s_add_u32 s{S_T0}, s{S_T0}, s{S_T1}")
        a(f"v_add_u32 v{PST}, s{S_T0}, v{T1}")
        a(f"v_lshrrev_b32 v{T1}, 4, v{LN}")
        a(f"v_lshlrev_b32 v{T1}, 7, v{T1}")
        a(f"v_and_b32 v{T2}, 7, v{LN}")
        a(f"v_lshl_add_u32 v{T1}, v{T2}, 4, v{T1}")
        a(f"s_lshl_b32 s{S_T0}, s{S_WAVE}, 9")
        a(f"v_add_u32 v{KMO}, s{S_T0}, v{T1}")

    def r_main(self):
        a = self.a
        sc = self.sc
        ACC = B[4]
        MAS = lambda j: B[0] + 4 * j
        QBUF = {('qkv', 0, 0): B[1], ('qkv', 1, 0): B[2], ('qkv', 2, 0): B[3], ('qkv', 3, 0): B[9],
                ('qkv', 0, 1): B[10], ('qkv', 1, 1): B[7], ('qkv', 2, 1): B[8]}
        WBUF = {0: B[7], 1: B[8], 2: B[9], 3: B[10], 4: B[2], 5: B[4], 6: B[7]}
        def fetch(o, reg, q=None):
            hb = HOMES[o][1]
            assert HOMES[o][0] == 'lds'
            for hh in range(2):
                t = f"ds_read_b128 {vr(reg+4*hh,4)}, v{WLA} offset:{hb*2048+1024*hh}"
                q.issue(t, o) if q else a(t)
        def smf(t, j):
            o = ('qkv', t, j)
            b = vr(QBUF[o], 8) if o in QBUF else rr(HOMES[o][0], HOMES[o][1], 8)
            a(f"v_smfmac_f32_16x16x64_bf16 {vr(ACC+4*t,4)}, {vr(MAS(j),4)}, {b}, v{IDX}")
        def zero(reg, n):
            for i in range(0, n, 2):
                a(f"v_mov_b64 {vr(reg+i,2)}, 0")
        def spin_flag():
            lsp = self.lab('fsp')
            a(f"s_mov_b32 s{S_SPIN}, {SPIN_MAX}")
            a.label(lsp)
            a(f"global_load_dword v0, v{ZERO}, s[{S_FKV}:{S_FKV+1}] sc1")
            self.spin_dec()
            a("s_waitcnt vmcnt(0)")
            a(f"v_cmp_eq_u32 vcc, 0, v0")
            a(f"s_cbranch_vccnz {lsp}")
        def dma(par):
            a(f"s_add_u32 m0, s{S_W4K}, {R_KV + 16384*par}")
            for j in range(4):
                a(f"global_load_lds_dwordx4 v{L16}, s[{S_KVG}:{S_KVG+1}] offset:{1024*j} sc1")
        def poll_a(par):
            for hh in range(2):
                a(f"global_load_dwordx4 {vr(B[0]+4*hh,4)}, v{POLL}, s[{S_MB[par]}:{S_MB[par]+1}] offset:{1024*hh} sc1")
        def prep1():
            for o in (('qkv', 0, 0), ('qkv', 1, 0), ('qkv', 2, 0), ('qkv', 3, 0), ('qkv', 0, 1)):
                fetch(o, QBUF[o])
            zero(ACC, 24)
            for i in range(4):
                a(f"v_mov_b32 v{X4+i}, v{NEGM}")
        def prep2():
            for o in (('qkv', 1, 1), ('qkv', 2, 1)):
                fetch(o, QBUF[o])
        spin_flag()
        dma(0)
        add64(a, S_KVG, S_KVG, 512 * 1024)
        add64(a, S_FKV, S_FKV, 128)
        a(f"s_mov_b32 s{S_STEP}, 0")
        poll_a(0)
        prep1(); prep2()
        lexit = self.lab('rexit')

        def step(par):
            self.nstamp = 0
            self.stamp()
            la = self.lab('pa'); lgo = self.lab('pg')
            a(f"s_mov_b32 s{S_SPIN}, {SPIN_MAX}")
            a.label(la)
            a("s_waitcnt vmcnt(0) lgkmcnt(0)")
            x = B[0]
            a(f"v_max3_u32 v0, v{x}, v{x+1}, v{x+2}")
            a(f"v_max3_u32 v0, v0, v{x+3}, v{x+4}")
            a(f"v_max3_u32 v0, v0, v{x+5}, v{x+6}")
            a(f"v_max_u32 v0, v0, v{x+7}")
            a(f"v_cmp_eq_u32 vcc, -1, v0")
            a(f"s_cbranch_vccz {lgo}")
            a("s_mov_b64 exec, vcc")
            poll_a(par)
            a("s_mov_b64 exec, -1")
            self.spin_dec()
            a(f"s_branch {la}")
            a.label(lgo)
            for hh in range(2):
                a(f"ds_write_b128 v{POLL}, {vr(x+4*hh,4)} offset:{R_MEMS+1024*hh}")
            a(f"global_load_dword v{FLG}, v{ZERO}, s[{S_FKV}:{S_FKV+1}] sc1")
            self.stamp()
            for t in range(4):
                smf(t, 0)
            a("s_waitcnt lgkmcnt(0)")
            a("s_barrier")
            q = LdsQ(a)
            for j in range(2, 8):
                q.issue(f"ds_read_b128 {vr(MAS(j),4)}, v{MA1+(j>>1)-1} offset:{R_MEMS+1024*(j&1)}", ('m', j))
            smf(0, 1)
            smf(3, 1)
            smf(1, 1)
            a(f"s_add_u32 m0, s{S_W4K}, {R_KV + 16384*(par^1)}")
            smf(2, 1)
            KX = B[7]
            kxr = lambda f: q.issue(f"ds_read_b128 {vr(KX+4*f,4)}, v{L16} offset:{R_KV+16384*par+1024*f}", 'kx')
            order = [4, 5, 6, 7, 0, 1, 2, 3]
            smf(4, 0); kxr(order[0]); kxr(order[1])
            smf(5, 0); kxr(order[2]); kxr(order[3])
            smf(4, 1); kxr(order[4]); kxr(order[5])
            smf(5, 1); kxr(order[6]); kxr(order[7])
            extra = []
            for j in range(4):
                extra.append([f"s_mov_b64 exec, s[{S_DM}:{S_DM+1}]",
                              f"global_load_lds_dwordx4 v{L16}, s[{S_KVG}:{S_KVG+1}] offset:{1024*j} sc1",
                              "s_mov_b64 exec, -1"])
            for j in range(2, 8):
                q.wait(('m', j))
                for t in range(4):
                    smf(t, j)
            self.stamp()
            def cpart(p, stage):
                b0, b1 = ACC + 8 * p, ACC + 8 * p + 4
                if stage == 0:
                    for i in range(4):
                        a(f"v_permlane32_swap_b32 v{b0+i}, v{b1+i}")
                else:
                    for i in range(4):
                        a(f"v_add_f32 v{b0+i}, v{b0+i}, v{b1+i}")
                    a(f"v_cvt_pk_bf16_f32 v{b1}, v{b0}, v{b0+1}")
                    a(f"v_cvt_pk_bf16_f32 v{b1+1}, v{b0+2}, v{b0+3}")
                    a(f"ds_write_b64 v{QKW}, {vr(b1,2)} offset:{2048*p}")
            smf(4, 2); smf(5, 2)
            cpart(0, 0)
            smf(4, 3)
            cpart(1, 0)
            smf(5, 3)
            cpart(0, 1)
            smf(4, 4)
            cpart(1, 1)
            smf(5, 4)
            a("s_waitcnt lgkmcnt(0)")
            a("s_barrier")
            self.stamp()
            QF = [B[0], B[0] + 4, B[1], B[1] + 4]
            KF = [B[4], B[4] + 4, B[2], B[2] + 4]
            q = LdsQ(a)
            def trr(ks):
                for u in range(2):
                    q.issue(f"ds_read_b64_tr_b16 {vr(QF[ks]+2*u,2)}, v{TRA} offset:{ks*512+u*256}", ks)
                for u in range(2):
                    q.issue(f"ds_read_b64_tr_b16 {vr(KF[ks]+2*u,2)}, v{TRA} offset:{2048+ks*512+u*256}", ks)
            trr(0); smf(4, 5); trr(1)
            a("s_waitcnt vmcnt(0)")
            a(f"v_cmp_ne_u32 s[{S_DM}:{S_DM+1}], 0, v{FLG}")
            smf(5, 5); trr(2); smf(4, 6)
            for u in range(2):
                q.issue(f"ds_read_b64_tr_b16 {vr(QF[3]+2*u,2)}, v{TRA} offset:{3*512+u*256}", 3)
            q.issue(f"ds_read_b64_tr_b16 {vr(KF[3],2)}, v{TRA} offset:{2048+3*512}", 3)
            smf(5, 6)
            for l in extra.pop(0) + extra.pop(0): a(l)
            smf(4, 7)
            for l in extra.pop(0) + extra.pop(0): a(l)
            smf(5, 7)
            SM, SX = X4, [B[5], B[5] + 4]
            V = B[6]
            vs = []
            for i in range(4):
                vs.append(f"v_permlane32_swap_b32 v{V+i}, v{V+4+i}")
            for i in range(4):
                vs.append(f"v_add_f32 v{V+i}, v{V+i}, v{V+4+i}")
            vs.append(f"v_cvt_pk_bf16_f32 v{V+4}, v{V}, v{V+1}")
            vs.append(f"v_cvt_pk_bf16_f32 v{V+5}, v{V+2}, v{V+3}")
            vs.append(f"v_min_u32 v{V+4}, -2, v{V+4}")
            vs.append(f"v_min_u32 v{V+5}, -2, v{V+5}")
            vs.append(f"v_mov_b64 {vr(V+6,2)}, {vr(V+4,2)}")
            vs.append(f"global_store_dwordx2 v{VMO}, {vr(V+4,2)}, s[{S_KVM}:{S_KVM+1}] sc1")
            vs.append(f"v_permlane32_swap_b32 v{V+4}, v{V+6}")
            vs.append(f"v_permlane32_swap_b32 v{V+5}, v{V+7}")
            for i in range(4):
                vs.append(f"v_mov_b32 v{V+i}, 0x3f803f80")
            VMF = [V + 4, V + 6]
            n = 0
            for ks in range(4):
                q.wait(ks)
                if ks == 0:
                    q.issue(f"ds_read_b64_tr_b16 {vr(KF[3]+2,2)}, v{TRA} offset:{2048+3*512+256}", 3)
                for k_, (d, af) in enumerate(((SX[0], KX + 4 * ks), (SX[1], KX + 16 + 4 * ks), (SM, KF[ks]))):
                    c0 = '0' if (ks == 0 and k_ < 2) else vr(d, 4)
                    a(f"v_mfma_f32_16x16x32_bf16 {vr(d,4)}, {vr(af,4)}, {vr(QF[ks],4)}, {c0}")
                    n += 1
                    if n >= 3:
                        for _ in range(2):
                            if vs:
                                a(vs.pop(0))
            assert not vs
            self.stamp()
            VX, KMT = B[0], B[1]
            q = LdsQ(a)
            for t in range(2):
                q.issue(f"ds_read_b128 {vr(VX+4*t,4)}, v{POLL} offset:{R_KV+16384*par+8192+1024*t}", 'vx')
            for u in range(2):
                q.issue(f"ds_read_b64_tr_b16 {vr(KMT+2*u,2)}, v{TRK} offset:{2048+u*256}", 'km')
            for ct in range(5):
                fetch(('wo', ct, 1), WBUF[ct], q)
            M = B[1] + 4
            S = [SM + i for i in range(4)] + [SX[0] + i for i in range(8)]
            a(f"v_max3_f32 v{M}, v{S[4]}, v{S[5]}, v{S[6]}")
            a(f"v_max3_f32 v{M+1}, v{S[7]}, v{S[8]}, v{S[9]}")
            a(f"v_max3_f32 v{M}, v{M}, v{S[10]}, v{S[11]}")
            a(f"v_max3_f32 v{M+1}, v{M+1}, v{S[0]}, v{S[1]}")
            a(f"v_max3_f32 v{M}, v{M}, v{S[2]}, v{S[3]}")
            a(f"v_max_f32 v{M}, v{M}, v{M+1}")
            for sw in ('16', '32'):
                a(f"v_mov_b32 v{M+1}, v{M}")
                a(f"v_permlane{sw}_swap_b32 v{M+1}, v{M}")
                a(f"v_max_f32 v{M}, v{M}, v{M+1}")
            a(f"v_mul_f32 v{M}, s{S_C}, v{M}")
            q.wait('km')
            for i in range(4):
                a(f"v_min_u32 v{KMT+i}, -2, v{KMT+i}")
            a(f"global_store_dwordx4 v{KMO}, {vr(KMT,4)}, s[{S_KVM}:{S_KVM+1}] sc1")
            for i in range(6):
                a(f"v_pk_fma_f32 {vr(S[2*i],2)}, {vr(S[2*i],2)}, s[{S_C}:{S_C+1}], {vr(M,2)} op_sel_hi:[1,1,0] neg_lo:[0,0,1] neg_hi:[0,0,1]")
            PM, PX = B[3], B[3] + 4
            O = [B[4], B[4] + 4]
            for i in range(4):
                a(f"v_exp_f32 v{S[i]}, v{S[i]}")
            a(f"v_exp_f32 v{S[4]}, v{S[4]}")
            a(f"v_cvt_pk_bf16_f32 v{PM}, v{S[0]}, v{S[1]}")
            a(f"v_cvt_pk_bf16_f32 v{PM+1}, v{S[2]}, v{S[3]}")
            a(f"v_exp_f32 v{S[5]}, v{S[5]}")
            a(f"v_exp_f32 v{S[6]}, v{S[6]}")
            ONES = V
            a(f"v_mfma_f32_16x16x16_bf16 {vr(M,4)}, {vr(ONES,2)}, {vr(PM,2)}, 0")
            for t in range(2):
                a(f"v_mfma_f32_16x16x16_bf16 {vr(O[t],4)}, {vr(VMF[t],2)}, {vr(PM,2)}, 0")
            for i in range(7, 12):
                a(f"v_exp_f32 v{S[i]}, v{S[i]}")
            for i in range(4):
                a(f"v_cvt_pk_bf16_f32 v{PX+i}, v{S[4+2*i]}, v{S[5+2*i]}")
            q.wait('vx')
            self.stamp()
            a(f"v_mfma_f32_16x16x32_bf16 {vr(M,4)}, {vr(ONES,4)}, {vr(PX,4)}, {vr(M,4)}")
            for t in range(2):
                a(f"v_mfma_f32_16x16x32_bf16 {vr(O[t],4)}, {vr(VX+4*t,4)}, {vr(PX,4)}, {vr(O[t],4)}")
            a(f"v_rcp_f32 v{M}, v{M}")
            WA = [B[1], B[1] + 4, B[3], B[3] + 4, B[5], B[5] + 4, B[6], B[6] + 4]
            zero(B[5], 4)
            for t in range(2):
                for i in range(2):
                    a(f"v_pk_mul_f32 {vr(O[t]+2*i,2)}, {vr(O[t]+2*i,2)}, {vr(M,2)} op_sel_hi:[1,0]")
                a(f"v_cvt_pk_bf16_f32 v{O[t]}, v{O[t]}, v{O[t]+1}")
                a(f"v_cvt_pk_bf16_f32 v{O[t]+1}, v{O[t]+2}, v{O[t]+3}")
                a(f"ds_write2_b32 v{OWA}, v{O[t]}, v{O[t]+1} offset0:{64*t} offset1:{64*t+32}")
            zero(B[5] + 4, 4); zero(B[3], 8)
            a("s_waitcnt lgkmcnt(0)")
            a("s_barrier")
            OA = B[0]
            q = LdsQ(a)
            for hh in range(2):
                q.issue(f"ds_read_b128 {vr(OA+4*hh,4)}, v{L16} offset:{R_OX+1024*hh}", ('oa', hh))
            fetch(('wo', 5, 1), WBUF[5], q)
            add64(a, S_KVM, S_KVM, 128 * 1024)
            zero(B[6], 8); zero(B[1] + 4, 4); zero(B[1], 4)
            if par == 1:
                a(f"s_cmp_ge_u32 s{S_STEP}, {NSEG-2}")
                a(f"s_cbranch_scc1 {lexit}")
            self.stamp()
            def wo(ct, ks):
                o = ('wo', ct, ks)
                b = vr(WBUF[ct], 8) if HOMES[o][0] == 'lds' else rr(HOMES[o][0], HOMES[o][1], 8)
                a(f"v_smfmac_f32_16x16x64_bf16 {vr(WA[ct],4)}, {vr(OA+4*ks,4)}, {b}, v{IDX}")
            def jl(j):
                b0, b1 = WA[2 * j], WA[2 * j + 1]
                l = [f"v_permlane32_swap_b32 v{b0+i}, v{b1+i}" for i in range(4)]
                l += [f"v_add_f32 v{b0+i}, v{b0+i}, v{b1+i}" for i in range(4)]
                l += [f"v_or_b32 v{b0}, 1, v{b0}" if par == 0 else f"v_and_b32 v{b0}, -2, v{b0}"]
                l += [f"global_store_dwordx4 v{PST}, {vr(b0,4)}, s[{S_PST[j]}:{S_PST[j]+1}]{sc}"]
                return l
            q.wait(('oa', 0))
            for ct in range(4):
                wo(ct, 0)
            q.wait(('oa', 1))
            wo(0, 1); wo(1, 1)
            fetch(('wo', 6, 1), WBUF[6], q)
            wo(2, 1); wo(3, 1)
            pend = jl(0) + jl(1)
            seq = [(4, 0), (5, 0), (6, 0), (7, 0), (4, 1), (5, 1), (7, 1), (6, 1)]
            for n, (ct, ks) in enumerate(seq):
                if (ct, ks) == (5, 1):
                    q.wait(('wo', 5, 1))
                if (ct, ks) == (6, 1):
                    q.wait(('wo', 6, 1))
                wo(ct, ks)
                if n >= 1:
                    for _ in range(3):
                        if pend:
                            l = pend.pop(0)
                            for x_ in (l if isinstance(l, list) else [l]):
                                a(x_)
            assert not pend
            for l in jl(2) + jl(3):
                a(l)
            self.stamp()
            x = B[7]
            def poll_k():
                for j in range(4):
                    a(f"global_load_dwordx4 {vr(x+4*j,4)}, v{L16}, s[{S_PRD}:{S_PRD+1}] offset:{1024*j} sc1")
            RKD = int(os.environ.get('RKD', 2))
            if RKD < 0:
                poll_k()
                prep1()
            else:
                prep1()
                if RKD:
                    a(f"s_sleep {RKD}")
                poll_k()
            lk = self.lab('pk'); lgo = self.lab('kg')
            a(f"s_mov_b32 s{S_SPIN}, {SPIN_MAX}")
            a.label(lk)
            a("s_waitcnt vmcnt(0)")
            if par == 0:
                a(f"v_bitop3_b32 v0, v{x}, v{x+4}, v{x+8} bitop3:0x80")
                a(f"v_bitop3_b32 v0, v0, v{x+12}, 1 bitop3:0x80")
                a(f"v_cmp_eq_u32 vcc, 0, v0")
            else:
                a(f"v_or3_b32 v0, v{x}, v{x+4}, v{x+8}")
                a(f"v_bitop3_b32 v0, v0, v{x+12}, 1 bitop3:0xa8")
                a(f"v_cmp_ne_u32 vcc, 0, v0")
            a(f"s_cbranch_vccz {lgo}")
            a("s_mov_b64 exec, vcc")
            poll_k()
            a("s_mov_b64 exec, -1")
            self.spin_dec()
            a(f"s_branch {lk}")
            a.label(lgo)
            self.stamp()
            for i in range(2):
                a(f"v_pk_add_f32 {vr(x+2*i,2)}, {vr(x+2*i,2)}, {vr(x+4+2*i,2)}")
                a(f"v_pk_add_f32 {vr(x+8+2*i,2)}, {vr(x+8+2*i,2)}, {vr(x+12+2*i,2)}")
            for i in range(2):
                a(f"v_pk_add_f32 {vr(x+2*i,2)}, {vr(x+2*i,2)}, {vr(x+8+2*i,2)}")
            a(f"v_permlane32_swap_b32 v{x}, v{x+2}")
            a(f"v_permlane32_swap_b32 v{x+1}, v{x+3}")
            a(f"v_pk_add_f32 {vr(x,2)}, {vr(x,2)}, {vr(x+2,2)}")
            a(f"v_permlane16_swap_b32 v{x}, v{x+1}")
            a(f"v_add_f32 v{x}, v{x}, v{x+1}")
            D = "row_mask:0xf bank_mask:0xf"
            a(f"v_add_f32_dpp v{x+1}, v{x}, v{x} row_ror:8 {D}")
            a(f"v_mov_b32_dpp v{x+2}, v{x+1} quad_perm:[1,0,3,2] {D}")
            a(f"v_cvt_pk_bf16_f32 v{x+1}, v{x+1}, v{x+2}")
            a(f"v_min_u32 v{x+1}, -2, v{x+1}")
            a(f"s_mov_b64 exec, s[{S_PUBM}:{S_PUBM+1}]")
            a(f"global_store_dword v{PUB}, v{x+1}, s[{S_MB[par^1]}:{S_MB[par^1]+1}]{sc}")
            a(f"global_store_dword v{PUB}, v{SENT}, s[{S_MB[par]}:{S_MB[par]+1}]{sc}")
            a("s_mov_b64 exec, -1")
            self.stamp()
            lok = self.lab('p2')
            a(f"s_cmp_lg_u64 s[{S_DM}:{S_DM+1}], 0")
            a(f"s_cbranch_scc1 {lok}")
            spin_flag()
            dma(par ^ 1)
            a.label(lok)
            RAD = int(os.environ.get('RAD', 1))
            if RAD < 0:
                poll_a(par ^ 1)
            add64(a, S_KVG, S_KVG, 512 * 1024)
            add64(a, S_FKV, S_FKV, 128)
            if self.stamps:
                a("s_waitcnt lgkmcnt(0)")
                for i in range(self.nstamp):
                    a(f"v_writelane_b32 v{x+4}, s{S_STAMP0+2*i}, {i}")
                for i in (13, 14, 15):
                    a(f"v_writelane_b32 v{x+4}, s{S_STAMP0+2*i}, {i}")
                a(f"v_lshrrev_b32 v{x+5}, 2, v{L16}")
                l3 = self.lab('st')
                a(f"s_cmp_lg_u32 s{S_WAVE}, {self.stamp_wave}")
                a(f"s_cbranch_scc1 {l3}")
                a("s_mov_b64 exec, 0xffff")
                a(f"global_store_dword v{x+5}, v{x+4}, s[{S_ST}:{S_ST+1}]")
                a("s_mov_b64 exec, -1")
                a.label(l3)
                add64(a, S_ST, S_ST, 128)
            prep2()
            if RAD >= 0:
                if RAD:
                    a(f"s_sleep {RAD}")
                poll_a(par ^ 1)

        lloop = self.lab('rstep')
        a.label(lloop)
        step(0)
        step(1)
        a(f"s_add_u32 s{S_STEP}, s{S_STEP}, 2")
        a(f"s_branch {lloop}")
        a.label(lexit)
        a("s_waitcnt vmcnt(0)")
```

```python
import os
from gcommon import *
from gx2 import *

GO = 9
FLG = 10
FLA = 15
Q_SP = 4096 + 128
Q_UN = 8 * Q_SP + 128
Q_BUF = 544 * KB
assert 16 * Q_UN <= Q_BUF
HOFF = [0, 16384, 32768]
S_M0 = 46
S_PFM = 25
S_MK = 52
S_Q4 = 54
S_FP = [56, 100, 42]
S_FE = 59
S_OB = 61
S_PB = 37
B_Q, B_C, B_KA, B_KB = 0, 1, 2, 3

class GenX3(GenX):
    def x3_consts(self):
        a = self.a
        T = W0
        a(f"v_and_b32 v{T}, 63, v0")
        a(f"v_lshlrev_b32 v{L16}, 4, v{T}")
        a(f"v_and_b32 v{T+1}, 15, v{T}")
        a(f"v_lshrrev_b32 v{T+2}, 4, v{T}")
        a(f"v_lshrrev_b32 v{T+3}, 5, v{T}")
        a(f"v_and_b32 v{T+4}, 31, v{T}")
        a(f"v_xor_b32 v{T+4}, v{T+4}, v{T+3}")
        a(f"s_and_b32 s{S_T0}, s{S_WAVE}, 1")
        a(f"s_lshl_b32 s{S_T0}, s{S_T0}, 3")
        a(f"v_xor_b32 v{T+4}, s{S_T0}, v{T+4}")
        a(f"v_lshlrev_b32 v{T+4}, 4, v{T+4}")
        a(f"v_lshl_add_u32 v{T+4}, v{T+3}, 10, v{T+4}")
        a(f"s_lshl_b32 s{S_T0}, s{S_WAVE}, 13")
        a(f"v_add_u32 v{GW}, s{S_T0}, v{T+4}")
        a(f"v_xor_b32 v{T+3}, v{T+1}, v{T+2}")
        a(f"v_lshlrev_b32 v{T+3}, 4, v{T+3}")
        a(f"v_lshl_add_u32 v{T+3}, v{T+1}, 9, v{T+3}")
        a(f"v_add_u32 v{FR0}, {L_FB}, v{T+3}")
        for m in range(1, 4):
            a(f"v_xor_b32 v{FR0+m}, {64*m}, v{FR0}")
        a(f"v_add_u32 v{FL}, {L_FB}, v{L16}")
        a(f"s_mul_i32 s{S_T0}, s{S_WAVE}, {WPW}")
        a(f"v_add_u32 v{WLA}, s{S_T0}, v{L16}")
        a(f"s_lshl_b32 s{S_T0}, s{S_WAVE}, 12")
        a(f"v_add_u32 v{GO}, s{S_T0}, v{L16}")
        a(f"s_add_u32 s{S_M0}, s{S_T0}, {L_FB}")
        a(f"v_mul_u32_u24 v{PSV}, {2*Q_UN}, v{T+2}")
        a(f"v_lshl_add_u32 v{PSV}, v{T+1}, 4, v{PSV}")
        a(f"s_mul_i32 s{S_T0}, s{S_A}, {Q_SP}")
        a(f"s_lshl_b32 s{S_T1}, s{S_B}, 10")
        a(f"s_add_u32 s{S_T0}, s{S_T0}, s{S_T1}")
        a(f"s_lshl_b32 s{S_T1}, s{S_WAVE}, 8")
        a(f"s_add_u32 s{S_T0}, s{S_T0}, s{S_T1}")
        a(f"v_add_u32 v{PSV}, s{S_T0}, v{PSV}")
        a(f"v_add_u32 v{PSV1}, {Q_UN}, v{PSV}")
        a(f"v_mov_b32 v{SENT}, -1")
        a(f"v_mov_b32 v{ZERO}, 0")

    def x3_init(self):
        a = self.a
        sc = self.sc
        for i in range(4):
            a(f"v_mov_b32 v{96+i}, 0")
        a(f"s_mul_i32 s{S_T0}, s{S_RANK}, {4*Q_BUF//32}")
        a(f"s_add_u32 s{S_T0}, s{S_T0}, {X_PART}")
        a(f"v_lshlrev_b32 v100, 4, v0")
        a(f"v_add_u32 v100, s{S_T0}, v100")
        for hh in range(4 * Q_BUF // 32 // 4096):
            a(f"global_store_dwordx4 v100, v[96:99], s[{S_TS}:{S_TS+1}]{sc}")
            a(f"v_add_u32 v100, 4096, v100")
        a(f"s_lshl_b32 s{S_T0}, s{S_RANK}, 4")
        a(f"s_add_u32 s{S_T0}, s{S_T0}, {X_OF}")
        a(f"v_mov_b32 v101, s{S_T0}")
        a(f"global_store_dwordx4 v101, v[96:99], s[{S_TS}:{S_TS+1}]{sc}")

    def dl_rows(self, base, half, H, mask=None):
        DT = W0 + 88
        l = []
        for i in range(4):
            g = [f"s_add_u32 m0, s{S_M0}, {HOFF[H] + 1024*i - 512*half}" if HOFF[H] + 1024*i - 512*half >= 0 else f"s_sub_u32 m0, s{S_M0}, 512"]
            if i:
                g.append(f"v_xor_b32 v{DT+i}, {32*i + 2048*i}, v{GW}")
            l.append(g)
            ld = f"global_load_lds_dwordx4 v{DT+i if i else GW}, s[{base}:{base+1}] offset:{512*half} sc1"
            l.append([f"s_mov_b64 exec, s[{mask}:{mask+1}]", ld, "s_mov_b64 exec, -1"] if mask else [ld])
        return l

    def dl_lin(self, base, H, mask=None):
        l = [[f"s_add_u32 m0, s{S_M0}, {HOFF[H]}"]]
        for i in range(4):
            ld = f"global_load_lds_dwordx4 v{GO}, s[{base}:{base+1}] offset:{1024*i} sc1"
            l.append([f"s_mov_b64 exec, s[{mask}:{mask+1}]", ld, "s_mov_b64 exec, -1"] if mask else [ld])
        return l

    def emit(self, l):
        for g in l:
            for x in g:
                self.a(x)

    def mk(self, bit):
        return [f"s_bitcmp1_b32 s{S_PFM}, {bit}", f"s_cselect_b64 s[{S_MK}:{S_MK+1}], -1, 0"]

    def ptr(self, dst, base, seg, shift_seg, off, rank_shift=None):
        g = [f"s_min_u32 s{S_T0}, s{seg}, 127", f"s_lshl_b32 s{S_T0}, s{S_T0}, {shift_seg}"]
        if rank_shift is not None:
            g += [f"s_lshl_b32 s{S_T1}, s{S_RANK}, {rank_shift}", f"s_add_u32 s{S_T0}, s{S_T0}, s{S_T1}"]
        if off:
            g.append(f"s_add_u32 s{S_T0}, s{S_T0}, {off}")
        g += [f"s_add_u32 s{dst}, s{base}, s{S_T0}", f"s_addc_u32 s{dst+1}, s{base+1}, 0"]
        return g

    FX1KS = 3
    KVKS = int(os.environ.get('KVKS', 7))
    def rc_ptr(self, dst, seg):
        return self.ptr(dst, S_WS, seg, 15, XN0_OFF)

    def fl_flush(self, bit, wave0):
        p = S_FP[bit]
        g = [f"s_bitcmp1_b32 s{S_FE}, {bit}", f"s_cselect_b64 exec, 1, 0",
             f"global_store_dword v{ZERO}, v{SENT}, s[{p}:{p+1}] sc1", "s_mov_b64 exec, -1", f"s_bitset0_b32 s{S_FE}, {bit}"]
        return [g]

    def gemm3(self, tiles, rows, Hs, hooks):
        a = self.a
        ACC, XF, WBUF = W0, W0 + 48, W0 + 72
        q = LdsQ(a)
        def xread(ks):
            b = XF + 8 * (ks % 3)
            k8 = ks & 7
            for rt in range(2):
                if rows:
                    q.issue(f"ds_read_b128 {vr(b+4*rt,4)}, v{FR0+(k8&3)} offset:{HOFF[Hs[ks>>3]] + rt*8192 + (k8>>2)*256}", ('x', ks))
                else:
                    q.issue(f"ds_read_b128 {vr(b+4*rt,4)}, v{FL} offset:{HOFF[Hs[ks>>3]] + (k8>>2)*8192 + rt*4096 + (k8&3)*1024}", ('x', ks))
        def wread(k64):
            for t in tiles:
                hk, hb = HX[('qkv', t, k64)]
                if hk == 'lds':
                    b = WBUF + 8 * (k64 & 1)
                    q.issue(f"ds_read_b128 {vr(b,4)}, v{WLA} offset:{hb*2048}", ('w', k64))
                    q.issue(f"ds_read_b128 {vr(b+4,4)}, v{WLA} offset:{hb*2048+1024}", ('w', k64))
        xread(0); xread(1)
        pend = []
        for ks in range(16):
            k64 = ks >> 1
            if ks + 2 < 16 and ks not in (6, 7):
                xread(ks + 2)
            if (ks & 1) == 0 and k64 + 1 < 8:
                wread(k64 + 1)
            q.wait(('x', ks))
            q.wait(('w', k64))
            if ks == 7:
                a("s_waitcnt vmcnt(0)")
                a("s_barrier")
                xread(8); xread(9)
            if ks == 15:
                a("s_barrier")
            pend += hooks.get(ks, [])
            xb = XF + 8 * (ks % 3)
            for ti, t in enumerate(tiles):
                hk, hb = HX[('qkv', t, k64)]
                if hk == 'lds':
                    hk, hb = 'v', WBUF + 8 * (k64 & 1)
                w = rr(hk, hb + 4 * (ks & 1), 4)
                for rt in range(2):
                    d = vr(ACC + (ti * 2 + rt) * 4, 4)
                    c = '0' if ks == 0 else d
                    x = vr(xb + 4 * rt, 4)
                    if t in (4, 5, 6, 7):
                        a(f"v_mfma_f32_16x16x32_bf16 {d}, {x}, {w}, {c}")
                    else:
                        a(f"v_mfma_f32_16x16x32_bf16 {d}, {w}, {x}, {c}")
                    if pend:
                        for x_ in pend.pop(0):
                            a(x_)
            assert not (pend and ks in (6, 15)), ks

    def s3_qkv(self, layer, Hs, hooks, fwave=0):
        a = self.a
        ACC, XF, WB = W0, W0 + 48, W0 + 72
        self.gemm3([0, 1, 2, 3, 4, 5], True, Hs, hooks)
        self.stamp()
        self.emit([self.ptr(S_Q0, S_WS, S_SEG, 19, KV_OFF[layer], 14), self.ptr(S_Q1, S_WS, S_SEG, 18, Q_OFF[layer], 13),
                   self.ptr(S_FP[0], S_WS, S_SEG, 7, FKV_OFF[layer], 2), self.ptr(S_Q2, S_WS, S_SEG, 17, KVM_OFF[layer], 12)])
        P = XF
        for i in range(4):
            a(f"v_mov_b32 v{WB+4+i}, -1")
        a(f"s_lshl_b32 s{S_T0}, s{S_WAVE}, 10")
        a(f"v_add_u32 v{WB}, s{S_T0}, v{L16}")
        a(f"v_add_u32 v{WB+1}, 4096, v{WB}")
        a(f"s_lshl_b32 s{S_T0}, s{S_WAVE}, 11")
        a(f"s_add_u32 s{S_T0}, s{S_T0}, 8192")
        a(f"v_add_u32 v{WB+2}, s{S_T0}, v{L16}")
        a("s_waitcnt vmcnt(0)")
        a(f"global_store_dwordx4 v{WB}, {vr(WB+4,4)}, s[{S_Q2}:{S_Q2+1}] sc1")
        acc = lambda ti, rt: ACC + (ti * 2 + rt) * 4
        n = 0
        for rt in range(2):
            p = P + 4 * n; n += 1
            for tt in range(2):
                b = acc(2 + tt, rt)
                a(f"v_cvt_pk_bf16_f32 v{p+2*tt}, v{b}, v{b+1}")
                a(f"v_cvt_pk_bf16_f32 v{p+2*tt+1}, v{b+2}, v{b+3}")
            a(f"global_store_dwordx4 v{WB+rt}, {vr(p,4)}, s[{S_Q0}:{S_Q0+1}] sc1")
        for tt in range(2):
            p = P + 4 * n; n += 1
            for rt in range(2):
                b = acc(4 + tt, rt)
                a(f"v_cvt_pk_bf16_f32 v{p+2*rt}, v{b}, v{b+1}")
                a(f"v_cvt_pk_bf16_f32 v{p+2*rt+1}, v{b+2}, v{b+3}")
            a(f"global_store_dwordx4 v{WB+2}, {vr(p,4)}, s[{S_Q0}:{S_Q0+1}] offset:{1024*tt} sc1")
        for rt in range(2):
            p = P + 4 * n; n += 1
            for tt in range(2):
                b = acc(tt, rt)
                a(f"v_cvt_pk_bf16_f32 v{p+2*tt}, v{b}, v{b+1}")
                a(f"v_cvt_pk_bf16_f32 v{p+2*tt+1}, v{b+2}, v{b+3}")
            a(f"global_store_dwordx4 v{WB+rt}, {vr(p,4)}, s[{S_Q1}:{S_Q1+1}]")
        a(f"s_cmp_eq_u32 s{S_WAVE}, {fwave}")
        a(f"s_cselect_b32 s{S_T0}, 1, 0")
        a(f"s_or_b32 s{S_FE}, s{S_FE}, s{S_T0}")

    def kv_sync_flush(self):
        a = self.a
        a("s_waitcnt vmcnt(0)")
        a("s_barrier")
        self.emit(self.fl_flush(0, True))

    def s3_attn(self):
        a = self.a
        for bit, sreg, layer, H in ((B_KA, S_SA, 0, 0), (B_KB, S_SB, 1, 2)):
            l = self.lab('ka')
            a(f"s_bitcmp1_b32 s{S_PFM}, {bit}")
            a(f"s_cbranch_scc1 {l}")
            a(f"s_cmp_ge_u32 s{sreg}, {NSEG}")
            a(f"s_cbranch_scc1 {l}")
            a("s_waitcnt vmcnt(0)")
            a("s_barrier")
            self.emit([self.ptr(S_Q4, S_WS, sreg, 19, KV_OFF[layer], 14)])
            self.emit(self.dl_lin(S_Q4, H))
            a.label(l)
        KX, S, T, QF, KM, VM = W0, W0 + 32, W0 + 44, W0 + 48, W0 + 64, W0 + 80
        lskip = self.lab('as'); ldone = self.lab('ad')
        a(f"s_lshr_b32 s{S_T2}, s{S_WAVE}, 1")
        a(f"s_cmp_eq_u32 s{S_T2}, 0")
        a(f"s_cselect_b32 s{S_SEG}, s{S_SA}, s{S_SB}")
        a(f"s_cmp_ge_u32 s{S_SEG}, {NSEG}")
        a(f"s_cbranch_scc1 {lskip}")
        a(f"s_lshl_b32 s{S_SC}, s{S_T2}, 6")
        a(f"s_add_u32 s{S_SC}, s{S_SC}, s{S_SEG}")
        assert Q_OFF[1] - Q_OFF[0] == 64 << 18 and KVM_OFF[1] - KVM_OFF[0] == 64 << 17 and FKVM_OFF[1] - FKVM_OFF[0] == 64 << 9
        self.emit([self.ptr(S_Q1, S_WS, S_SC, 18, Q_OFF[0], 13), self.ptr(S_Q3, S_WS, S_SC, 17, KVM_OFF[0], 12)])
        X = KX
        LN, L15, G, KMA, VMA, THR, NEG, QA, U = X, X + 1, X + 2, X + 3, X + 4, X + 5, X + 6, X + 7, X + 8
        VXA, KXA = T, T + 1
        a(f"v_lshrrev_b32 v{LN}, 4, v{L16}")
        a(f"v_lshrrev_b32 v{G}, 4, v{LN}")
        a(f"v_and_b32 v{KMA}, 7, v{LN}")
        a(f"v_lshlrev_b32 v{KMA}, 4, v{KMA}")
        a(f"v_lshl_add_u32 v{KMA}, v{G}, 7, v{KMA}")
        def kml(ka):
            for ks in range(4):
                a(f"global_load_dwordx4 {vr(KM+4*ks,4)}, v{ka}, s[{S_Q3}:{S_Q3+1}] offset:{512*ks} sc1")
        def vml(va):
            for j in range(8):
                a(f"global_load_dwordx2 {vr(VM+2*j,2)}, v{va}, s[{S_Q3}:{S_Q3+1}] offset:{(j>>1)*512+(j&1)*64} sc1")
        def anysent(dst, r):
            a(f"v_max3_u32 v{dst}, v{r}, v{r+1}, v{r+2}")
            a(f"v_max3_u32 v{dst+1}, v{r+3}, v{r+4}, v{r+5}")
            for i in range(6, 14, 4):
                a(f"v_max3_u32 v{dst}, v{dst}, v{r+i}, v{r+i+1}")
                a(f"v_max3_u32 v{dst+1}, v{dst+1}, v{r+i+2}, v{r+i+3}")
            a(f"v_max3_u32 v{dst}, v{dst}, v{r+14}, v{r+15}")
            a(f"v_max_u32 v{dst}, v{dst}, v{dst+1}")
            a(f"v_cmp_eq_u32 vcc, -1, v{dst}")
        kml(KMA)
        a(f"s_and_b32 s{S_T0}, s{S_WAVE}, 1")
        a(f"s_lshl_b32 s{S_T1}, s{S_T0}, 12")
        a(f"v_add_u32 v{QA}, s{S_T1}, v{L16}")
        for ks in range(4):
            a(f"global_load_dwordx4 {vr(QF+4*ks,4)}, v{QA}, s[{S_Q1}:{S_Q1+1}] offset:{1024*ks} sc1")
        a(f"v_and_b32 v{L15}, 15, v{LN}")
        a(f"s_lshl_b32 s{S_T1}, s{S_T0}, 4")
        a(f"v_add_u32 v{THR}, s{S_T1}, v{L15}")
        a(f"v_lshlrev_b32 v{U}, 2, v{G}")
        a(f"v_sub_u32 v{THR}, v{THR}, v{U}")
        a(f"s_lshl_b32 s{S_T2}, s{S_T2}, 15")
        a(f"v_add_u32 v{KXA}, s{S_T2}, v{FL}")
        a(f"v_lshrrev_b32 v{VXA}, 3, v{L15}")
        a(f"v_lshlrev_b32 v{VXA}, 10, v{VXA}")
        a(f"v_lshl_add_u32 v{VXA}, v{G}, 8, v{VXA}")
        a(f"v_bfe_u32 v{U}, v{L15}, 2, 1")
        a(f"v_lshl_add_u32 v{VXA}, v{U}, 7, v{VXA}")
        a(f"v_and_b32 v{U}, 3, v{L15}")
        a(f"v_lshl_add_u32 v{VXA}, v{U}, 4, v{VXA}")
        a(f"s_add_u32 s{S_T2}, s{S_T2}, {L_FB+8192}")
        a(f"v_add_u32 v{VXA}, s{S_T2}, v{VXA}")
        a(f"v_lshrrev_b32 v{VMA}, 2, v{L15}")
        a(f"v_lshlrev_b32 v{VMA}, 7, v{VMA}")
        a(f"v_lshl_add_u32 v{VMA}, v{U}, 4, v{VMA}")
        a(f"v_and_b32 v{U}, 1, v{G}")
        a(f"v_lshl_add_u32 v{VMA}, v{U}, 3, v{VMA}")
        a(f"v_add_u32 v{T+2}, 2048, v{VMA}")
        a(f"v_mov_b32 v{NEG}, 0xff800000")
        a(f"v_cmp_gt_u32 vcc, 2, v{G}")
        for i in range(4):
            a(f"v_cndmask_b32 v{S+i}, v{NEG}, v{ZERO}, vcc")
        for kt in range(2):
            for i in range(4):
                a(f"v_cmp_le_i32 vcc, {16*kt+i}, v{THR}")
                a(f"v_cndmask_b32 v{S+4+4*kt+i}, v{NEG}, v{ZERO}, vcc")
        a(f"v_mov_b32 v{T+3}, v{KMA}")
        KMA = T + 3
        a("s_waitcnt vmcnt(0)")
        a("s_barrier")
        self.emit(self.fl_flush(0, True))
        q = LdsQ(a)
        for ks in range(4):
            q.issue(f"ds_read_b128 {vr(KX+4*ks,4)}, v{KXA} offset:{1024*ks}", ks)
            q.issue(f"ds_read_b128 {vr(KX+16+4*ks,4)}, v{KXA} offset:{4096+1024*ks}", ks)
        for ks in range(4):
            q.wait(ks)
            a(f"v_mfma_f32_16x16x32_bf16 {vr(S+4,4)}, {vr(KX+4*ks,4)}, {vr(QF+4*ks,4)}, {vr(S+4,4)}")
            a(f"v_mfma_f32_16x16x32_bf16 {vr(S+8,4)}, {vr(KX+16+4*ks,4)}, {vr(QF+4*ks,4)}, {vr(S+8,4)}")
        VX = KX
        for j in range(8):
            a(f"ds_read_b128 {vr(VX+4*j,4)}, v{VXA} offset:{(j>>1)*2048+(j&1)*64}")
        lp = self.lab('fw'); lgo = self.lab('fg')
        a(f"s_mov_b32 s{S_SPIN}, {SPIN_MAX}")
        a.label(lp)
        anysent(T, KM)
        a(f"s_cbranch_vccz {lgo}")
        a("s_mov_b64 exec, vcc")
        kml(KMA)
        a("s_mov_b64 exec, -1")
        self.spin_dec()
        a("s_waitcnt vmcnt(0)")
        a(f"s_branch {lp}")
        a.label(lgo)
        vml(T + 2)
        for ks in range(4):
            a(f"v_mfma_f32_16x16x32_bf16 {vr(S,4)}, {vr(KM+4*ks,4)}, {vr(QF+4*ks,4)}, {vr(S,4)}")
        M = KM
        a(f"v_max3_f32 v{T}, v{S+4}, v{S+5}, v{S+6}")
        a(f"v_max3_f32 v{T+1}, v{S+7}, v{S+8}, v{S+9}")
        a(f"v_max3_f32 v{T}, v{T}, v{S+10}, v{S+11}")
        a(f"v_max_f32 v{T}, v{T}, v{T+1}")
        a(f"v_max3_f32 v{M}, v{T}, v{S}, v{S+1}")
        a(f"v_max3_f32 v{M}, v{M}, v{S+2}, v{S+3}")
        for sw in ('16', '32'):
            a(f"v_mov_b32 v{M+1}, v{M}")
            a(f"v_permlane{sw}_swap_b32 v{M+1}, v{M}")
            a(f"v_max_f32 v{M}, v{M}, v{M+1}")
        a(f"v_mul_f32 v{M}, s{S_C}, v{M}")
        for i in range(6):
            a(f"v_pk_fma_f32 {vr(S+2*i,2)}, {vr(S+2*i,2)}, s[{S_C}:{S_C+1}], {vr(M,2)} op_sel_hi:[1,1,0] neg_lo:[0,0,1] neg_hi:[0,0,1]")
        for i in range(12):
            a(f"v_exp_f32 v{S+i}, v{S+i}")
        a(f"v_pk_add_f32 {vr(M,2)}, {vr(S,2)}, {vr(S+2,2)}")
        a(f"v_pk_add_f32 {vr(M+2,2)}, {vr(S+4,2)}, {vr(S+6,2)}")
        a(f"v_pk_add_f32 {vr(M+4,2)}, {vr(S+8,2)}, {vr(S+10,2)}")
        a(f"v_pk_add_f32 {vr(M,2)}, {vr(M,2)}, {vr(M+2,2)}")
        a(f"v_pk_add_f32 {vr(M,2)}, {vr(M,2)}, {vr(M+4,2)}")
        a(f"v_add_f32 v{M}, v{M}, v{M+1}")
        for sw in ('16', '32'):
            a(f"v_mov_b32 v{M+1}, v{M}")
            a(f"v_permlane{sw}_swap_b32 v{M+1}, v{M}")
            a(f"v_add_f32 v{M}, v{M}, v{M+1}")
        a(f"v_rcp_f32 v{M}, v{M}")
        for i in range(6):
            a(f"v_pk_mul_f32 {vr(S+2*i,2)}, {vr(S+2*i,2)}, {vr(M,2)} op_sel_hi:[1,0]")
        PM, PX = S, S + 4
        a(f"v_cvt_pk_bf16_f32 v{PM}, v{S}, v{S+1}")
        a(f"v_cvt_pk_bf16_f32 v{PM+1}, v{S+2}, v{S+3}")
        for i in range(4):
            a(f"v_cvt_pk_bf16_f32 v{PX+i}, v{S+4+2*i}, v{S+5+2*i}")
        a("s_waitcnt lgkmcnt(0)")
        O = QF
        for j in range(8):
            a(f"v_mfma_f32_16x16x32_bf16 {vr(O+4*j,4)}, {vr(VX+4*j,4)}, {vr(PX,4)}, 0")
        lp = self.lab('vw'); lgo = self.lab('vg')
        a(f"s_mov_b32 s{S_SPIN}, {SPIN_MAX}")
        a.label(lp)
        a("s_waitcnt vmcnt(0)")
        anysent(T, VM)
        a(f"s_cbranch_vccz {lgo}")
        a("s_mov_b64 exec, vcc")
        vml(T + 2)
        a("s_mov_b64 exec, -1")
        self.spin_dec()
        a(f"s_branch {lp}")
        a.label(lgo)
        a(f"s_lshl_b32 s{S_T0}, s{S_RANK}, 13")
        a(f"s_and_b32 s{S_T1}, s{S_WAVE}, 1")
        a(f"s_lshl_b32 s{S_T1}, s{S_T1}, 12")
        a(f"s_add_u32 s{S_T0}, s{S_T0}, s{S_T1}")
        a(f"s_lshr_b32 s{S_T1}, s{S_WAVE}, 1")
        a(f"s_lshl_b32 s{S_T1}, s{S_T1}, 18")
        a(f"s_add_u32 s{S_T0}, s{S_T0}, s{S_T1}")
        a(f"s_add_u32 s{S_T0}, s{S_T0}, s{S_OB}")
        add64(a, S_Q0, S_TS, f"s{S_T0}")
        def ost(kl):
            p = O + 8 * kl
            for u in range(2):
                b = O + 4 * (2 * kl + u)
                a(f"v_cvt_pk_bf16_f32 v{p+2*u}, v{b}, v{b+1}")
                a(f"v_cvt_pk_bf16_f32 v{p+2*u+1}, v{b+2}, v{b+3}")
            a(f"global_store_dwordx4 v{L16}, {vr(p,4)}, s[{S_Q0}:{S_Q0+1}] offset:{1024*kl}{self.sc}")
        for j in range(8):
            a(f"v_mfma_f32_16x16x16_bf16 {vr(O+4*j,4)}, {vr(VM+2*j,2)}, {vr(PM,2)}, {vr(O+4*j,4)}")
            if j in (4, 6):
                ost((j - 4) >> 1)
        ost(2); ost(3)
        a(f"s_branch {ldone}")
        a.label(lskip)
        a("s_waitcnt vmcnt(0)")
        a("s_barrier")
        self.emit(self.fl_flush(0, True))
        a.label(ldone)
        a(f"s_lshl_b32 s{S_T0}, s{S_RANK}, 4")
        a(f"s_lshl_b32 s{S_T1}, s{S_WAVE}, 2")
        a(f"s_add_u32 s{S_T0}, s{S_T0}, s{S_T1}")
        a(f"s_add_u32 s{S_T0}, s{S_T0}, {X_OF}")
        a(f"v_mov_b32 v{T}, s{S_T0}")
        a(f"s_add_u32 s{S_T2}, s{S_K}, 1")
        a(f"v_mov_b32 v{T+1}, s{S_T2}")
        a(f"s_lshl_b32 s{S_T0}, s{S_A}, 6")
        a(f"s_add_u32 s{S_T0}, s{S_T0}, {X_OF}")
        a(f"v_bfe_u32 v{T+2}, v{L16}, 4, 4")
        a(f"v_lshlrev_b32 v{T+2}, 2, v{T+2}")
        a(f"v_add_u32 v{T+2}, s{S_T0}, v{T+2}")
        a("s_waitcnt vmcnt(0)")
        a("s_mov_b64 exec, 1")
        a(f"global_store_dword v{T}, v{T+1}, s[{S_TS}:{S_TS+1}]{self.sc}")
        a("s_mov_b64 exec, -1")
        self.stamp()
        lp = self.lab('of')
        a(f"s_mov_b32 s{S_SPIN}, {SPIN_MAX}")
        a.label(lp)
        a(f"global_load_dword v{T+3}, v{T+2}, s[{S_TS}:{S_TS+1}] sc1")
        self.spin_dec()
        a("s_waitcnt vmcnt(0)")
        a(f"v_cmp_gt_u32 vcc, s{S_T2}, v{T+3}")
        a(f"s_cbranch_vccnz {lp}")

    def ob_ptr(self, dst, slot, half):
        return [f"s_lshl_b32 s{S_T0}, s{S_A}, 15", f"s_add_u32 s{S_T0}, s{S_T0}, s{S_OB}",
                f"s_add_u32 s{S_T0}, s{S_T0}, {slot*256*KB + half*16384}",
                f"s_add_u32 s{dst}, s{S_TS}, s{S_T0}", f"s_addc_u32 s{dst+1}, s{S_TS+1}, 0"]

    def s3_wo(self, slot, Hs, hooks):
        a = self.a
        self.gemm3([6, 7], False, Hs, hooks)
        ACC = W0
        a(f"s_add_u32 s{S_T0}, s{S_PB}, {slot*Q_BUF}")
        add64(a, S_Q3, S_TS, f"s{S_T0}")
        add64(a, S_Q2, S_Q3, 8 * Q_UN)
        a(f"s_xor_b32 s{S_T1}, s{S_TAG}, {slot}")
        for rt in range(2):
            b0, b1 = ACC + 4 * rt, ACC + 8 + 4 * rt
            a(f"v_swap_b32 v{b0+2}, v{b1}")
            a(f"v_swap_b32 v{b0+3}, v{b1+1}")
            for ih, b in enumerate((b0, b1)):
                a(f"v_and_or_b32 v{b}, v{b}, -2, s{S_T1}")
                p = (S_Q3, S_Q2)[rt]
                a(f"global_store_dwordx4 v{(PSV, PSV1)[ih]}, {vr(b,4)}, s[{p}:{p+1}]{self.sc}")

    def s3_reduce(self):
        a = self.a
        lsk = self.lab('rd'); lend = self.lab('re')
        LD, T, XR = W0, W0 + 32, W0 + 44
        RX = L_FB + HOFF[0]
        a(f"s_lshr_b32 s{S_T2}, s{S_RANK}, 4")
        a(f"s_cmp_eq_u32 s{S_T2}, 0")
        a(f"s_cselect_b32 s{S_SEG}, s{S_SA}, s{S_SB}")
        a(f"s_cmp_ge_u32 s{S_SEG}, {NSEG}")
        a(f"s_cbranch_scc1 {lsk}")
        a(f"s_and_b32 s{S_SC}, s{S_RANK}, 15")
        a(f"s_mul_i32 s{S_T0}, s{S_SC}, {Q_UN}")
        a(f"s_mul_i32 s{S_T1}, s{S_T2}, {Q_BUF}")
        a(f"s_add_u32 s{S_T0}, s{S_T0}, s{S_T1}")
        a(f"s_lshl_b32 s{S_T1}, s{S_WAVE}, 10")
        a(f"s_add_u32 s{S_T0}, s{S_T0}, s{S_T1}")
        a(f"s_add_u32 s{S_T0}, s{S_T0}, s{S_PB}")
        add64(a, S_Q0, S_TS, f"s{S_T0}")
        for j in range(1, 8):
            a(f"v_add_u32 v{T+j}, {Q_SP*j}, v{L16}")
        def loads():
            for i in range(8):
                a(f"global_load_dwordx4 {vr(LD+4*i,4)}, v{T+i if i else L16}, s[{S_Q0}:{S_Q0+1}] sc1")
        loads()
        a(f"s_lshl_b32 s{S_SC}, s{S_SC}, 1")
        a(f"s_and_b32 s{S_T0}, s{S_WAVE}, 1")
        a(f"s_add_u32 s{S_SC}, s{S_SC}, s{S_T0}")
        a(f"s_lshl_b32 s{S_T0}, s{S_SEG}, 5")
        a(f"s_add_u32 s{S_SC}, s{S_SC}, s{S_T0}")
        a(f"s_lshl_b32 s{S_T0}, s{S_SC}, 10")
        add64(a, S_Q1, S_WS, f"s{S_T0}")
        add64(a, S_Q2, S_X, f"s{S_T0}")
        add64(a, S_Q3, S_Q1, X2_OFF)
        a(f"s_cmp_eq_u32 s{S_T2}, 0")
        a(f"s_cselect_b64 s[{S_Q2}:{S_Q2+1}], s[{S_Q2}:{S_Q2+1}], s[{S_Q3}:{S_Q3+1}]")
        a(f"global_load_dwordx4 {vr(XR,4)}, v{L16}, s[{S_Q2}:{S_Q2+1}] sc1")
        a(f"s_lshl_b32 s{S_T0}, s{S_T2}, 21")
        add64(a, S_Q1, S_Q1, f"s{S_T0}")
        a(f"s_lshl_b32 s{S_T0}, s{S_T2}, 13")
        a(f"s_lshl_b32 s{S_T1}, s{S_SC}, 2")
        a(f"s_add_u32 s{S_T0}, s{S_T0}, s{S_T1}")
        a(f"s_add_u32 s{S_T0}, s{S_T0}, {FX1_OFF[0]}")
        add64(a, S_FP[1], S_WS, f"s{S_T0}")
        C = W0 + 48
        a(f"v_lshrrev_b32 v{T}, 6, v{L16}")
        a(f"v_lshlrev_b32 v{T}, 5, v{T}")
        a(f"v_bfe_u32 v{C}, v{L16}, 4, 2")
        a(f"v_lshl_add_u32 v{T}, v{C}, 2, v{T}")
        a(f"s_lshl_b32 s{S_T0}, s{S_WAVE}, 9")
        a(f"s_add_u32 s{S_T0}, s{S_T0}, {RX}")
        a(f"v_add_u32 v{T}, s{S_T0}, v{T}")
        a(f"s_lshl_b32 s{S_T0}, s{S_WAVE}, 11")
        a(f"s_add_u32 s{S_T0}, s{S_T0}, {RX}")
        a(f"v_lshl_add_u32 v{T+8}, v{L16}, 1, s{S_T0}")
        a(f"s_xor_b32 s{S_T2}, s{S_T2}, s{S_TAG}")
        a(f"s_sub_u32 s{S_T2}, 0, s{S_T2}")
        lp = self.lab('rp'); lgo = self.lab('rg')
        a(f"s_mov_b32 s{S_SPIN}, {SPIN_MAX}")
        a.label(lp)
        a("s_waitcnt vmcnt(0)")
        tt = 0
        for idx in range(8):
            x, y, z = (idx >> 2) & 1, (idx >> 1) & 1, idx & 1
            if (x ^ z) | (y ^ z):
                tt |= 1 << idx
        for i in range(4):
            a(f"v_bitop3_b32 v{C+i}, v{LD+8*i}, v{LD+8*i+4}, s{S_T2} bitop3:0x{tt:02x}")
        a(f"v_or3_b32 v{C}, v{C}, v{C+1}, v{C+2}")
        a(f"v_bitop3_b32 v{C}, v{C}, v{C+3}, 1 bitop3:0xa8")
        a(f"v_cmp_ne_u32 vcc, 0, v{C}")
        a(f"s_cbranch_vccz {lgo}")
        a("s_mov_b64 exec, vcc")
        loads()
        a("s_mov_b64 exec, -1")
        self.spin_dec()
        a(f"s_branch {lp}")
        a.label(lgo)
        for step in (4, 2, 1):
            for s_ in range(step):
                for e in range(2):
                    a(f"v_pk_add_f32 {vr(LD+4*s_+2*e,2)}, {vr(LD+4*s_+2*e,2)}, {vr(LD+4*(s_+step)+2*e,2)}")
        a(f"ds_write2_b32 v{T}, v{LD}, v{LD+2} offset0:0 offset1:4")
        a(f"v_add_u32 v{T+1}, 2048, v{T}")
        a(f"ds_write2_b32 v{T+1}, v{LD+1}, v{LD+3} offset0:0 offset1:4")
        a("s_waitcnt lgkmcnt(0)")
        a("s_barrier")
        a(f"s_cmp_ge_u32 s{S_WAVE}, 2")
        a(f"s_cbranch_scc1 {lend}")
        a(f"ds_read_b128 {vr(LD,4)}, v{T+8}")
        a(f"ds_read_b128 {vr(LD+4,4)}, v{T+8} offset:16")
        a("s_waitcnt lgkmcnt(0)")
        Y = LD
        X = LD + 8; D = LD + 16; P = LD + 24; TT = LD + 28
        self.pack8(P, Y)
        self.unpack8(Y, P)
        self.unpack8(X, XR)
        for e in range(4):
            a(f"v_pk_add_f32 {vr(X+2*e,2)}, {vr(X+2*e,2)}, {vr(Y+2*e,2)}")
        XP = C
        self.pack8(XP, X)
        a(f"v_add_u32 v{T}, {X1_OFF[0]}, v{L16}")
        a(f"global_store_dwordx4 v{T}, {vr(XP,4)}, s[{S_Q1}:{S_Q1+1}] sc1")
        self.unpack8(X, XP)
        self.layernorm(X, D, P, TT)
        a(f"v_add_u32 v{T+2}, {XN1_OFF[0]}, v{L16}")
        a(f"global_store_dwordx4 v{T+2}, {vr(P,4)}, s[{S_Q1}:{S_Q1+1}] sc1")
        a(f"s_bitset1_b32 s{S_FE}, 1")
        a(f"s_branch {lend}")
        a.label(lsk)
        a("s_waitcnt vmcnt(0)")
        a.label(lend)

    def x3_main(self):
        a = self.a
        DB, CA = self.DB, self.CA
        if self.stamps:
            a(f"s_lshl_b32 s{S_T0}, s{S_RANK}, 13")
            a(f"s_lshl_b32 s{S_T1}, s{S_TEAM}, 18")
            a(f"s_add_u32 s{S_T0}, s{S_T0}, s{S_T1}")
            a(f"s_add_u32 s{S_T0}, s{S_T0}, {STAMP_OFF}")
            add64(a, S_ST, S_WS, f"s{S_T0}")
        S_S1, S_S2 = S_P0, S_P0 + 1
        S_NA, S_NB = S_P1, S_P1 + 1
        S_R = S_P2
        a(f"s_mov_b32 s{S_K}, {-CA}")
        a(f"s_mov_b32 s{S_PFM}, 0")
        a(f"s_mov_b32 s{S_FE}, 0")
        for p in S_FP[:2]:
            add64(a, p, S_TS, X_OF + 1024)
        lloop = self.lab('xw')
        a.label(lloop)
        self.nstamp = 0
        a(f"s_mul_i32 s{S_SA}, s{S_K}, {NX}")
        a(f"s_add_u32 s{S_SA}, s{S_SA}, s{S_XT}")
        a(f"s_sub_u32 s{S_SB}, s{S_SA}, {NX*DB}")
        a(f"s_sub_u32 s{S_S1}, s{S_SA}, {NX}")
        a(f"s_add_u32 s{S_S2}, s{S_SA}, {CA*NX}")
        a(f"s_add_u32 s{S_NA}, s{S_SA}, {NX}")
        a(f"s_add_u32 s{S_NB}, s{S_SB}, {NX}")
        a(f"s_bfe_u32 s{S_TAG}, s{S_K}, 0x10001")
        a(f"s_xor_b32 s{S_TAG}, s{S_TAG}, 1")
        a(f"s_and_b32 s{S_T0}, s{S_K}, 1")
        a(f"s_lshl_b32 s{S_OB}, s{S_T0}, 19")
        a(f"s_add_u32 s{S_OB}, s{S_OB}, {X_OB}")
        a(f"s_mul_i32 s{S_PB}, s{S_T0}, {2*Q_BUF}")
        a(f"s_add_u32 s{S_PB}, s{S_PB}, {X_PART}")
        def skip_if_invalid(sreg):
            l = self.lab('g')
            a(f"s_cmp_ge_u32 s{sreg}, {NSEG}")
            a(f"s_cbranch_scc1 {l}")
            return l
        def setbit(bit, sreg):
            return [f"s_cmp_lt_u32 s{sreg}, {NSEG}", f"s_cselect_b32 s{S_T0}, {1 << bit}, 0", f"s_or_b32 s{S_PFM}, s{S_PFM}, s{S_T0}"]
        fx2_addr = [[f"s_lshl_b32 s{S_T0}, s{S_S1}, 7", f"s_lshl_b32 s{S_T1}, s{S_WAVE}, 5", f"s_add_u32 s{S_T0}, s{S_T0}, s{S_T1}",
                     f"s_add_u32 s{S_T0}, s{S_T0}, {FX2_OFF}", f"v_bfe_u32 v{FLA}, v{L16}, 4, 3"],
                    [f"v_lshlrev_b32 v{FLA}, 2, v{FLA}", f"v_add_u32 v{FLA}, s{S_T0}, v{FLA}"]]
        self.stamp()
        a(f"s_min_u32 s{S_T0}, s{S_SA}, s{S_SB}")
        lnoatt = skip_if_invalid(S_T0)
        self.s3_attn()
        a(f"s_mov_b32 s{S_PFM}, 0")
        self.stamp()
        l = self.lab('tg')
        a(f"s_cmp_lt_u32 s{S_SA}, {NSEG}")
        a(f"s_cbranch_scc1 {l}")
        a(f"s_sub_u32 s{S_SC}, s{S_SB}, {2*NX}")
        self.poll_flags32(FX1_OFF[1], S_SC, W0)
        self.emit([self.ob_ptr(S_Q4, 1, 1)]); self.emit(self.dl_lin(S_Q4, 0))
        a.label(l)
        l = skip_if_invalid(S_SA)
        self.emit([self.ob_ptr(S_Q4, 0, 0)]); self.emit(self.dl_lin(S_Q4, 0))
        self.emit([self.ob_ptr(S_Q4, 0, 1)]); self.emit(self.dl_lin(S_Q4, 1))
        a.label(l)
        self.emit([self.ob_ptr(S_Q4, 1, 0)]); self.emit(self.dl_lin(S_Q4, 2))
        l = skip_if_invalid(S_SA)
        a("s_waitcnt vmcnt(8)")
        a("s_barrier")
        self.s3_wo(0, (0, 1), {7: [self.ob_ptr(S_Q4, 1, 1), [f"s_cmp_lt_u32 s{S_SB}, {NSEG}", f"s_cselect_b64 s[{S_MK}:{S_MK+1}], -1, 0"]] + self.dl_lin(S_Q4, 0, S_MK)})
        a.label(l)
        self.stamp()
        l = skip_if_invalid(S_SB)
        lb = self.lab('wb')
        a(f"s_cmp_lt_u32 s{S_SA}, {NSEG}")
        a(f"s_cbranch_scc1 {lb}")
        a("s_waitcnt vmcnt(0)")
        a("s_barrier")
        a.label(lb)
        rq = self.ptr(S_R, S_WS, S_S1, 15, XN2_OFF)
        rc = self.rc_ptr(S_R, S_S2)
        a(f"v_mov_b32 v{FLG}, 0")
        lq = skip_if_invalid(S_S1)
        self.emit(fx2_addr)
        a(f"global_load_dword v{FLG}, v{FLA}, s[{S_WS}:{S_WS+1}] sc1")
        a.label(lq)
        h7 = [[f"v_cmp_eq_u32 vcc, 0, v{FLG}"], rq, ["s_cmp_eq_u64 vcc, 0", f"s_cselect_b32 s{S_T0}, {1 << B_Q}, 0", f"s_or_b32 s{S_PFM}, s{S_PFM}, s{S_T0}"], self.mk(B_Q)] \
             + self.dl_rows(S_R, 0, 1, S_MK) + self.dl_rows(S_R, 1, 2, S_MK)
        self.s3_wo(1, (2, 0), {7: h7})
        a.label(l)
        self.stamp()
        self.s3_reduce()
        a.label(lnoatt)
        self.stamp()
        l = skip_if_invalid(S_S1)
        lpf = self.lab('q1p')
        a(f"s_bitcmp1_b32 s{S_PFM}, {B_Q}")
        a(f"s_cbranch_scc1 {lpf}")
        self.emit(fx2_addr)
        a("s_waitcnt vmcnt(0)")
        self.emit(self.fl_flush(1, False))
        lp = self.lab('pf')
        a(f"s_mov_b32 s{S_SPIN}, {SPIN_MAX}")
        a.label(lp)
        a(f"global_load_dword v{FLG}, v{FLA}, s[{S_WS}:{S_WS+1}] sc1")
        self.spin_dec()
        a("s_waitcnt vmcnt(0)")
        a(f"v_cmp_eq_u32 vcc, 0, v{FLG}")
        a(f"s_cbranch_vccnz {lp}")
        self.emit([rq]); self.emit(self.dl_rows(S_R, 0, 1)); self.emit(self.dl_rows(S_R, 1, 2))
        a("s_waitcnt vmcnt(4)")
        a.label(lpf)
        a("s_barrier")
        self.stamp()
        a(f"s_mov_b32 s{S_SEG}, s{S_S1}")
        self.s3_qkv(1, (1, 2), {self.FX1KS: [["s_waitcnt vmcnt(0)"]] + self.fl_flush(1, False) + [rc, setbit(B_C, S_S2), self.mk(B_C)] + self.dl_rows(S_R, 0, 0, S_MK),
                                7: self.dl_rows(S_R, 1, 1, S_MK)})
        a.label(l)
        self.stamp()
        lc = skip_if_invalid(S_S2)
        lpf = self.lab('cp')
        a(f"s_bitcmp1_b32 s{S_PFM}, {B_C}")
        a(f"s_cbranch_scc1 {lpf}")
        a("s_barrier")
        self.emit([rc]); self.emit(self.dl_rows(S_R, 0, 0)); self.emit(self.dl_rows(S_R, 1, 1))
        a("s_waitcnt vmcnt(4)")
        a.label(lpf)
        a("s_barrier")
        self.stamp()
        a(f"s_mov_b32 s{S_SEG}, s{S_S2}")
        kb = [setbit(B_KB, S_NB), self.mk(B_KB), self.ptr(S_Q4, S_WS, S_NB, 19, KV_OFF[1], 14)] + self.dl_lin(S_Q4, 2, S_MK)
        ka = [setbit(B_KA, S_NA), self.mk(B_KA), self.ptr(S_Q4, S_WS, S_NA, 19, KV_OFF[0], 14)] + self.dl_lin(S_Q4, 0, S_MK)
        fl = self.fl_flush(0, True) + self.fl_flush(1, False)
        if self.KVKS < 7:
            hk = {self.KVKS: [["s_waitcnt vmcnt(0)", "s_barrier"]] + fl, 7: kb + ka}
        else:
            hk = {7: fl + kb + ka}
        self.s3_qkv(0, (0, 1), hk, fwave=0)
        lce = self.lab('ce')
        a(f"s_cmp_ge_i32 s{S_K}, -1")
        a(f"s_cbranch_scc1 {lce}")
        self.kv_sync_flush()
        a(f"s_branch {lce}")
        a.label(lc)
        a("s_waitcnt vmcnt(0)")
        self.emit(self.fl_flush(1, False))
        a("s_barrier")
        self.emit(self.fl_flush(0, True))
        a.label(lce)
        self.stamp()
        if self.stamps:
            ls = self.lab('ns')
            a(f"s_cmp_lg_u32 s{S_WAVE}, 1")
            a(f"s_cbranch_scc1 {ls}")
            a("s_waitcnt lgkmcnt(0)")
            for i in range(self.nstamp):
                a(f"v_writelane_b32 v{W0+90}, s{S_STAMP0+2*i}, {i}")
            for i in (13, 14, 15):
                a(f"v_writelane_b32 v{W0+90}, s{S_STAMP0+2*i}, {i}")
            a(f"v_lshrrev_b32 v{W0+91}, 2, v{L16}")
            a("s_mov_b64 exec, 0xffff")
            a(f"global_store_dword v{W0+91}, v{W0+90}, s[{S_ST}:{S_ST+1}]")
            a("s_mov_b64 exec, -1")
            a.label(ls)
            add64(a, S_ST, S_ST, 128)
        a(f"s_add_u32 s{S_K}, s{S_K}, 1")
        a(f"s_cmp_lt_i32 s{S_K}, {NKW + DB}")
        lend = self.lab('xe')
        a(f"s_cbranch_scc0 {lend}")
        a(f"s_branch {lloop}")
        a.label(lend)
```

```python
import sys, os
from gcommon import *
from gx3 import GenX3 as GenX, HX
from gr2 import GenR, HOMES as HR, R_KV, R_WB, R_SCR
from gf import GenF

TEAM_OFF_SAFE = 192 * MB
OUT = 'interleave_layers__memory_aug_recurrent_mem_tr__dense_activation_gelu__prompt.s'

class Gen(GenBase, GenX, GenR, GenF):
    DB = 2
    CA = 2
    def arrive(self, off_text):
        a = self.a
        lskip = self.lab('arr')
        a(f"s_cmp_lg_u32 s{S_WAVE}, 0")
        a(f"s_cbranch_scc1 {lskip}")
        self.dbg_atomic(off_text, False)
        a.label(lskip)

    def prologue(self):
        a = self.a
        a(f"s_cmp_ge_u32 s2, 256")
        a("s_cbranch_scc1 L_end0")
        if self.stamps:
            a("s_memrealtime s[94:95]")
        a(f"s_load_dwordx2 s[{S_WS}:{S_WS+1}], s[0:1], 112")
        a(f"s_load_dwordx2 s[{S_DBG}:{S_DBG+1}], s[0:1], 104")
        a(f"s_getreg_b32 s{S_TEAM}, hwreg(HW_REG_XCC_ID)")
        a(f"s_and_b32 s{S_TEAM}, s{S_TEAM}, 7")
        a("v_lshrrev_b32 v1, 6, v0")
        a(f"v_readfirstlane_b32 s{S_WAVE}, v1")
        a("s_waitcnt lgkmcnt(0)")
        l1 = self.lab('reg'); lpfx = self.lab('pfx')
        a(f"s_cmp_lg_u32 s{S_WAVE}, 0")
        a(f"s_cbranch_scc1 {lpfx}")
        a(f"s_lshl_b32 s{S_T0}, s2, 9")
        a(f"s_add_u32 s{S_T0}, s{S_T0}, {FLAG_OFF}")
        a("v_lshlrev_b32 v5, 3, v0")
        a(f"v_add_u32 v5, s{S_T0}, v5")
        a("v_mov_b32 v6, 0")
        a("v_mov_b32 v7, 0")
        a(f"s_lshl_b32 s{S_T0}, s{S_TEAM}, 2")
        self.dbg_atomic(f"s{S_T0}", True)
        a(f"global_store_dwordx2 v5, v[6:7], s[{S_WS}:{S_WS+1}] sc1")
        a("s_waitcnt vmcnt(1)")
        a("s_mov_b64 exec, 1")
        a(f"v_mov_b32 v1, {L_RED}")
        a("ds_write_b32 v1, v3")
        a("s_waitcnt lgkmcnt(0)")
        a("s_mov_b64 exec, -1")
        a(f"s_branch {l1}")
        a.label(lpfx)
        a(f"s_lshl_b32 s{S_T0}, s{S_WAVE}, 3")
        a(f"s_add_u32 s{S_T0}, s{S_T0}, 8")
        a(f"s_load_dwordx2 s[{S_P0}:{S_P0+1}], s[0:1], s{S_T0}")
        a(f"s_load_dwordx2 s[{S_P1}:{S_P1+1}], s[0:1], 40")
        a(f"s_load_dwordx2 s[{S_P2}:{S_P2+1}], s[0:1], 64")
        a(f"s_load_dwordx2 s[{S_P3}:{S_P3+1}], s[0:1], 80")
        a("v_and_b32 v1, 63, v0")
        a("v_lshlrev_b32 v1, 4, v1")
        a(f"s_lshl_b32 s{S_T0}, s2, 14")
        a(f"v_add_u32 v2, s{S_T0}, v1")
        a("s_waitcnt lgkmcnt(0)")
        for i in range(4):
            for j in range(4):
                a(f"global_load_dwordx4 v[108:111], v2, s[{S_P0}:{S_P0+1}] offset:{1024*j}")
            a("v_add_u32 v2, 4096, v2")
        l3 = self.lab('pf3')
        a(f"s_cmp_eq_u32 s{S_WAVE}, 3")
        a(f"s_cbranch_scc1 {l3}")
        a(f"s_lshl_b32 s{S_T1}, s{S_WAVE}, 13")
        a(f"s_add_u32 s{S_T0}, s{S_T0}, s{S_T1}")
        a(f"s_sub_u32 s{S_T0}, s{S_T0}, 8192")
        a(f"v_add_u32 v2, s{S_T0}, v1")
        for i in range(2):
            for j in range(4):
                a(f"global_load_dwordx4 v[108:111], v2, s[{S_P1}:{S_P1+1}] offset:{1024*j}")
            a("v_add_u32 v2, 4096, v2")
        a(f"s_branch {l1}")
        a.label(l3)
        a(f"s_mul_i32 s{S_T0}, s2, 5120")
        a(f"v_add_u32 v2, s{S_T0}, v1")
        a("v_add_u32 v3, 4096, v2")
        for p in (S_P2, S_P3):
            for j in range(4):
                a(f"global_load_dwordx4 v[108:111], v2, s[{p}:{p+1}] offset:{1024*j}")
            a(f"global_load_dwordx4 v[108:111], v3, s[{p}:{p+1}]")
        a.label(l1)
        a("s_barrier")
        a(f"v_mov_b32 v1, {L_RED}")
        a("ds_read_b32 v2, v1")
        l2 = self.lab('reg2')
        a(f"s_cmp_lg_u32 s{S_WAVE}, 0")
        a(f"s_cbranch_scc1 {l2}")
        a("s_waitcnt vmcnt(0) lgkmcnt(0)")
        a("v_mov_b32 v4, v2")
        self.dbg_atomic("32", False)
        a("v_mov_b32 v2, v4")
        a.label(l2)
        a("s_waitcnt lgkmcnt(0)")
        a(f"v_readfirstlane_b32 s{S_RANK}, v2")
        a("s_barrier")
        a("s_branch L_start")
        a.label("L_end0")
        a("s_endpgm")
        a.label("L_start")

    def team_base(self, off):
        a = self.a
        a(f"s_lshl_b32 s{S_T0}, s{S_TEAM}, 23")
        a(f"s_add_u32 s{S_T0}, s{S_T0}, {off}")
        add64(a, S_TS, S_WS, f"s{S_T0}")

    stamp_wave = 0
    def wait_global(self, lsafe, L_RED=L_RED):
        a = self.a
        l1 = self.lab('wg'); lp = self.lab('wgp')
        a(f"s_cmp_lg_u32 s{S_WAVE}, 0")
        a(f"s_cbranch_scc1 {l1}")
        a("v_and_b32 v16, 15, v0")
        a("v_lshlrev_b32 v16, 2, v16")
        a("v_mov_b32 v17, 0")
        a(f"s_mov_b32 s{S_SPIN}, {SPIN_MAX}")
        a("s_mov_b64 exec, 0x1ff")
        a.label(lp)
        a(f"global_atomic_add v18, v16, v17, s[{S_DBG}:{S_DBG+1}] sc0 sc1")
        a("s_waitcnt vmcnt(0)")
        a(f"v_readlane_b32 s{S_T0}, v18, 8")
        self.spin_dec()
        a(f"s_cmp_lt_u32 s{S_T0}, 256")
        a(f"s_cbranch_scc1 {lp}")
        a(f"global_atomic_add v18, v16, v17, s[{S_DBG}:{S_DBG+1}] sc0 sc1")
        a("s_waitcnt vmcnt(0)")
        a("s_mov_b64 exec, 0xff")
        a("v_cmp_ne_u32 vcc, 32, v18")
        a("s_mov_b64 exec, -1")
        a("v_mov_b32 v18, vcc_lo")
        if self.force_safe:
            a("v_mov_b32 v18, 1")
        a(f"v_mov_b32 v16, {L_RED}")
        a("ds_write_b32 v16, v18")
        a("s_waitcnt lgkmcnt(0)")
        a.label(l1)
        a("s_barrier")
        a(f"v_mov_b32 v16, {L_RED}")
        a("ds_read_b32 v18, v16")
        a("s_waitcnt lgkmcnt(0)")
        a(f"v_readfirstlane_b32 s{S_T0}, v18")
        a("s_barrier")
        a(f"s_cmp_lg_u32 s{S_T0}, 0")
        a(f"s_cbranch_scc1 {lsafe}")

    R1SLEEP = int(os.environ.get('R1SLEEP', 2))
    FSLEEP = int(os.environ.get('FSLEEP', 2))
    def role(self, kind, safe):
        a = self.a
        cnt = 96 if safe else 64
        self.xcnt = 132 if safe else 128
        self.end = self.lab('end')
        LS = R_SCR if kind == 'r' else L_RED
        def arr():
            a(f"s_lshl_b32 s{S_T0}, s{S_TEAM}, 2")
            a(f"s_add_u32 s{S_T0}, s{S_T0}, {cnt}")
            self.arrive(f"s{S_T0}")
        def rd(dst):
            l = self.lab('rd')
            a(f"s_cmp_lg_u32 s{S_WAVE}, 0")
            a(f"s_cbranch_scc1 {l}")
            a("v_lshlrev_b32 v1, 2, v0")
            a("v_mov_b32 v2, 0")
            a(f"global_atomic_add v{dst}, v1, v2, s[{S_DBG}:{S_DBG+1}] sc0 sc1")
            a.label(l)
        def ev():
            l = self.lab('ev')
            a(f"s_cmp_lg_u32 s{S_WAVE}, 0")
            a(f"s_cbranch_scc1 {l}")
            a("s_waitcnt vmcnt(0)")
            a(f"v_readlane_b32 s{S_T0}, v104, 8")
            a("v_cmp_eq_u32 vcc, 32, v105")
            a(f"s_add_u32 s{S_T1}, s{S_TEAM}, {cnt // 4}")
            a(f"s_lshl_b64 s[{S_P0}:{S_P0+1}], 1, s{S_T1}")
            m = (0 if safe else 0xff)
            a(f"s_or_b32 s{S_P0}, s{S_P0}, {m}")
            if kind == 'x':
                a(f"s_or_b32 s{S_P0+1}, s{S_P0+1}, {1 << (self.xcnt // 4 - 32)}")
            a(f"v_mov_b32 v1, {LS}")
            a("s_nop 1")
            a(f"s_andn2_b64 s[{S_P0}:{S_P0+1}], s[{S_P0}:{S_P0+1}], vcc")
            a(f"s_cselect_b32 s{S_T1}, 1, 0")
            if not safe:
                a(f"s_cmp_lg_u32 s{S_T0}, 256")
                a(f"s_cselect_b32 s{S_T1}, 1, s{S_T1}")
                if self.force_safe:
                    a(f"s_mov_b32 s{S_T1}, 1")
            a(f"v_mov_b32 v2, s{S_T1}")
            a("ds_write_b32 v1, v2")
            a("s_waitcnt lgkmcnt(0)")
            a.label(l)
        mid = {5: arr, 12: lambda: rd(104), 24: lambda: rd(105), 31: ev}
        if self.stamps:
            a("s_memrealtime s[90:91]")
        if kind == 'r':
            self.r_xn0()
            self.r_init()
            self.load_weights(kind, HR, L_KV=R_KV, L_WB=R_WB, rot=True, after_issue=self.r_init2, mid=mid)
        elif kind == 'x':
            self.x_sconsts()
            XS = int(os.environ.get('XS', 0))
            if XS:
                lz = self.lab('xs'); lzz = self.lab('xz')
                a(f"s_sub_u32 s{S_T0}, s{S_TEAM}, 2")
                a.label(lz)
                a(f"s_cmp_eq_u32 s{S_T0}, 0")
                a(f"s_cbranch_scc1 {lzz}")
                a(f"s_sleep {XS}")
                a(f"s_sub_u32 s{S_T0}, s{S_T0}, 1")
                a(f"s_branch {lz}")
                a.label(lzz)
            self.load_weights(kind, HX, after_issue=self.x3_init, mid=mid)
        else:
            self.f_sconsts()
            self.f_init()
            arr()
            for i in range(self.FSLEEP):
                a("s_sleep 127")
            self.x_consts()
            self.f_load_weights()
        if self.stamps:
            a("s_memrealtime s[92:93]")
        lgo = self.lab('go')
        if kind != 'f':
            a(f"v_mov_b32 v16, {LS}")
            a("ds_read_b32 v17, v16")
            a("s_waitcnt lgkmcnt(0)")
            a(f"v_readfirstlane_b32 s{S_T0}, v17")
            a("s_barrier")
            a(f"s_cmp_eq_u32 s{S_T0}, 0")
            a(f"s_cbranch_scc1 {lgo}")
        if not safe:
            self.wait_global('L_safe_far_' + kind, LS)
        a(f"s_lshl_b32 s{S_T1}, s{S_TEAM}, 2")
        a(f"s_add_u32 s{S_T1}, s{S_T1}, {cnt}")
        self.wait_dbg(f"s{S_T1}", 32, 17)
        if kind == 'x':
            self.wait_dbg(str(self.xcnt), 32, 17)
        a.label(lgo)
        if kind == 'r':
            self.r_consts()
            self.r_main()
        elif kind == 'x':
            self.x3_consts()
            self.x3_main()
        else:
            self.f_main()
        a.label(self.end)
        a("s_endpgm")

def gen_full(stamps, force_safe=False):
    g = Gen(stamps=stamps)
    g.force_safe = force_safe
    a = g.a
    g.prologue()
    g.team_base(TEAM_OFF)
    a(f"s_cmp_ge_u32 s{S_RANK}, 32")
    a("s_cbranch_scc1 L_norank")
    a(f"s_cmp_eq_u32 s{S_TEAM}, 7")
    a("s_cbranch_scc1 L_fast_f")
    a(f"s_cmp_ge_u32 s{S_TEAM}, 2")
    a("s_cbranch_scc1 L_fast_x")
    a("s_branch L_fast_r")
    a.label("L_norank")
    g.end = 'L_end0'
    g.wait_global('L_safe_far_r')
    a.label("L_safe_far_r")
    a("s_branch L_safe")
    a.label("L_fast_r")
    g.role('r', False)
    a.label("L_fast_x")
    g.role('x', False)
    a.label("L_fast_f")
    g.role('f', False)
    a.label("L_safe_far_x")
    a.label("L_safe_far_f")
    a.label("L_safe")
    g.sc = ' sc1'
    lq = g.lab('sg')
    a("s_waitcnt vmcnt(0) lgkmcnt(0)")
    a(f"s_cmp_lg_u32 s{S_WAVE}, 0")
    a(f"s_cbranch_scc1 {lq}")
    g.dbg_atomic("36", True)
    a("s_waitcnt vmcnt(0)")
    a("s_mov_b64 exec, 1")
    a(f"v_mov_b32 v1, {L_RED}")
    a("ds_write_b32 v1, v3")
    a("s_waitcnt lgkmcnt(0)")
    a("s_mov_b64 exec, -1")
    a.label(lq)
    a("s_barrier")
    a(f"v_mov_b32 v1, {L_RED}")
    a("ds_read_b32 v2, v1")
    a("s_waitcnt lgkmcnt(0)")
    a(f"v_readfirstlane_b32 s{S_GRANK}, v2")
    a("s_barrier")
    a(f"s_lshr_b32 s{S_TEAM}, s{S_GRANK}, 5")
    a(f"s_and_b32 s{S_RANK}, s{S_GRANK}, 31")
    g.team_base(TEAM_OFF_SAFE)
    a(f"s_cmp_eq_u32 s{S_TEAM}, 7")
    a("s_cbranch_scc1 L_safe_f")
    a(f"s_cmp_ge_u32 s{S_TEAM}, 2")
    a("s_cbranch_scc1 L_safe_x")
    g.role('r', True)
    a.label("L_safe_x")
    g.role('x', True)
    a.label("L_safe_f")
    g.role('f', True)
    return g.finish(f"; @launch grid=(256,1,1) block=(256,1,1) lds={LDS_BYTES}")

if __name__ == '__main__':
    mode = sys.argv[1]
    if mode == 'final':
        open(OUT, 'w').write(gen_full(stamps=False))
    elif mode == 'stamps':
        open('full.s', 'w').write(gen_full(stamps=True))
    elif mode == 'plain':
        open('plain.s', 'w').write(gen_full(stamps=False))
    elif mode == 'safe':
        open('fullsafe.s', 'w').write(gen_full(stamps=False, force_safe=True))
```

```python
import os
from gcommon import *
from gx2 import *
Q_SP = 2048 + 128
Q_UN = 8 * Q_SP + 128
assert 16 * Q_UN <= P_BUF

S_U = 22
S_N = 23
S_J = 26
S_L = 27
S_FP = 60
S_XN1 = 61
S_X1 = 62
S_FX1 = 63

L_HL = 0
L_STG = 16384

B1R = 128
B2R = 140

def w1home(i, ks):
    return ('a', 4 * (i * 16 + ks))
def w2home(bq, c):
    n = bq * 11 + c
    return ('a', 192 + 4 * n) if n < 16 else ('v', 144 + 4 * (n - 16))

class GenF:
    def f_sconsts(self):
        a = self.a
        a(f"s_lshr_b32 s{S_U}, s{S_RANK}, 3")
        a(f"s_and_b32 s{S_J}, s{S_RANK}, 7")
        a(f"s_and_b32 s{S_L}, s{S_U}, 1")
        a(f"s_mul_i32 s{S_PSB}, s{S_J}, {P_SP}")
        a(f"s_lshl_b32 s{S_T0}, s{S_WAVE}, 9")
        a(f"s_add_u32 s{S_PSB}, s{S_PSB}, s{S_T0}")
        a(f"s_mul_i32 s{S_FP}, s{S_U}, {2*P_BUF}")
        if F_PART:
            a(f"s_add_u32 s{S_FP}, s{S_FP}, {F_PART}")
        a(f"s_cmp_eq_u32 s{S_L}, 0")
        a(f"s_cselect_b32 s{S_XN1}, {XN1_OFF[0]}, {XN1_OFF[1]}") if False else None
        a(f"s_lshl_b32 s{S_T0}, s{S_L}, 21")
        a(f"s_add_u32 s{S_XN1}, s{S_T0}, {XN1_OFF[0]}")
        a(f"s_add_u32 s{S_X1}, s{S_T0}, {X1_OFF[0]}")
        a(f"s_lshl_b32 s{S_T0}, s{S_L}, 13")
        a(f"s_add_u32 s{S_FX1}, s{S_T0}, {FX1_OFF[0]}")
        assert XN1_OFF[1] - XN1_OFF[0] == 2 * MB and X1_OFF[1] - X1_OFF[0] == 2 * MB and FX1_OFF[1] - FX1_OFF[0] == 8192
        a(f"s_load_dwordx2 s[{S_OUT}:{S_OUT+1}], s[0:1], 96")
        a(f"s_load_dwordx2 s[{S_B1}:{S_B1+1}], s[0:1], 72")
        a(f"s_load_dwordx2 s[{S_B2}:{S_B2+1}], s[0:1], 88")
        a("s_waitcnt lgkmcnt(0)")

    def f_init(self):
        a = self.a
        sc = self.sc
        a("v_lshlrev_b32 v2, 4, v0")
        for i in range(4):
            a(f"v_mov_b32 v{8+i}, 0")
        a(f"s_mul_i32 s{S_T0}, s{S_J}, {P_BUF//8}")
        a(f"s_add_u32 s{S_T0}, s{S_T0}, s{S_FP}")
        a(f"v_add_u32 v3, s{S_T0}, v2")
        for bq in range(2):
            for hh in range(18):
                a(f"v_add_u32 v12, {bq*P_BUF + hh*4096}, v3")
                a(f"global_store_dwordx4 v12, v[8:11], s[{S_TS}:{S_TS+1}]{sc}")
        a("s_waitcnt vmcnt(0)")
        a("s_barrier")

    def f_load_weights(self):
        a = self.a
        R0 = W0
        A1, A2, A3, A4 = W0 + 92, W0 + 93, W0 + 94, W0 + 95
        a(f"s_load_dwordx2 s[{S_Q0}:{S_Q0+1}], s[0:1], 64")
        a(f"s_load_dwordx2 s[{S_Q1}:{S_Q1+1}], s[0:1], 80")
        a(f"s_mul_i32 s{S_T2}, s{S_WAVE}, {16*KB}")
        a(f"s_add_u32 s{S_T2}, s{S_T2}, {L_STG}")
        a(f"v_add_u32 v{A2}, s{S_T2}, v{L16}")
        a(f"v_lshrrev_b32 v{A3}, 8, v{L16}")
        a(f"v_lshlrev_b32 v{A3}, 8, v{A3}")
        a(f"v_bfe_u32 v{A1}, v{L16}, 6, 2")
        a(f"v_lshl_add_u32 v{A3}, v{A1}, 5, v{A3}")
        a(f"v_bfe_u32 v{A1}, v{L16}, 4, 2")
        a(f"v_lshl_add_u32 v{A3}, v{A1}, 3, v{A3}")
        a(f"v_add_u32 v{A3}, s{S_T2}, v{A3}")
        a("s_waitcnt lgkmcnt(0)")
        for i in range(3):
            lzero = self.lab('f1z'); ldone = self.lab('f1d')
            for e in range(4):
                a(f"v_mov_b32 v{B1R+4*i+e}, 0")
            a(f"s_add_u32 s{S_T1}, s{S_WAVE}, {4*i}")
            a(f"s_cmp_ge_u32 s{S_T1}, 11")
            a(f"s_cbranch_scc1 {lzero}")
            a(f"s_mul_i32 s{S_T0}, s{S_J}, 11")
            a(f"s_add_u32 s{S_T0}, s{S_T0}, s{S_T1}")
            a(f"s_cmp_ge_u32 s{S_T0}, 86")
            a(f"s_cbranch_scc1 {lzero}")
            a(f"s_lshl_b32 s{S_T0}, s{S_T0}, 5")
            a(f"v_lshrrev_b32 v{A4}, 8, v{L16}")
            a(f"v_lshlrev_b32 v{A4}, 3, v{A4}")
            a(f"v_add_u32 v{A4}, s{S_T0}, v{A4}")
            a(f"global_load_dwordx2 {vr(R0+64,2)}, v{A4}, s[{S_B1}:{S_B1+1}]")
            a(f"v_lshrrev_b32 v{A1}, 5, v{L16}")
            a(f"v_mul_u32_u24 v{A1}, 2752, v{A1}")
            a(f"v_and_b32 v{A4}, 16, v{L16}")
            a(f"v_add_u32 v{A1}, v{A1}, v{A4}")
            a(f"v_add_u32 v{A1}, s{S_T0}, v{A1}")
            for ks in range(16):
                a(f"global_load_dwordx4 {vr(R0+4*ks,4)}, v{A1}, s[{S_Q0}:{S_Q0+1}]")
                if ks < 15:
                    a(f"v_add_u32 v{A1}, {32*2752}, v{A1}")
            a("s_waitcnt vmcnt(0)")
            for ks in range(16):
                a(f"ds_write_b128 v{A2}, {vr(R0+4*ks,4)} offset:{1024*ks}")
            a(f"v_lshlrev_b32 v{B1R+4*i}, 16, v{R0+64}")
            a(f"v_and_b32 v{B1R+4*i+1}, 0xffff0000, v{R0+64}")
            a(f"v_lshlrev_b32 v{B1R+4*i+2}, 16, v{R0+65}")
            a(f"v_and_b32 v{B1R+4*i+3}, 0xffff0000, v{R0+65}")
            a("s_waitcnt lgkmcnt(0)")
            for ks in range(16):
                hk, hb = w1home(i, ks)
                for u in range(2):
                    a(f"ds_read_b64_tr_b16 {rr(hk, hb+2*u, 2)}, v{A3} offset:{1024*ks+128*u}")
            a("s_waitcnt lgkmcnt(0)")
            a(f"s_branch {ldone}")
            a.label(lzero)
            for ks in range(16):
                hk, hb = w1home(i, ks)
                for e in range(4):
                    a(f"v_accvgpr_write_b32 a{hb+e}, 0")
            a.label(ldone)
        a(f"v_lshrrev_b32 v{A3}, 8, v{L16}")
        a(f"v_lshlrev_b32 v{A3}, 8, v{A3}")
        a(f"v_bfe_u32 v{A1}, v{L16}, 6, 2")
        a(f"v_lshl_add_u32 v{A3}, v{A1}, 6, v{A3}")
        a(f"v_bfe_u32 v{A1}, v{L16}, 4, 2")
        a(f"v_lshl_add_u32 v{A3}, v{A1}, 4, v{A3}")
        a(f"v_add_u32 v{A3}, s{S_T2}, v{A3}")
        a(f"global_load_dwordx4 {vr(B2R,4)}, v{L16}, s[{S_B2}:{S_B2+1}]")
        for bq in range(4):
            a(f"v_lshrrev_b32 v{A1}, 6, v{L16}")
            a(f"v_lshlrev_b32 v{A1}, 10, v{A1}")
            a(f"v_and_b32 v{A4}, 48, v{L16}")
            a(f"v_add_u32 v{A1}, v{A1}, v{A4}")
            a(f"s_mul_i32 s{S_T0}, s{S_J}, {176*1024}")
            a(f"s_lshl_b32 s{S_T1}, s{S_WAVE}, 6")
            a(f"s_add_u32 s{S_T0}, s{S_T0}, s{S_T1}")
            a(f"s_add_u32 s{S_T0}, s{S_T0}, {256*bq}")
            a(f"v_add_u32 v{A1}, s{S_T0}, v{A1}")
            for i in range(9):
                a(f"global_load_dwordx4 {vr(R0+4*i,4)}, v{A1}, s[{S_Q1}:{S_Q1+1}]")
                a(f"v_add_u32 v{A1}, {16*1024}, v{A1}")
            for i in range(8):
                a(f"v_mov_b32 v{R0+36+i}, 0")
            l7 = self.lab('f2z')
            a(f"s_cmp_eq_u32 s{S_J}, 7")
            a(f"s_cbranch_scc1 {l7}")
            for i in range(9, 11):
                a(f"global_load_dwordx4 {vr(R0+4*i,4)}, v{A1}, s[{S_Q1}:{S_Q1+1}]")
                a(f"v_add_u32 v{A1}, {16*1024}, v{A1}")
            a.label(l7)
            a("s_waitcnt vmcnt(0)")
            for i in range(11):
                a(f"ds_write_b128 v{A2}, {vr(R0+4*i,4)} offset:{1024*i}")
            a("s_waitcnt lgkmcnt(0)")
            for p in range(5):
                for ct in range(2):
                    hk, hb = w2home(bq, 2 * p + ct)
                    for u in range(2):
                        a(f"ds_read_b64_tr_b16 {rr(hk, hb+2*u, 2)}, v{A3} offset:{(2*p+u)*1024+8*ct}")
            hk, hb = w2home(bq, 10)
            for ct in range(2):
                a(f"ds_read_b64_tr_b16 {rr(hk, hb+2*ct, 2)}, v{A3} offset:{10*1024+8*ct}")
            a("s_waitcnt lgkmcnt(0)")
        a("s_barrier")

    def f_main(self):
        a = self.a
        sc = self.sc
        if self.stamps:
            a(f"s_lshl_b32 s{S_T0}, s{S_RANK}, 13")
            a(f"s_lshl_b32 s{S_T1}, s{S_TEAM}, 18")
            a(f"s_add_u32 s{S_T0}, s{S_T0}, s{S_T1}")
            a(f"s_add_u32 s{S_T0}, s{S_T0}, {STAMP_OFF}")
            add64(a, S_ST, S_WS, f"s{S_T0}")
        S_PF = 50
        S_FL = 100
        S_K3 = 44
        S_M0 = 46
        A = [16, 44]; XF = 28; U = 56; P = 68; K1, HW, FLGN, ONE, L8, FLA = 74, 75, 76, 77, 78, 79
        Hh = 16; AC = [80, 40]; DT = 112
        XR = 124; FLV = 15
        a(f"v_mov_b32 v{WLA}, -1")
        a(f"v_lshrrev_b32 v{PSV1}, 8, v{L16}")
        a(f"v_mul_u32_u24 v{PSV}, {2*Q_UN}, v{PSV1}")
        a(f"v_and_b32 v{PSV1}, 0xf0, v{L16}")
        a(f"v_add_u32 v{PSV}, v{PSV}, v{PSV1}")
        a(f"s_mul_i32 s{S_T0}, s{S_J}, {Q_SP}")
        a(f"s_lshl_b32 s{S_T1}, s{S_WAVE}, 8")
        a(f"s_add_u32 s{S_T0}, s{S_T0}, s{S_T1}")
        a(f"v_add_u32 v{PSV}, s{S_T0}, v{PSV}")
        a(f"v_add_u32 v{PSV1}, {Q_UN}, v{PSV}")
        S_R1, S_UB, S_MV, S_2C = S_P0, S_P1, S_P2, S_P3
        a(f"s_mov_b32 s{S_2C}, 0")
        self.row_frag_consts()
        k1 = -2.0 * math.log2(math.e) * math.sqrt(2.0 / math.pi)
        k3 = k1 * 0.044715
        a(f"s_mov_b32 s{S_K3}, {f32hex(k3)}")
        a(f"s_mov_b32 s{S_K3+1}, {f32hex(k3)}")
        a(f"s_lshl_b32 s{S_M0}, s{S_WAVE}, 13")
        a(f"s_add_u32 s{S_M0}, s{S_M0}, {L_FB}")
        a(f"s_mov_b64 s[{S_PF}:{S_PF+1}], 0")
        a(f"s_mov_b64 s[{S_FL}:{S_FL+1}], 0")
        a(f"v_mov_b32 v{FLV}, {FX2_OFF + 8192}")
        a(f"s_mov_b32 s{S_N}, 0")
        S_G, S_GN = S_XN1, S_FX1
        TH = int(os.environ.get('FTH', 52))
        assert TH % 2 == 0 and (64 - TH) % 4 == 0
        a(f"s_lshr_b32 s{S_G}, s{S_U}, 1")
        a(f"s_lshl_b32 s{S_T0}, s{S_L}, 6")
        a(f"s_add_u32 s{S_G}, s{S_G}, s{S_T0}")
        def flag_addr(seg_add):
            a(f"s_lshl_b32 s{S_T0}, s{S_GN if seg_add else S_G}, 7")
            a(f"s_add_u32 s{S_T0}, s{S_T0}, {FX1_OFF[0]}")
            a(f"s_lshl_b32 s{S_T1}, s{S_WAVE}, 5")
            a(f"s_add_u32 s{S_T0}, s{S_T0}, s{S_T1}")
            a(f"v_bfe_u32 v{FLA}, v{L16}, 4, 3")
            a(f"v_lshlrev_b32 v{FLA}, 2, v{FLA}")
            a(f"v_add_u32 v{FLA}, s{S_T0}, v{FLA}")
        def rows_ptr(seg_add):
            a(f"s_lshl_b32 s{S_T0}, s{S_GN if seg_add else S_G}, 15")
            a(f"s_add_u32 s{S_T0}, s{S_T0}, {XN1_OFF[0]}")
            add64(a, S_Q0, S_WS, f"s{S_T0}")
        def flag_flush():
            a("s_waitcnt vmcnt(0)")
            a(f"s_mov_b64 exec, s[{S_FL}:{S_FL+1}]")
            a(f"global_store_dword v{FLV}, v{WLA}, s[{S_WS}:{S_WS+1}] sc1")
            a("s_mov_b64 exec, -1")
            a(f"s_mov_b64 s[{S_FL}:{S_FL+1}], 0")
        lloop = self.lab('fj')
        a.label(lloop)
        self.nstamp = 0
        self.stamp()
        a(f"s_and_b32 s{S_SEG}, s{S_G}, 63")
        a(f"s_lshr_b32 s{S_L}, s{S_G}, 6")
        a(f"s_lshl_b32 s{S_T0}, s{S_L}, 21")
        a(f"s_add_u32 s{S_X1}, s{S_T0}, {X1_OFF[0]}")
        a(f"s_cmp_ge_u32 s{S_G}, {64 + TH}")
        a(f"s_cselect_b32 s{S_T0}, 4, 2")
        a(f"s_add_u32 s{S_GN}, s{S_G}, s{S_T0}")
        a(f"s_lshr_b32 s{S_T0}, s{S_G}, 1")
        a(f"s_cmp_eq_u32 s{S_T0}, 31")
        a(f"s_cselect_b32 s{S_T0}, {TH + 2}, 0")
        a(f"s_add_u32 s{S_GN}, s{S_GN}, s{S_T0}")
        a(f"s_and_b32 s{S_PAR}, s{S_N}, 1")
        a(f"s_mul_i32 s{S_PAR}, s{S_PAR}, {P_BUF}")
        a(f"s_add_u32 s{S_PAR}, s{S_PAR}, s{S_FP}")
        a(f"s_bfe_u32 s{S_TAG}, s{S_N}, 0x10001")
        a(f"s_xor_b32 s{S_TAG}, s{S_TAG}, 1")
        lpf = self.lab('fpf')
        a(f"s_cmp_lg_u64 s[{S_PF}:{S_PF+1}], 0")
        a(f"s_cbranch_scc1 {lpf}")
        flag_flush()
        flag_addr(0)
        lp = self.lab('pf')
        a(f"s_mov_b32 s{S_SPIN}, {SPIN_MAX}")
        a.label(lp)
        a(f"global_load_dword v{FLGN}, v{FLA}, s[{S_WS}:{S_WS+1}] sc1")
        self.spin_dec()
        a("s_waitcnt vmcnt(0)")
        a(f"v_cmp_eq_u32 vcc, 0, v{FLGN}")
        a(f"s_cbranch_vccnz {lp}")
        rows_ptr(0)
        for l in self.dma_rows(S_Q0, S_M0, DT):
            a(l)
        a("s_waitcnt vmcnt(0)")
        a.label(lpf)
        l2c = self.lab('f2c')
        a(f"s_cmp_eq_u32 s{S_2C}, 0")
        a(f"s_cbranch_scc1 {l2c}")
        a("s_waitcnt vmcnt(1)")
        a(f"s_mov_b32 s{S_2C}, 0")
        a.label(l2c)
        a("s_barrier")
        self.stamp()
        a(f"v_mov_b32 v{K1}, {f32hex(k1)}")
        a(f"v_mov_b32 v{ONE}, 1.0")
        a(f"v_lshrrev_b32 v{L8}, 1, v{L16}")
        a(f"s_lshl_b32 s{S_T0}, s{S_WAVE}, 9")
        a(f"v_add_u32 v{HW}, s{S_T0}, v{L8}")
        a(f"v_mov_b32 v{FLGN}, 0")
        def gelu(rt):
            X = A[rt]; l = []
            def up(i):
                r = []
                for e in range(2):
                    r.append(f"v_cvt_pk_bf16_f32 v{P+2*i+e}, v{X+4*i+2*e}, v{X+4*i+2*e+1}")
                for e in range(2):
                    r.append(f"v_lshlrev_b32 v{X+4*i+2*e}, 16, v{P+2*i+e}")
                    r.append(f"v_and_b32 v{X+4*i+2*e+1}, 0xffff0000, v{P+2*i+e}")
                return r
            for i in range(3):
                l += up(i)
                for e in range(4):
                    l.append(f"v_add_f32 v{X+4*i+e}, v{X+4*i+e}, v{B1R+4*i+e}")
                l += up(i)
            for e in range(12):
                l.append(f"v_mul_f32 v{U+e}, v{X+e}, v{X+e}")
            for e in range(12):
                l.append(f"v_fma_f32 v{U+e}, v{U+e}, s{S_K3}, v{K1}")
            for e in range(12):
                l.append(f"v_mul_f32 v{U+e}, v{U+e}, v{X+e}")
            for e in range(12):
                l.append(f"v_exp_f32 v{U+e}, v{U+e}")
            for e in range(12):
                l.append(f"v_add_f32 v{U+e}, 1.0, v{U+e}")
            for e in range(12):
                l.append(f"v_rcp_f32 v{U+e}, v{U+e}")
            for e in range(12):
                l.append(f"v_mul_f32 v{U+e}, v{U+e}, v{X+e}")
            for e in range(6):
                l.append(f"v_cvt_pk_bf16_f32 v{P+e}, v{U+2*e}, v{U+2*e+1}")
            for i in range(3):
                l.append(f"ds_write_b64 v{HW}, {vr(P+2*i,2)} offset:{L_HL+rt*6144+2048*i}")
            return l
        class Mix:
            def __init__(s, fill, budget=12, delay=2):
                s.fill = list(fill); s.budget = budget; s.delay = delay; s.acc = 0
            def slot(s):
                if s.delay > 0:
                    s.delay -= 1; return
                s.acc += s.budget
                while s.fill:
                    c = 8 if s.fill[0].split()[0] in ('v_exp_f32', 'v_rcp_f32') else 4
                    if c > s.acc: break
                    s.acc -= c
                    a(s.fill.pop(0))
            def flush(s):
                for l in s.fill: a(l)
                s.fill = []
        q = LdsQ(a)
        def xread(n):
            rt, ks = n >> 4, n & 15
            q.issue(f"ds_read_b128 {vr(XF+4*(n&3),4)}, v{FR0+(ks&3)} offset:{rt*16384+(ks>>2)*256}", n)
        for n in range(3):
            xread(n)
        mix = Mix([])
        for n in range(32):
            rt, ks = n >> 4, n & 15
            if n + 3 < 32:
                xread(n + 3)
            if n == 16:
                mix = Mix(gelu(0)[:-3], budget=14)
            q.wait(n)
            for i in range(3):
                hk, hb = w1home(i, ks)
                d = vr(A[rt] + 4 * i, 4)
                a(f"v_mfma_f32_16x16x32_bf16 {d}, {rr(hk,hb,4)}, {vr(XF+4*(n&3),4)}, {'0' if ks == 0 else d}")
                mix.slot()
            if n == 10:
                flag_flush()
                a(f"s_lshl_b32 s{S_T1}, s{S_J}, 1")
                a(f"s_and_b32 s{S_T0}, s{S_WAVE}, 1")
                a(f"s_add_u32 s{S_T1}, s{S_T1}, s{S_T0}")
                a(f"s_lshr_b32 s{S_T0}, s{S_WAVE}, 1")
                a(f"s_lshl_b32 s{S_T0}, s{S_T0}, 4")
                a(f"s_add_u32 s{S_T1}, s{S_T1}, s{S_T0}")
                a(f"s_lshl_b32 s{S_T0}, s{S_SEG}, 5")
                a(f"s_add_u32 s{S_T1}, s{S_T1}, s{S_T0}")
                a(f"s_lshl_b32 s{S_T0}, s{S_T1}, 10")
                add64(a, S_Q1, S_WS, f"s{S_T0}")
                add64(a, S_Q2, S_OUT, f"s{S_T0}")
            if n == 11:
                a(f"v_add_u32 v{DT}, s{S_X1}, v{L16}")
                a(f"global_load_dwordx4 {vr(XR,4)}, v{DT}, s[{S_Q1}:{S_Q1+1}] sc1")
                a(f"s_lshl_b32 s{S_T1}, s{S_T1}, 2")
                a(f"v_mov_b32 v{FLV}, s{S_T1}")
                a(f"v_add_u32 v{FLV}, {FX2_OFF}, v{FLV}")
            if n == 12:
                flag_addr(2)
            if n == 13:
                rows_ptr(2)
                add64(a, S_Q3, S_TS, f"s{S_PAR}")
            if n == 14:
                add64(a, S_R1, S_Q3, 8 * Q_UN)
                a(f"s_lshr_b32 s{S_T0}, s{S_WAVE}, 1")
                a(f"s_lshl_b32 s{S_T0}, s{S_T0}, 3")
                a(f"s_add_u32 s{S_T0}, s{S_T0}, s{S_J}")
                a(f"s_mul_i32 s{S_T0}, s{S_T0}, {Q_UN}")
                a(f"s_and_b32 s{S_T1}, s{S_WAVE}, 1")
                a(f"s_lshl_b32 s{S_T1}, s{S_T1}, 10")
                a(f"s_add_u32 s{S_T0}, s{S_T0}, s{S_T1}")
                add64(a, S_UB, S_Q3, f"s{S_T0}")
        mix.flush()
        for l in gelu(0)[-3:]:
            a(l)
        a("s_waitcnt lgkmcnt(0)")
        a("s_barrier")
        self.stamp()
        def stores(rt, bqs):
            l = []
            p = (S_Q3, S_R1)[rt]
            b = AC[rt] + 8 * bqs[0]
            for d, s_ in ((0, 0), (1, 4), (4, 2), (2, 8), (3, 12)):
                l.append(f"v_cvt_pk_bf16_f32 v{b+d}, v{b+s_}, v{b+s_+1}")
            l.append(f"v_and_or_b32 v{b}, v{b}, -2, s{S_TAG}")
            l.append(f"global_store_dwordx4 v{PSV}, {vr(b,4)}, s[{p}:{p+1}] offset:{512*bqs[0]}{sc}")
            for d, s_ in ((5, 6), (6, 10), (7, 14)):
                l.append(f"v_cvt_pk_bf16_f32 v{b+d}, v{b+s_}, v{b+s_+1}")
            l.append(f"v_and_or_b32 v{b+4}, v{b+4}, -2, s{S_TAG}")
            l.append(f"global_store_dwordx4 v{PSV1}, {vr(b+4,4)}, s[{p}:{p+1}] offset:{512*bqs[0]}{sc}")
            return l
        def uloads(LD):
            l = [f"s_mov_b64 s[{S_MV}:{S_MV+1}], s[{S_UB}:{S_UB+1}]"]
            for i in range(8):
                t = f"global_load_dwordx4 {vr(LD+4*i,4)}, v{L16}, s[{S_MV}:{S_MV+1}] sc1"
                if i < 7:
                    t += f"\ns_add_u32 s{S_MV}, s{S_MV}, {Q_SP}\ns_addc_u32 s{S_MV+1}, s{S_MV+1}, 0"
                l.append(t)
            return l
        def am(t):
            for x_ in t.split('\n'):
                a(x_)
        pend = []
        for rt in range(2):
            q = LdsQ(a)
            if rt == 1:
                a(f"v_cmp_eq_u32 vcc, 0, v{FLGN}")
            for p in range(5):
                q.issue(f"ds_read2_b64 {vr(Hh+4*p,4)}, v{L8} offset0:{(L_HL+rt*6144+1024*p)//8 - (512 if rt else 0)} offset1:{(L_HL+rt*6144+1024*p)//8+64 - (512 if rt else 0)}" if False else
                        f"ds_read2st64_b64 {vr(Hh+4*p,4)}, v{L8} offset0:{(L_HL+rt*6144)//512+2*p} offset1:{(L_HL+rt*6144)//512+2*p+1}", p)
            q.issue(f"ds_read_b64 {vr(Hh+20,2)}, v{L8} offset:{L_HL+rt*6144+5120}", 5)
            if rt == 0:
                a(f"global_load_dword v{FLGN}, v{FLA}, s[{S_WS}:{S_WS+1}] sc1")
                mix = Mix(gelu(1)[:-3], budget=12, delay=0)
                for _ in range(8):
                    mix.slot()
            else:
                a(f"s_cmp_eq_u64 vcc, 0")
                a(f"s_cselect_b64 s[{S_PF}:{S_PF+1}], -1, 0")
                dl = self.dma_rows(S_Q0, S_M0, DT)
                fl = []
                for l in dl:
                    if l.startswith('global_load_lds'):
                        fl.append(f"s_mov_b64 exec, s[{S_PF}:{S_PF+1}]\n{l}\ns_mov_b64 exec, -1")
                    else:
                        fl.append(l)
                mix = Mix(fl, budget=4, delay=8)
            for g in range(2):
                n = 0
                for p in range(6):
                    q.wait(p)
                    for bq in (2 * g, 2 * g + 1):
                        for ct in range(2):
                            d = vr(AC[rt] + 8 * bq + 4 * ct, 4)
                            if p < 5:
                                hk, hb = w2home(bq, 2 * p + ct)
                                a(f"v_mfma_f32_16x16x32_bf16 {d}, {vr(Hh+4*p,4)}, {rr(hk,hb,4)}, {'0' if p == 0 else d}")
                            else:
                                hk, hb = w2home(bq, 10)
                                a(f"v_mfma_f32_16x16x16_bf16 {d}, {vr(Hh+20,2)}, {rr(hk,hb+2*ct,2)}, {d}")
                            mix.slot()
                            n += 1
                            if pend and n >= 3 and n % 4 == 3:
                                a(pend.pop(0)); a(pend.pop(0))
                assert not pend
                pend = stores(rt, (2 * g, 2 * g + 1))
            mix.flush()
            if rt == 0:
                for l in gelu(1)[-3:]:
                    a(l)
                a("s_waitcnt lgkmcnt(0)")
                a("s_barrier")
                self.stamp()
        for l in pend:
            a(l)
        self.stamp()
        a(f"global_load_dword v{FLGN}, v{FLA}, s[{S_WS}:{S_WS+1}] sc1")
        LD = W0
        for t in uloads(LD):
            am(t)
        T, C, SU, TM = 48, 52, 80, 88
        a(f"v_lshrrev_b32 v{T}, 6, v{L16}")
        a(f"v_lshlrev_b32 v{T}, 5, v{T}")
        a(f"v_bfe_u32 v{C}, v{L16}, 4, 2")
        a(f"v_lshl_add_u32 v{T}, v{C}, 2, v{T}")
        a(f"s_lshr_b32 s{S_T0}, s{S_WAVE}, 1")
        a(f"s_lshl_b32 s{S_T0}, s{S_T0}, 12")
        a(f"s_and_b32 s{S_T1}, s{S_WAVE}, 1")
        a(f"s_lshl_b32 s{S_T1}, s{S_T1}, 10")
        a(f"s_add_u32 s{S_T0}, s{S_T0}, s{S_T1}")
        a(f"s_add_u32 s{S_T0}, s{S_T0}, {L_RX}")
        a(f"v_add_u32 v{T}, s{S_T0}, v{T}")
        a(f"v_add_u32 v{T+1}, 2048, v{T}")
        a(f"s_lshl_b32 s{S_T0}, s{S_WAVE}, 11")
        a(f"s_add_u32 s{S_T0}, s{S_T0}, {L_RX}")
        a(f"v_lshl_add_u32 v{T+2}, v{L16}, 1, s{S_T0}")
        a(f"s_sub_u32 s{S_T2}, 0, s{S_TAG}")
        tt = 0
        for idx in range(8):
            x, y, z = (idx >> 2) & 1, (idx >> 1) & 1, idx & 1
            if (x ^ z) | (y ^ z):
                tt |= 1 << idx
        lp = self.lab('rp'); lgo = self.lab('rg')
        a(f"s_mov_b32 s{S_SPIN}, {SPIN_MAX}")
        a.label(lp)
        for i in range(8):
            a(f"s_waitcnt vmcnt({7-i})")
            self.unpack8(SU if i == 0 else TM, LD + 4 * i)
            if i:
                for e in range(4):
                    a(f"v_pk_add_f32 {vr(SU+2*e,2)}, {vr(SU+2*e,2)}, {vr(TM+2*e,2)}")
            if i & 1:
                a(f"v_bitop3_b32 v{C+(i>>1)}, v{LD+4*i-4}, v{LD+4*i}, s{S_T2} bitop3:0x{tt:02x}")
        a(f"v_or3_b32 v{C}, v{C}, v{C+1}, v{C+2}")
        a(f"v_bitop3_b32 v{C}, v{C}, v{C+3}, 1 bitop3:0xa8")
        a(f"v_cmp_ne_u32 vcc, 0, v{C}")
        a(f"s_cbranch_vccz {lgo}")
        a("s_mov_b64 exec, vcc")
        for t in uloads(LD):
            am(t)
        a("s_mov_b64 exec, -1")
        self.spin_dec()
        a(f"s_branch {lp}")
        a.label(lgo)
        a(f"v_cmp_eq_u32 vcc, 0, v{FLGN}")
        for r in range(2):
            a(f"ds_write2_b32 v{T+r}, v{SU+r}, v{SU+2+r} offset0:0 offset1:4")
            a(f"ds_write2_b32 v{T+r}, v{SU+4+r}, v{SU+6+r} offset0:128 offset1:132")
        a("s_nop 1")
        lsk = self.lab('f2s')
        a(f"s_or_b64 vcc, vcc, s[{S_PF}:{S_PF+1}]")
        a(f"s_cbranch_scc1 {lsk}")
        for l in self.dma_rows(S_Q0, S_M0, DT):
            a(l)
        a(f"s_mov_b64 s[{S_PF}:{S_PF+1}], -1")
        a(f"s_mov_b32 s{S_2C}, 1")
        a.label(lsk)
        a("s_waitcnt lgkmcnt(0)")
        a("s_barrier")
        LD = W0
        a(f"ds_read_b128 {vr(LD,4)}, v{T+2}")
        a(f"ds_read_b128 {vr(LD+4,4)}, v{T+2} offset:16")
        a("s_waitcnt lgkmcnt(0)")
        T = W0 + 64
        self.stamp()
        Y = LD
        X = LD + 8; D = LD + 16; P = LD + 24; TT = LD + 28
        self.pack8(P, Y)
        self.unpack8(Y, P)
        self.unpack8(X, B2R)
        for e in range(4):
            a(f"v_pk_add_f32 {vr(Y+2*e,2)}, {vr(Y+2*e,2)}, {vr(X+2*e,2)}")
        self.pack8(P, Y)
        self.unpack8(Y, P)
        self.unpack8(X, XR)
        for e in range(4):
            a(f"v_pk_add_f32 {vr(X+2*e,2)}, {vr(X+2*e,2)}, {vr(Y+2*e,2)}")
        XP = LD + 32
        self.pack8(XP, X)
        l1 = self.lab('fl1'); l2 = self.lab('fl2')
        a(f"s_cmp_lg_u32 s{S_L}, 0")
        a(f"s_cbranch_scc1 {l1}")
        a(f"v_add_u32 v{T}, {X2_OFF}, v{L16}")
        a(f"global_store_dwordx4 v{T}, {vr(XP,4)}, s[{S_Q1}:{S_Q1+1}] sc1")
        self.unpack8(X, XP)
        self.layernorm(X, D, P, TT)
        a(f"v_add_u32 v{T+1}, {XN2_OFF}, v{L16}")
        a(f"global_store_dwordx4 v{T+1}, {vr(P,4)}, s[{S_Q1}:{S_Q1+1}] sc1")
        a(f"s_mov_b64 s[{S_FL}:{S_FL+1}], 1")
        a(f"s_branch {l2}")
        a.label(l1)
        a(f"global_store_dwordx4 v{L16}, {vr(XP,4)}, s[{S_Q2}:{S_Q2+1}]")
        a.label(l2)
        self.stamp()
        if self.stamps:
            ls = self.lab('ns')
            a(f"s_cmp_lg_u32 s{S_WAVE}, 3")
            a(f"s_cbranch_scc1 {ls}")
            self.flush_stamps(W0 + 70, W0 + 71)
            a.label(ls)
        a(f"s_add_u32 s{S_N}, s{S_N}, 1")
        a(f"s_mov_b32 s{S_G}, s{S_GN}")
        a(f"s_cmp_lt_u32 s{S_G}, 128")
        a(f"s_cbranch_scc1 {lloop}")
        flag_flush()
```

```python
import os
from gcommon import *

HOMES = make_homes_r2()

R_MEMS = 0
R_QK = 8192
R_OX = 12288
R_SCR = 14336
R_KV = 16384
R_WB = 49152

S_MB = [22, 24]
S_PRD = 26
S_PST = [28, 50, 52, 54]
S_KVG = 30
S_KVM = 32
S_FKV = 34
S_FKVM = 36
S_PUBM = 42
S_C = 44
S_W4K = 46
S_FM = 56
S_FM1 = 58
S_DM = 100

L16, IDX, QKW, TRA, OWA, WLA, PST, KMO, VMO, PUB, SENT, POLL, MA1, ZERO, TRK, NEGM, FLG = 1, 2, 3, 4, 5, 6, 7, 8, 9, 10, 11, 12, 13, 16, 17, 18, 19
B = [20 + 8 * i for i in range(11)]
X4 = 108

class GenR:
    def r_init(self):
        a = self.a
        sc = self.sc
        LAY = S_TEAM
        a(f"s_lshl_b32 s{S_W4K}, s{S_WAVE}, 12")
        a(f"s_lshl_b32 s{S_T0}, s{LAY}, 25")
        a(f"s_lshl_b32 s{S_T1}, s{S_RANK}, 14")
        a(f"s_add_u32 s{S_T0}, s{S_T0}, s{S_T1}")
        a(f"s_add_u32 s{S_T0}, s{S_T0}, s{S_W4K}")
        add64(a, S_KVG, S_WS, f"s{S_T0}")
        a(f"s_lshl_b32 s{S_T0}, s{LAY}, 23")
        a(f"s_lshl_b32 s{S_T1}, s{S_RANK}, 12")
        a(f"s_add_u32 s{S_T0}, s{S_T0}, s{S_T1}")
        a(f"s_add_u32 s{S_T0}, s{S_T0}, {KVM_OFF[0]}")
        add64(a, S_KVM, S_WS, f"s{S_T0}")
        a(f"s_lshl_b32 s{S_T0}, s{LAY}, 13")
        a(f"s_lshl_b32 s{S_T1}, s{S_RANK}, 2")
        a(f"s_add_u32 s{S_T0}, s{S_T0}, s{S_T1}")
        a(f"s_add_u32 s{S_T1}, s{S_T0}, {FKV_OFF[0]}")
        add64(a, S_FKV, S_WS, f"s{S_T1}")
        a(f"s_lshl_b32 s{S_T0}, s{S_T0}, 2")
        a(f"s_lshl_b32 s{S_T1}, s{S_WAVE}, 2")
        a(f"s_add_u32 s{S_T0}, s{S_T0}, s{S_T1}")
        a(f"s_add_u32 s{S_T1}, s{S_T0}, {FKVM_OFF[0]}")
        add64(a, S_FKVM, S_WS, f"s{S_T1}")
        a(f"s_mov_b64 s[{S_FM}:{S_FM+1}], 0")
        add64(a, S_MB[0], S_TS, R_MEMB)
        add64(a, S_MB[1], S_TS, R_MEMB + 8192)
        for j in range(4):
            add64(a, S_PST[j], S_TS, R_PART + 32768 * j)
        a(f"s_lshl_b32 s{S_T0}, s{S_RANK}, 14")
        a(f"s_add_u32 s{S_T0}, s{S_T0}, s{S_W4K}")
        add64(a, S_PRD, S_PST[0], f"s{S_T0}")
        a(f"s_mov_b32 s{S_PUBM}, 0x00550055")
        a(f"s_mov_b32 s{S_PUBM+1}, 0x00550055")
        c = (128 ** -0.5) * math.log2(math.e)
        a(f"s_mov_b32 s{S_C}, {f32hex(c)}")
        a(f"s_mov_b32 s{S_C+1}, {f32hex(c)}")
        if self.stamps:
            a(f"s_lshl_b32 s{S_T0}, s{S_RANK}, 13")
            a(f"s_lshl_b32 s{S_T1}, s{LAY}, 18")
            a(f"s_add_u32 s{S_T0}, s{S_T0}, s{S_T1}")
            a(f"s_add_u32 s{S_T0}, s{S_T0}, {STAMP_OFF}")
            add64(a, S_ST, S_WS, f"s{S_T0}")
        lskip = self.lab('minit')
        a(f"s_cmp_lg_u32 s{S_WAVE}, 0")
        a(f"s_cbranch_scc1 {lskip}")
        a(f"s_load_dwordx2 s[{S_P0}:{S_P0+1}], s[0:1], 8")
        a("v_bfe_u32 v17, v0, 2, 3")
        a("v_lshlrev_b32 v17, 10, v17")
        a("v_and_b32 v18, 3, v0")
        a("v_lshl_add_u32 v17, v18, 3, v17")
        a("v_lshrrev_b32 v18, 5, v0")
        a("v_lshl_add_u32 v17, v18, 2, v17")
        a(f"s_lshl_b32 s{S_T0}, s{S_RANK}, 5")
        a(f"v_add_u32 v17, s{S_T0}, v17")
        a("s_waitcnt lgkmcnt(0)")
        a(f"global_load_dword v107, v17, s[{S_P0}:{S_P0+1}]")
        a.label(lskip)

    def r_init2(self):
        a = self.a
        sc = self.sc
        a("v_and_b32 v100, 63, v0")
        a("v_lshlrev_b32 v101, 4, v100")
        for i in range(4):
            a(f"v_mov_b32 v{96+i}, 0")
        lskip = self.lab('minit')
        a(f"s_cmp_lg_u32 s{S_WAVE}, 0")
        a(f"s_cbranch_scc1 {lskip}")
        a(f"s_lshl_b32 s{S_T0}, s{S_RANK}, 8")
        a(f"v_lshlrev_b32 v102, 2, v100")
        a(f"v_add_u32 v102, s{S_T0}, v102")
        a("v_mov_b32 v103, -1")
        a("s_waitcnt vmcnt(20)")
        a("v_min_u32 v107, -2, v107")
        a(f"global_store_dword v102, v103, s[{S_MB[1]}:{S_MB[1]+1}]{sc}")
        a(f"global_store_dword v102, v107, s[{S_MB[0]}:{S_MB[0]+1}]{sc}")
        a.label(lskip)
        for j in range(2):
            a(f"global_store_dwordx4 v101, v[96:99], s[{S_PRD}:{S_PRD+1}] offset:{1024*j}{sc}")

    def r_xn0(self):
        a = self.a
        lsk = self.lab('xn0'); lp = self.lab('xnl')
        a(f"s_cmp_lg_u32 s{S_TEAM}, 1")
        a(f"s_cbranch_scc1 {lsk}")
        a(f"s_load_dwordx2 s[{S_P1}:{S_P1+1}], s[0:1], 0")
        add64(a, S_P2, S_WS, XN0_OFF)
        a("v_lshlrev_b32 v12, 4, v0")
        a(f"s_lshl_b32 s{S_T0}, s{S_RANK}, 12")
        a(f"v_add_u32 v12, s{S_T0}, v12")
        a(f"s_mov_b32 s{S_T2}, 0")
        a("s_waitcnt lgkmcnt(0)")
        a.label(lp)
        for i in range(4):
            a(f"v_add_u32 v{4+i}, {i*128*1024}, v12")
            a(f"global_load_dwordx4 {vr(16+4*i,4)}, v{4+i}, s[{S_P1}:{S_P1+1}]")
        for i in range(4):
            a(f"s_waitcnt vmcnt(3)")
            self.unpack8(32, 16 + 4 * i)
            self.layernorm(32, 40, 48 + 4 * i, 64)
            a(f"global_store_dwordx4 v{4+i}, {vr(48+4*i,4)}, s[{S_P2}:{S_P2+1}] sc1")
        a(f"v_add_u32 v12, {512*1024}, v12")
        a(f"s_add_u32 s{S_T2}, s{S_T2}, 1")
        a(f"s_cmp_lt_u32 s{S_T2}, 4")
        a(f"s_cbranch_scc1 {lp}")
        a("s_waitcnt vmcnt(0)")
        a("s_barrier")
        self.arrive(str(self.xcnt))
        for i in range(self.R1SLEEP):
            a("s_sleep 127")
        a.label(lsk)

    def r_consts(self):
        a = self.a
        LN, T1, T2 = 20, 21, 22
        a(f"v_and_b32 v{LN}, 63, v0")
        a(f"v_lshlrev_b32 v{L16}, 4, v{LN}")
        a(f"v_mov_b32 v{SENT}, -1")
        a(f"v_mov_b32 v{ZERO}, 0")
        a(f"v_mov_b32 v{T1}, 0xff800000")
        a(f"v_cmp_le_u32 vcc, 32, v{LN}")
        a(f"v_cndmask_b32 v{NEGM}, v{ZERO}, v{T1}, vcc")
        a(f"v_bfe_u32 v{T1}, v{LN}, 1, 1")
        a(f"v_lshlrev_b32 v{PUB}, 7, v{T1}")
        a(f"v_bfe_u32 v{T1}, v{LN}, 2, 1")
        a(f"v_lshl_add_u32 v{PUB}, v{T1}, 6, v{PUB}")
        a(f"v_lshrrev_b32 v{T1}, 4, v{LN}")
        a(f"v_lshl_add_u32 v{PUB}, v{T1}, 4, v{PUB}")
        a(f"s_lshl_b32 s{S_T0}, s{S_RANK}, 8")
        a(f"s_lshl_b32 s{S_T1}, s{S_WAVE}, 2")
        a(f"s_add_u32 s{S_T0}, s{S_T0}, s{S_T1}")
        a(f"v_add_u32 v{PUB}, s{S_T0}, v{PUB}")
        a(f"v_and_b32 v{T1}, 8, v{LN}")
        a(f"v_cmp_ne_u32 vcc, 0, v{T1}")
        a(f"v_mov_b32 v{T1}, 0x4444")
        a(f"v_mov_b32 v{T2}, 0xeeee")
        a(f"v_cndmask_b32 v{IDX}, v{T1}, v{T2}, vcc")
        a(f"s_lshl_b32 s{S_T0}, s{S_WAVE}, 11")
        a(f"v_add_u32 v{POLL}, s{S_T0}, v{L16}")
        for p in range(1, 4):
            a(f"s_add_u32 s{S_T0}, s{S_WAVE}, {p}")
            a(f"s_and_b32 s{S_T0}, s{S_T0}, 3")
            a(f"s_lshl_b32 s{S_T0}, s{S_T0}, 11")
            a(f"v_add_u32 v{MA1+p-1}, s{S_T0}, v{L16}")
        a(f"v_lshrrev_b32 v{T1}, 5, v{LN}")
        a(f"v_lshlrev_b32 v{T1}, 4, v{T1}")
        a(f"v_and_b32 v{T2}, 15, v{LN}")
        a(f"v_add_u32 v{T1}, v{T1}, v{T2}")
        a(f"v_lshlrev_b32 v{T1}, 4, v{T1}")
        a(f"v_bfe_u32 v{T2}, v{LN}, 4, 1")
        a(f"v_lshl_add_u32 v{T1}, v{T2}, 3, v{T1}")
        a(f"s_lshl_b32 s{S_T0}, s{S_WAVE}, 9")
        a(f"v_add_u32 v{T1}, s{S_T0}, v{T1}")
        a(f"v_add_u32 v{QKW}, {R_QK}, v{T1}")
        a(f"v_add_u32 v{VMO}, 2048, v{T1}")
        a(f"v_lshrrev_b32 v{T1}, 4, v{LN}")
        a(f"v_lshlrev_b32 v{T1}, 2, v{T1}")
        a(f"v_bfe_u32 v{T2}, v{LN}, 2, 2")
        a(f"v_add_u32 v{T1}, v{T1}, v{T2}")
        a(f"v_lshlrev_b32 v{T1}, 4, v{T1}")
        a(f"v_and_b32 v{T2}, 1, v{LN}")
        a(f"v_lshl_add_u32 v{T1}, v{T2}, 3, v{T1}")
        a(f"v_add_u32 v{TRA}, {R_QK}, v{T1}")
        a(f"s_lshl_b32 s{S_T0}, s{S_WAVE}, 9")
        a(f"v_add_u32 v{TRK}, s{S_T0}, v{TRA}")
        a(f"v_and_b32 v{T1}, 7, v{LN}")
        a(f"v_lshlrev_b32 v{T1}, 4, v{T1}")
        a(f"v_lshrrev_b32 v{T2}, 4, v{LN}")
        a(f"v_lshl_add_u32 v{T1}, v{T2}, 2, v{T1}")
        a(f"s_lshl_b32 s{S_T0}, s{S_WAVE}, 9")
        a(f"s_add_u32 s{S_T0}, s{S_T0}, {R_OX}")
        a(f"v_add_u32 v{OWA}, s{S_T0}, v{T1}")
        a(f"s_mul_i32 s{S_T0}, s{S_WAVE}, {WPW}")
        a(f"s_add_u32 s{S_T0}, s{S_T0}, {R_WB}")
        a(f"v_add_u32 v{WLA}, s{S_T0}, v{L16}")
        a(f"v_lshrrev_b32 v{T1}, 5, v{LN}")
        a(f"v_lshlrev_b32 v{T1}, 14, v{T1}")
        a(f"v_bfe_u32 v{T2}, v{LN}, 2, 2")
        a(f"v_lshl_add_u32 v{T1}, v{T2}, 12, v{T1}")
        a(f"v_bfe_u32 v{T2}, v{LN}, 4, 1")
        a(f"v_lshl_add_u32 v{T1}, v{T2}, 5, v{T1}")
        a(f"v_and_b32 v{T2}, 3, v{LN}")
        a(f"v_lshl_add_u32 v{T1}, v{T2}, 3, v{T1}")
        a(f"s_lshl_b32 s{S_T0}, s{S_WAVE}, 17")
        a(f"s_lshl_b32 s{S_T1}, s{S_RANK}, 6")
        a(f"s_add_u32 s{S_T0}, s{S_T0}, s{S_T1}")
        a(f"v_add_u32 v{PST}, s{S_T0}, v{T1}")
        a(f"v_lshrrev_b32 v{T1}, 4, v{LN}")
        a(f"v_lshlrev_b32 v{T1}, 7, v{T1}")
        a(f"v_and_b32 v{T2}, 7, v{LN}")
        a(f"v_lshl_add_u32 v{T1}, v{T2}, 4, v{T1}")
        a(f"s_lshl_b32 s{S_T0}, s{S_WAVE}, 9")
        a(f"v_add_u32 v{KMO}, s{S_T0}, v{T1}")

    def r_main(self):
        a = self.a
        sc = self.sc
        ACC = B[4]
        MAS = lambda j: B[0] + 4 * j
        QBUF = {('qkv', 0, 0): B[1], ('qkv', 1, 0): B[2], ('qkv', 2, 0): B[3], ('qkv', 3, 0): B[9],
                ('qkv', 0, 1): B[10], ('qkv', 1, 1): B[7], ('qkv', 2, 1): B[8]}
        WBUF = {0: B[7], 1: B[8], 2: B[9], 3: B[10], 4: B[2], 5: B[4], 6: B[7]}
        def fetch(o, reg, q=None):
            hb = HOMES[o][1]
            assert HOMES[o][0] == 'lds'
            for hh in range(2):
                t = f"ds_read_b128 {vr(reg+4*hh,4)}, v{WLA} offset:{hb*2048+1024*hh}"
                q.issue(t, o) if q else a(t)
        def smf(t, j):
            o = ('qkv', t, j)
            b = vr(QBUF[o], 8) if o in QBUF else rr(HOMES[o][0], HOMES[o][1], 8)
            a(f"v_smfmac_f32_16x16x64_bf16 {vr(ACC+4*t,4)}, {vr(MAS(j),4)}, {b}, v{IDX}")
        def zero(reg, n):
            for i in range(0, n, 2):
                a(f"v_mov_b64 {vr(reg+i,2)}, 0")
        def spin_flag():
            lsp = self.lab('fsp')
            a(f"s_mov_b32 s{S_SPIN}, {SPIN_MAX}")
            a.label(lsp)
            a(f"global_load_dword v0, v{ZERO}, s[{S_FKV}:{S_FKV+1}] sc1")
            self.spin_dec()
            a("s_waitcnt vmcnt(0)")
            a(f"v_cmp_eq_u32 vcc, 0, v0")
            a(f"s_cbranch_vccnz {lsp}")
        def dma(par):
            a(f"s_add_u32 m0, s{S_W4K}, {R_KV + 16384*par}")
            for j in range(4):
                a(f"global_load_lds_dwordx4 v{L16}, s[{S_KVG}:{S_KVG+1}] offset:{1024*j} sc1")
        def poll_a(par):
            for hh in range(2):
                a(f"global_load_dwordx4 {vr(B[0]+4*hh,4)}, v{POLL}, s[{S_MB[par]}:{S_MB[par]+1}] offset:{1024*hh} sc1")
        def prep1():
            for o in (('qkv', 0, 0), ('qkv', 1, 0), ('qkv', 2, 0), ('qkv', 3, 0), ('qkv', 0, 1)):
                fetch(o, QBUF[o])
            zero(ACC, 24)
            for i in range(4):
                a(f"v_mov_b32 v{X4+i}, v{NEGM}")
        def prep2():
            for o in (('qkv', 1, 1), ('qkv', 2, 1)):
                fetch(o, QBUF[o])
        spin_flag()
        dma(0)
        add64(a, S_KVG, S_KVG, 512 * 1024)
        add64(a, S_FKV, S_FKV, 128)
        a(f"s_mov_b32 s{S_STEP}, 0")
        poll_a(0)
        prep1(); prep2()
        lexit = self.lab('rexit')

        def step(par):
            self.nstamp = 0
            self.stamp()
            la = self.lab('pa'); lgo = self.lab('pg')
            a(f"s_mov_b32 s{S_SPIN}, {SPIN_MAX}")
            a.label(la)
            a("s_waitcnt vmcnt(0) lgkmcnt(0)")
            x = B[0]
            a(f"v_max3_u32 v0, v{x}, v{x+1}, v{x+2}")
            a(f"v_max3_u32 v0, v0, v{x+3}, v{x+4}")
            a(f"v_max3_u32 v0, v0, v{x+5}, v{x+6}")
            a(f"v_max_u32 v0, v0, v{x+7}")
            a(f"v_cmp_eq_u32 vcc, -1, v0")
            a(f"s_cbranch_vccz {lgo}")
            a("s_mov_b64 exec, vcc")
            poll_a(par)
            a("s_mov_b64 exec, -1")
            self.spin_dec()
            a(f"s_branch {la}")
            a.label(lgo)
            for hh in range(2):
                a(f"ds_write_b128 v{POLL}, {vr(x+4*hh,4)} offset:{R_MEMS+1024*hh}")
            a(f"global_load_dword v{FLG}, v{ZERO}, s[{S_FKV}:{S_FKV+1}] sc1")
            self.stamp()
            for t in range(4):
                smf(t, 0)
            a("s_waitcnt lgkmcnt(0)")
            a("s_barrier")
            q = LdsQ(a)
            for j in range(2, 8):
                q.issue(f"ds_read_b128 {vr(MAS(j),4)}, v{MA1+(j>>1)-1} offset:{R_MEMS+1024*(j&1)}", ('m', j))
            smf(0, 1)
            smf(3, 1)
            smf(1, 1)
            a(f"s_add_u32 m0, s{S_W4K}, {R_KV + 16384*(par^1)}")
            smf(2, 1)
            KX = B[7]
            kxr = lambda f: q.issue(f"ds_read_b128 {vr(KX+4*f,4)}, v{L16} offset:{R_KV+16384*par+1024*f}", 'kx')
            order = [4, 5, 6, 7, 0, 1, 2, 3]
            smf(4, 0); kxr(order[0]); kxr(order[1])
            smf(5, 0); kxr(order[2]); kxr(order[3])
            smf(4, 1); kxr(order[4]); kxr(order[5])
            smf(5, 1); kxr(order[6]); kxr(order[7])
            extra = []
            for j in range(4):
                extra.append([f"s_mov_b64 exec, s[{S_DM}:{S_DM+1}]",
                              f"global_load_lds_dwordx4 v{L16}, s[{S_KVG}:{S_KVG+1}] offset:{1024*j} sc1",
                              "s_mov_b64 exec, -1"])
            for j in range(2, 8):
                q.wait(('m', j))
                for t in range(4):
                    smf(t, j)
            self.stamp()
            def cpart(p, stage):
                b0, b1 = ACC + 8 * p, ACC + 8 * p + 4
                if stage == 0:
                    for i in range(4):
                        a(f"v_permlane32_swap_b32 v{b0+i}, v{b1+i}")
                else:
                    for i in range(4):
                        a(f"v_add_f32 v{b0+i}, v{b0+i}, v{b1+i}")
                    a(f"v_cvt_pk_bf16_f32 v{b1}, v{b0}, v{b0+1}")
                    a(f"v_cvt_pk_bf16_f32 v{b1+1}, v{b0+2}, v{b0+3}")
                    a(f"ds_write_b64 v{QKW}, {vr(b1,2)} offset:{2048*p}")
            smf(4, 2); smf(5, 2)
            cpart(0, 0)
            smf(4, 3)
            cpart(1, 0)
            smf(5, 3)
            cpart(0, 1)
            smf(4, 4)
            cpart(1, 1)
            smf(5, 4)
            a("s_waitcnt lgkmcnt(0)")
            a("s_barrier")
            self.stamp()
            QF = [B[0], B[0] + 4, B[1], B[1] + 4]
            KF = [B[4], B[4] + 4, B[2], B[2] + 4]
            q = LdsQ(a)
            def trr(ks):
                for u in range(2):
                    q.issue(f"ds_read_b64_tr_b16 {vr(QF[ks]+2*u,2)}, v{TRA} offset:{ks*512+u*256}", ks)
                for u in range(2):
                    q.issue(f"ds_read_b64_tr_b16 {vr(KF[ks]+2*u,2)}, v{TRA} offset:{2048+ks*512+u*256}", ks)
            trr(0); smf(4, 5); trr(1)
            a("s_waitcnt vmcnt(0)")
            a(f"v_cmp_ne_u32 s[{S_DM}:{S_DM+1}], 0, v{FLG}")
            smf(5, 5); trr(2); smf(4, 6)
            for u in range(2):
                q.issue(f"ds_read_b64_tr_b16 {vr(QF[3]+2*u,2)}, v{TRA} offset:{3*512+u*256}", 3)
            q.issue(f"ds_read_b64_tr_b16 {vr(KF[3],2)}, v{TRA} offset:{2048+3*512}", 3)
            smf(5, 6)
            for l in extra.pop(0) + extra.pop(0): a(l)
            smf(4, 7)
            for l in extra.pop(0) + extra.pop(0): a(l)
            smf(5, 7)
            SM, SX = X4, [B[5], B[5] + 4]
            V = B[6]
            vs = []
            for i in range(4):
                vs.append(f"v_permlane32_swap_b32 v{V+i}, v{V+4+i}")
            for i in range(4):
                vs.append(f"v_add_f32 v{V+i}, v{V+i}, v{V+4+i}")
            vs.append(f"v_cvt_pk_bf16_f32 v{V+4}, v{V}, v{V+1}")
            vs.append(f"v_cvt_pk_bf16_f32 v{V+5}, v{V+2}, v{V+3}")
            vs.append(f"v_min_u32 v{V+4}, -2, v{V+4}")
            vs.append(f"v_min_u32 v{V+5}, -2, v{V+5}")
            vs.append(f"v_mov_b64 {vr(V+6,2)}, {vr(V+4,2)}")
            vs.append(f"global_store_dwordx2 v{VMO}, {vr(V+4,2)}, s[{S_KVM}:{S_KVM+1}] sc1")
            vs.append(f"v_permlane32_swap_b32 v{V+4}, v{V+6}")
            vs.append(f"v_permlane32_swap_b32 v{V+5}, v{V+7}")
            for i in range(4):
                vs.append(f"v_mov_b32 v{V+i}, 0x3f803f80")
            VMF = [V + 4, V + 6]
            n = 0
            for ks in range(4):
                q.wait(ks)
                if ks == 0:
                    q.issue(f"ds_read_b64_tr_b16 {vr(KF[3]+2,2)}, v{TRA} offset:{2048+3*512+256}", 3)
                for k_, (d, af) in enumerate(((SX[0], KX + 4 * ks), (SX[1], KX + 16 + 4 * ks), (SM, KF[ks]))):
                    c0 = '0' if (ks == 0 and k_ < 2) else vr(d, 4)
                    a(f"v_mfma_f32_16x16x32_bf16 {vr(d,4)}, {vr(af,4)}, {vr(QF[ks],4)}, {c0}")
                    n += 1
                    if n >= 3:
                        for _ in range(2):
                            if vs:
                                a(vs.pop(0))
            assert not vs
            self.stamp()
            VX, KMT = B[0], B[1]
            q = LdsQ(a)
            for t in range(2):
                q.issue(f"ds_read_b128 {vr(VX+4*t,4)}, v{POLL} offset:{R_KV+16384*par+8192+1024*t}", 'vx')
            for u in range(2):
                q.issue(f"ds_read_b64_tr_b16 {vr(KMT+2*u,2)}, v{TRK} offset:{2048+u*256}", 'km')
            for ct in range(5):
                fetch(('wo', ct, 1), WBUF[ct], q)
            M = B[1] + 4
            S = [SM + i for i in range(4)] + [SX[0] + i for i in range(8)]
            a(f"v_max3_f32 v{M}, v{S[4]}, v{S[5]}, v{S[6]}")
            a(f"v_max3_f32 v{M+1}, v{S[7]}, v{S[8]}, v{S[9]}")
            a(f"v_max3_f32 v{M}, v{M}, v{S[10]}, v{S[11]}")
            a(f"v_max3_f32 v{M+1}, v{M+1}, v{S[0]}, v{S[1]}")
            a(f"v_max3_f32 v{M}, v{M}, v{S[2]}, v{S[3]}")
            a(f"v_max_f32 v{M}, v{M}, v{M+1}")
            for sw in ('16', '32'):
                a(f"v_mov_b32 v{M+1}, v{M}")
                a(f"v_permlane{sw}_swap_b32 v{M+1}, v{M}")
                a(f"v_max_f32 v{M}, v{M}, v{M+1}")
            a(f"v_mul_f32 v{M}, s{S_C}, v{M}")
            q.wait('km')
            for i in range(4):
                a(f"v_min_u32 v{KMT+i}, -2, v{KMT+i}")
            a(f"global_store_dwordx4 v{KMO}, {vr(KMT,4)}, s[{S_KVM}:{S_KVM+1}] sc1")
            for i in range(6):
                a(f"v_pk_fma_f32 {vr(S[2*i],2)}, {vr(S[2*i],2)}, s[{S_C}:{S_C+1}], {vr(M,2)} op_sel_hi:[1,1,0] neg_lo:[0,0,1] neg_hi:[0,0,1]")
            PM, PX = B[3], B[3] + 4
            O = [B[4], B[4] + 4]
            for i in range(4):
                a(f"v_exp_f32 v{S[i]}, v{S[i]}")
            a(f"v_exp_f32 v{S[4]}, v{S[4]}")
            a(f"v_cvt_pk_bf16_f32 v{PM}, v{S[0]}, v{S[1]}")
            a(f"v_cvt_pk_bf16_f32 v{PM+1}, v{S[2]}, v{S[3]}")
            a(f"v_exp_f32 v{S[5]}, v{S[5]}")
            a(f"v_exp_f32 v{S[6]}, v{S[6]}")
            ONES = V
            a(f"v_mfma_f32_16x16x16_bf16 {vr(M,4)}, {vr(ONES,2)}, {vr(PM,2)}, 0")
            for t in range(2):
                a(f"v_mfma_f32_16x16x16_bf16 {vr(O[t],4)}, {vr(VMF[t],2)}, {vr(PM,2)}, 0")
            for i in range(7, 12):
                a(f"v_exp_f32 v{S[i]}, v{S[i]}")
            for i in range(4):
                a(f"v_cvt_pk_bf16_f32 v{PX+i}, v{S[4+2*i]}, v{S[5+2*i]}")
            q.wait('vx')
            self.stamp()
            a(f"v_mfma_f32_16x16x32_bf16 {vr(M,4)}, {vr(ONES,4)}, {vr(PX,4)}, {vr(M,4)}")
            for t in range(2):
                a(f"v_mfma_f32_16x16x32_bf16 {vr(O[t],4)}, {vr(VX+4*t,4)}, {vr(PX,4)}, {vr(O[t],4)}")
            a(f"v_rcp_f32 v{M}, v{M}")
            WA = [B[1], B[1] + 4, B[3], B[3] + 4, B[5], B[5] + 4, B[6], B[6] + 4]
            zero(B[5], 4)
            for t in range(2):
                for i in range(2):
                    a(f"v_pk_mul_f32 {vr(O[t]+2*i,2)}, {vr(O[t]+2*i,2)}, {vr(M,2)} op_sel_hi:[1,0]")
                a(f"v_cvt_pk_bf16_f32 v{O[t]}, v{O[t]}, v{O[t]+1}")
                a(f"v_cvt_pk_bf16_f32 v{O[t]+1}, v{O[t]+2}, v{O[t]+3}")
                a(f"ds_write2_b32 v{OWA}, v{O[t]}, v{O[t]+1} offset0:{64*t} offset1:{64*t+32}")
            zero(B[5] + 4, 4); zero(B[3], 8)
            a("s_waitcnt lgkmcnt(0)")
            a("s_barrier")
            OA = B[0]
            q = LdsQ(a)
            for hh in range(2):
                q.issue(f"ds_read_b128 {vr(OA+4*hh,4)}, v{L16} offset:{R_OX+1024*hh}", ('oa', hh))
            fetch(('wo', 5, 1), WBUF[5], q)
            add64(a, S_KVM, S_KVM, 128 * 1024)
            zero(B[6], 8); zero(B[1] + 4, 4); zero(B[1], 4)
            if par == 1:
                a(f"s_cmp_ge_u32 s{S_STEP}, {NSEG-2}")
                a(f"s_cbranch_scc1 {lexit}")
            self.stamp()
            def wo(ct, ks):
                o = ('wo', ct, ks)
                b = vr(WBUF[ct], 8) if HOMES[o][0] == 'lds' else rr(HOMES[o][0], HOMES[o][1], 8)
                a(f"v_smfmac_f32_16x16x64_bf16 {vr(WA[ct],4)}, {vr(OA+4*ks,4)}, {b}, v{IDX}")
            def jl(j):
                b0, b1 = WA[2 * j], WA[2 * j + 1]
                l = [f"v_permlane32_swap_b32 v{b0+i}, v{b1+i}" for i in range(4)]
                l += [f"v_add_f32 v{b0+i}, v{b0+i}, v{b1+i}" for i in range(4)]
                l += [f"v_cvt_pk_bf16_f32 v{b0}, v{b0}, v{b0+1}", f"v_cvt_pk_bf16_f32 v{b0+1}, v{b0+2}, v{b0+3}"]
                l += [f"v_or_b32 v{b0}, 1, v{b0}" if par == 0 else f"v_and_b32 v{b0}, -2, v{b0}"]
                l += [f"global_store_dwordx2 v{PST}, {vr(b0,2)}, s[{S_PST[j]}:{S_PST[j]+1}]{sc}"]
                return l
            q.wait(('oa', 0))
            for ct in range(4):
                wo(ct, 0)
            q.wait(('oa', 1))
            wo(0, 1); wo(1, 1)
            fetch(('wo', 6, 1), WBUF[6], q)
            wo(2, 1); wo(3, 1)
            pend = jl(0) + jl(1)
            seq = [(4, 0), (5, 0), (6, 0), (7, 0), (4, 1), (5, 1), (7, 1), (6, 1)]
            for n, (ct, ks) in enumerate(seq):
                if (ct, ks) == (5, 1):
                    q.wait(('wo', 5, 1))
                if (ct, ks) == (6, 1):
                    q.wait(('wo', 6, 1))
                wo(ct, ks)
                if n >= 1:
                    for _ in range(4 if n >= 5 else 3):
                        if pend:
                            l = pend.pop(0)
                            for x_ in (l if isinstance(l, list) else [l]):
                                a(x_)
            assert not pend
            for l in jl(2) + jl(3):
                a(l)
            self.stamp()
            x = B[7]
            def poll_k():
                for j in range(4):
                    a(f"global_load_dwordx2 {vr(x+8+2*j,2)}, v{x+7}, s[{S_PRD}:{S_PRD+1}] offset:{512*j} sc1")
            RKD = int(os.environ.get('RKD', 1))
            a(f"v_lshrrev_b32 v{x+7}, 1, v{L16}")
            if RKD < 0:
                poll_k()
                prep1()
            else:
                prep1()
                if RKD:
                    a(f"s_sleep {RKD}")
                poll_k()
            lk = self.lab('pk'); lgo = self.lab('kg')
            a(f"s_mov_b32 s{S_SPIN}, {SPIN_MAX}")
            a.label(lk)
            a("s_waitcnt vmcnt(0)")
            if par == 0:
                a(f"v_bitop3_b32 v0, v{x+8}, v{x+10}, v{x+12} bitop3:0x80")
                a(f"v_bitop3_b32 v0, v0, v{x+14}, 1 bitop3:0x80")
                a(f"v_cmp_eq_u32 vcc, 0, v0")
            else:
                a(f"v_or3_b32 v0, v{x+8}, v{x+10}, v{x+12}")
                a(f"v_bitop3_b32 v0, v0, v{x+14}, 1 bitop3:0xa8")
                a(f"v_cmp_ne_u32 vcc, 0, v0")
            a(f"s_cbranch_vccz {lgo}")
            a("s_mov_b64 exec, vcc")
            poll_k()
            a("s_mov_b64 exec, -1")
            self.spin_dec()
            a(f"s_branch {lk}")
            a.label(lgo)
            self.stamp()
            for j in range(4):
                for e in range(2):
                    a(f"v_lshlrev_b32 v{x+4*j+2*e}, 16, v{x+8+2*j+e}")
                    a(f"v_and_b32 v{x+4*j+2*e+1}, 0xffff0000, v{x+8+2*j+e}")
            for i in range(2):
                a(f"v_pk_add_f32 {vr(x+2*i,2)}, {vr(x+2*i,2)}, {vr(x+4+2*i,2)}")
                a(f"v_pk_add_f32 {vr(x+8+2*i,2)}, {vr(x+8+2*i,2)}, {vr(x+12+2*i,2)}")
            for i in range(2):
                a(f"v_pk_add_f32 {vr(x+2*i,2)}, {vr(x+2*i,2)}, {vr(x+8+2*i,2)}")
            a(f"v_permlane32_swap_b32 v{x}, v{x+2}")
            a(f"v_permlane32_swap_b32 v{x+1}, v{x+3}")
            a(f"v_pk_add_f32 {vr(x,2)}, {vr(x,2)}, {vr(x+2,2)}")
            a(f"v_permlane16_swap_b32 v{x}, v{x+1}")
            a(f"v_add_f32 v{x}, v{x}, v{x+1}")
            D = "row_mask:0xf bank_mask:0xf"
            a(f"v_add_f32_dpp v{x+1}, v{x}, v{x} row_ror:8 {D}")
            a(f"v_mov_b32_dpp v{x+2}, v{x+1} quad_perm:[1,0,3,2] {D}")
            a(f"v_cvt_pk_bf16_f32 v{x+1}, v{x+1}, v{x+2}")
            a(f"v_min_u32 v{x+1}, -2, v{x+1}")
            a(f"s_mov_b64 exec, s[{S_PUBM}:{S_PUBM+1}]")
            a(f"global_store_dword v{PUB}, v{x+1}, s[{S_MB[par^1]}:{S_MB[par^1]+1}]{sc}")
            a(f"global_store_dword v{PUB}, v{SENT}, s[{S_MB[par]}:{S_MB[par]+1}]{sc}")
            a("s_mov_b64 exec, -1")
            self.stamp()
            lok = self.lab('p2')
            a(f"s_cmp_lg_u64 s[{S_DM}:{S_DM+1}], 0")
            a(f"s_cbranch_scc1 {lok}")
            spin_flag()
            dma(par ^ 1)
            a.label(lok)
            RAD = int(os.environ.get('RAD', 2))
            if RAD < 0:
                poll_a(par ^ 1)
            add64(a, S_KVG, S_KVG, 512 * 1024)
            add64(a, S_FKV, S_FKV, 128)
            if self.stamps:
                a("s_waitcnt lgkmcnt(0)")
                for i in range(self.nstamp):
                    a(f"v_writelane_b32 v{x+4}, s{S_STAMP0+2*i}, {i}")
                for i in (13, 14, 15):
                    a(f"v_writelane_b32 v{x+4}, s{S_STAMP0+2*i}, {i}")
                a(f"v_lshrrev_b32 v{x+5}, 2, v{L16}")
                l3 = self.lab('st')
                a(f"s_cmp_lg_u32 s{S_WAVE}, {self.stamp_wave}")
                a(f"s_cbranch_scc1 {l3}")
                a("s_mov_b64 exec, 0xffff")
                a(f"global_store_dword v{x+5}, v{x+4}, s[{S_ST}:{S_ST+1}]")
                a("s_mov_b64 exec, -1")
                a.label(l3)
                add64(a, S_ST, S_ST, 128)
            prep2()
            if RAD >= 0:
                if RAD:
                    a(f"s_sleep {RAD}")
                poll_a(par ^ 1)

        lloop = self.lab('rstep')
        a.label(lloop)
        step(0)
        step(1)
        a(f"s_add_u32 s{S_STEP}, s{S_STEP}, 2")
        a(f"s_branch {lloop}")
        a.label(lexit)
        a("s_waitcnt vmcnt(0)")
```

```python
import os
from gcommon import *
from gx2 import *

GO = 9
FLG = 10
FLA = 15
Q_SP = 2048 + 128
Q_UN = 8 * Q_SP + 128
Q_BUF = 288 * KB
assert 16 * Q_UN <= Q_BUF
HOFF = [0, 16384, 32768]
S_M0 = 46
S_PFM = 25
S_MK = 52
S_Q4 = 54
S_FP = [56, 100, 42]
S_FE = 59
S_OB = 61
S_PB = 37
B_Q, B_C, B_KA, B_KB = 0, 1, 2, 3

class GenX3(GenX):
    def x3_consts(self):
        a = self.a
        T = W0
        a(f"v_and_b32 v{T}, 63, v0")
        a(f"v_lshlrev_b32 v{L16}, 4, v{T}")
        a(f"v_and_b32 v{T+1}, 15, v{T}")
        a(f"v_lshrrev_b32 v{T+2}, 4, v{T}")
        a(f"v_lshrrev_b32 v{T+3}, 5, v{T}")
        a(f"v_and_b32 v{T+4}, 31, v{T}")
        a(f"v_xor_b32 v{T+4}, v{T+4}, v{T+3}")
        a(f"s_and_b32 s{S_T0}, s{S_WAVE}, 1")
        a(f"s_lshl_b32 s{S_T0}, s{S_T0}, 3")
        a(f"v_xor_b32 v{T+4}, s{S_T0}, v{T+4}")
        a(f"v_lshlrev_b32 v{T+4}, 4, v{T+4}")
        a(f"v_lshl_add_u32 v{T+4}, v{T+3}, 10, v{T+4}")
        a(f"s_lshl_b32 s{S_T0}, s{S_WAVE}, 13")
        a(f"v_add_u32 v{GW}, s{S_T0}, v{T+4}")
        a(f"v_xor_b32 v{T+3}, v{T+1}, v{T+2}")
        a(f"v_lshlrev_b32 v{T+3}, 4, v{T+3}")
        a(f"v_lshl_add_u32 v{T+3}, v{T+1}, 9, v{T+3}")
        a(f"v_add_u32 v{FR0}, {L_FB}, v{T+3}")
        for m in range(1, 4):
            a(f"v_xor_b32 v{FR0+m}, {64*m}, v{FR0}")
        a(f"v_add_u32 v{FL}, {L_FB}, v{L16}")
        a(f"s_mul_i32 s{S_T0}, s{S_WAVE}, {WPW}")
        a(f"v_add_u32 v{WLA}, s{S_T0}, v{L16}")
        a(f"s_lshl_b32 s{S_T0}, s{S_WAVE}, 12")
        a(f"v_add_u32 v{GO}, s{S_T0}, v{L16}")
        a(f"s_add_u32 s{S_M0}, s{S_T0}, {L_FB}")
        a(f"v_mul_u32_u24 v{PSV}, {2*Q_UN}, v{T+2}")
        a(f"v_lshl_add_u32 v{PSV}, v{T+1}, 3, v{PSV}")
        a(f"s_mul_i32 s{S_T0}, s{S_A}, {Q_SP}")
        a(f"s_lshl_b32 s{S_T1}, s{S_B}, 9")
        a(f"s_add_u32 s{S_T0}, s{S_T0}, s{S_T1}")
        a(f"s_lshl_b32 s{S_T1}, s{S_WAVE}, 7")
        a(f"s_add_u32 s{S_T0}, s{S_T0}, s{S_T1}")
        a(f"v_add_u32 v{PSV}, s{S_T0}, v{PSV}")
        a(f"v_add_u32 v{PSV1}, {Q_UN}, v{PSV}")
        a(f"v_mov_b32 v{SENT}, -1")
        a(f"v_mov_b32 v{ZERO}, 0")

    def x3_init(self):
        a = self.a
        sc = self.sc
        for i in range(4):
            a(f"v_mov_b32 v{96+i}, 0")
        a(f"s_mul_i32 s{S_T0}, s{S_RANK}, {4*Q_BUF//32}")
        a(f"s_add_u32 s{S_T0}, s{S_T0}, {X_PART}")
        a(f"v_lshlrev_b32 v100, 4, v0")
        a(f"v_add_u32 v100, s{S_T0}, v100")
        for hh in range(4 * Q_BUF // 32 // 4096):
            a(f"global_store_dwordx4 v100, v[96:99], s[{S_TS}:{S_TS+1}]{sc}")
            a(f"v_add_u32 v100, 4096, v100")
        a(f"s_lshl_b32 s{S_T0}, s{S_RANK}, 4")
        a(f"s_add_u32 s{S_T0}, s{S_T0}, {X_OF}")
        a(f"v_mov_b32 v101, s{S_T0}")
        a(f"global_store_dwordx4 v101, v[96:99], s[{S_TS}:{S_TS+1}]{sc}")

    def dl_rows(self, base, half, H, mask=None):
        DT = W0 + 88
        l = []
        for i in range(4):
            g = [f"s_add_u32 m0, s{S_M0}, {HOFF[H] + 1024*i - 512*half}" if HOFF[H] + 1024*i - 512*half >= 0 else f"s_sub_u32 m0, s{S_M0}, 512"]
            if i:
                g.append(f"v_xor_b32 v{DT+i}, {32*i + 2048*i}, v{GW}")
            l.append(g)
            ld = f"global_load_lds_dwordx4 v{DT+i if i else GW}, s[{base}:{base+1}] offset:{512*half} sc1"
            l.append([f"s_mov_b64 exec, s[{mask}:{mask+1}]", ld, "s_mov_b64 exec, -1"] if mask else [ld])
        return l

    def dl_lin(self, base, H, mask=None):
        l = [[f"s_add_u32 m0, s{S_M0}, {HOFF[H]}"]]
        for i in range(4):
            ld = f"global_load_lds_dwordx4 v{GO}, s[{base}:{base+1}] offset:{1024*i} sc1"
            l.append([f"s_mov_b64 exec, s[{mask}:{mask+1}]", ld, "s_mov_b64 exec, -1"] if mask else [ld])
        return l

    def emit(self, l):
        for g in l:
            for x in g:
                self.a(x)

    def mk(self, bit):
        return [f"s_bitcmp1_b32 s{S_PFM}, {bit}", f"s_cselect_b64 s[{S_MK}:{S_MK+1}], -1, 0"]

    def ptr(self, dst, base, seg, shift_seg, off, rank_shift=None):
        g = [f"s_min_u32 s{S_T0}, s{seg}, 127", f"s_lshl_b32 s{S_T0}, s{S_T0}, {shift_seg}"]
        if rank_shift is not None:
            g += [f"s_lshl_b32 s{S_T1}, s{S_RANK}, {rank_shift}", f"s_add_u32 s{S_T0}, s{S_T0}, s{S_T1}"]
        if off:
            g.append(f"s_add_u32 s{S_T0}, s{S_T0}, {off}")
        g += [f"s_add_u32 s{dst}, s{base}, s{S_T0}", f"s_addc_u32 s{dst+1}, s{base+1}, 0"]
        return g

    FX1KS = int(os.environ.get("FX1KS", 3))
    KVKS = int(os.environ.get('KVKS', 7))
    def rc_ptr(self, dst, seg):
        return self.ptr(dst, S_WS, seg, 15, XN0_OFF)

    def fl_flush(self, bit, wave0):
        p = S_FP[bit]
        g = [f"s_bitcmp1_b32 s{S_FE}, {bit}", f"s_cselect_b64 exec, 1, 0",
             f"global_store_dword v{ZERO}, v{SENT}, s[{p}:{p+1}] sc1", "s_mov_b64 exec, -1", f"s_bitset0_b32 s{S_FE}, {bit}"]
        return [g]

    def gemm3(self, tiles, rows, Hs, hooks):
        a = self.a
        ACC, XF, WBUF = W0, W0 + 48, W0 + 72
        q = LdsQ(a)
        def xread(ks):
            b = XF + 8 * (ks % 3)
            k8 = ks & 7
            for rt in range(2):
                if rows:
                    q.issue(f"ds_read_b128 {vr(b+4*rt,4)}, v{FR0+(k8&3)} offset:{HOFF[Hs[ks>>3]] + rt*8192 + (k8>>2)*256}", ('x', ks))
                else:
                    q.issue(f"ds_read_b128 {vr(b+4*rt,4)}, v{FL} offset:{HOFF[Hs[ks>>3]] + (k8>>2)*8192 + rt*4096 + (k8&3)*1024}", ('x', ks))
        def wread(k64):
            for t in tiles:
                hk, hb = HX[('qkv', t, k64)]
                if hk == 'lds':
                    b = WBUF + 8 * (k64 & 1)
                    q.issue(f"ds_read_b128 {vr(b,4)}, v{WLA} offset:{hb*2048}", ('w', k64))
                    q.issue(f"ds_read_b128 {vr(b+4,4)}, v{WLA} offset:{hb*2048+1024}", ('w', k64))
        xread(0); xread(1)
        pend = []
        for ks in range(16):
            k64 = ks >> 1
            if ks + 2 < 16 and ks not in (6, 7):
                xread(ks + 2)
            if (ks & 1) == 0 and k64 + 1 < 8:
                wread(k64 + 1)
            q.wait(('x', ks))
            q.wait(('w', k64))
            if ks == 7:
                a("s_waitcnt vmcnt(0)")
                a("s_barrier")
                xread(8); xread(9)
            if ks == 15:
                a("s_barrier")
            pend += hooks.get(ks, [])
            xb = XF + 8 * (ks % 3)
            for ti, t in enumerate(tiles):
                hk, hb = HX[('qkv', t, k64)]
                if hk == 'lds':
                    hk, hb = 'v', WBUF + 8 * (k64 & 1)
                w = rr(hk, hb + 4 * (ks & 1), 4)
                for rt in range(2):
                    d = vr(ACC + (ti * 2 + rt) * 4, 4)
                    c = '0' if ks == 0 else d
                    x = vr(xb + 4 * rt, 4)
                    if t in (4, 5, 6, 7):
                        a(f"v_mfma_f32_16x16x32_bf16 {d}, {x}, {w}, {c}")
                    else:
                        a(f"v_mfma_f32_16x16x32_bf16 {d}, {w}, {x}, {c}")
                    if pend:
                        for x_ in pend.pop(0):
                            a(x_)
            assert not (pend and ks in (6, 15)), ks

    def s3_qkv(self, layer, Hs, hooks, fwave=0):
        a = self.a
        ACC, XF, WB = W0, W0 + 48, W0 + 72
        self.gemm3([0, 1, 2, 3, 4, 5], True, Hs, hooks)
        self.stamp()
        self.emit([self.ptr(S_Q0, S_WS, S_SEG, 19, KV_OFF[layer], 14), self.ptr(S_Q1, S_WS, S_SEG, 18, Q_OFF[layer], 13),
                   self.ptr(S_FP[0], S_WS, S_SEG, 7, FKV_OFF[layer], 2), self.ptr(S_Q2, S_WS, S_SEG, 17, KVM_OFF[layer], 12)])
        P = XF
        for i in range(4):
            a(f"v_mov_b32 v{WB+4+i}, -1")
        a(f"s_lshl_b32 s{S_T0}, s{S_WAVE}, 10")
        a(f"v_add_u32 v{WB}, s{S_T0}, v{L16}")
        a(f"v_add_u32 v{WB+1}, 4096, v{WB}")
        a(f"s_lshl_b32 s{S_T0}, s{S_WAVE}, 11")
        a(f"s_add_u32 s{S_T0}, s{S_T0}, 8192")
        a(f"v_add_u32 v{WB+2}, s{S_T0}, v{L16}")
        a("s_waitcnt vmcnt(0)")
        a(f"global_store_dwordx4 v{WB}, {vr(WB+4,4)}, s[{S_Q2}:{S_Q2+1}] sc1")
        acc = lambda ti, rt: ACC + (ti * 2 + rt) * 4
        n = 0
        for rt in range(2):
            p = P + 4 * n; n += 1
            for tt in range(2):
                b = acc(2 + tt, rt)
                a(f"v_cvt_pk_bf16_f32 v{p+2*tt}, v{b}, v{b+1}")
                a(f"v_cvt_pk_bf16_f32 v{p+2*tt+1}, v{b+2}, v{b+3}")
            a(f"global_store_dwordx4 v{WB+rt}, {vr(p,4)}, s[{S_Q0}:{S_Q0+1}] sc1")
        for tt in range(2):
            p = P + 4 * n; n += 1
            for rt in range(2):
                b = acc(4 + tt, rt)
                a(f"v_cvt_pk_bf16_f32 v{p+2*rt}, v{b}, v{b+1}")
                a(f"v_cvt_pk_bf16_f32 v{p+2*rt+1}, v{b+2}, v{b+3}")
            a(f"global_store_dwordx4 v{WB+2}, {vr(p,4)}, s[{S_Q0}:{S_Q0+1}] offset:{1024*tt} sc1")
        for rt in range(2):
            p = P + 4 * n; n += 1
            for tt in range(2):
                b = acc(tt, rt)
                a(f"v_cvt_pk_bf16_f32 v{p+2*tt}, v{b}, v{b+1}")
                a(f"v_cvt_pk_bf16_f32 v{p+2*tt+1}, v{b+2}, v{b+3}")
            a(f"global_store_dwordx4 v{WB+rt}, {vr(p,4)}, s[{S_Q1}:{S_Q1+1}]")
        a(f"s_cmp_eq_u32 s{S_WAVE}, {fwave}")
        a(f"s_cselect_b32 s{S_T0}, 1, 0")
        a(f"s_or_b32 s{S_FE}, s{S_FE}, s{S_T0}")

    def kv_sync_flush(self):
        a = self.a
        a("s_waitcnt vmcnt(0)")
        a("s_barrier")
        self.emit(self.fl_flush(0, True))

    def s3_attn(self):
        a = self.a
        for bit, sreg, layer, H in ((B_KA, S_SA, 0, 0), (B_KB, S_SB, 1, 2)):
            l = self.lab('ka')
            a(f"s_bitcmp1_b32 s{S_PFM}, {bit}")
            a(f"s_cbranch_scc1 {l}")
            a(f"s_cmp_ge_u32 s{sreg}, {NSEG}")
            a(f"s_cbranch_scc1 {l}")
            a("s_waitcnt vmcnt(0)")
            a("s_barrier")
            self.emit([self.ptr(S_Q4, S_WS, sreg, 19, KV_OFF[layer], 14)])
            self.emit(self.dl_lin(S_Q4, H))
            a.label(l)
        KX, S, T, QF, KM, VM = W0, W0 + 32, W0 + 44, W0 + 48, W0 + 64, W0 + 80
        lskip = self.lab('as'); ldone = self.lab('ad')
        a(f"s_lshr_b32 s{S_T2}, s{S_WAVE}, 1")
        a(f"s_cmp_eq_u32 s{S_T2}, 0")
        a(f"s_cselect_b32 s{S_SEG}, s{S_SA}, s{S_SB}")
        a(f"s_cmp_ge_u32 s{S_SEG}, {NSEG}")
        a(f"s_cbranch_scc1 {lskip}")
        a(f"s_lshl_b32 s{S_SC}, s{S_T2}, 6")
        a(f"s_add_u32 s{S_SC}, s{S_SC}, s{S_SEG}")
        assert Q_OFF[1] - Q_OFF[0] == 64 << 18 and KVM_OFF[1] - KVM_OFF[0] == 64 << 17 and FKVM_OFF[1] - FKVM_OFF[0] == 64 << 9
        self.emit([self.ptr(S_Q1, S_WS, S_SC, 18, Q_OFF[0], 13), self.ptr(S_Q3, S_WS, S_SC, 17, KVM_OFF[0], 12)])
        X = KX
        LN, L15, G, KMA, VMA, THR, NEG, QA, U = X, X + 1, X + 2, X + 3, X + 4, X + 5, X + 6, X + 7, X + 8
        VXA, KXA = T, T + 1
        a(f"v_lshrrev_b32 v{LN}, 4, v{L16}")
        a(f"v_lshrrev_b32 v{G}, 4, v{LN}")
        a(f"v_and_b32 v{KMA}, 7, v{LN}")
        a(f"v_lshlrev_b32 v{KMA}, 4, v{KMA}")
        a(f"v_lshl_add_u32 v{KMA}, v{G}, 7, v{KMA}")
        def kml(ka):
            for ks in range(4):
                a(f"global_load_dwordx4 {vr(KM+4*ks,4)}, v{ka}, s[{S_Q3}:{S_Q3+1}] offset:{512*ks} sc1")
        def vml(va):
            for j in range(8):
                a(f"global_load_dwordx2 {vr(VM+2*j,2)}, v{va}, s[{S_Q3}:{S_Q3+1}] offset:{(j>>1)*512+(j&1)*64} sc1")
        def anysent(dst, r):
            a(f"v_max3_u32 v{dst}, v{r}, v{r+1}, v{r+2}")
            a(f"v_max3_u32 v{dst+1}, v{r+3}, v{r+4}, v{r+5}")
            for i in range(6, 14, 4):
                a(f"v_max3_u32 v{dst}, v{dst}, v{r+i}, v{r+i+1}")
                a(f"v_max3_u32 v{dst+1}, v{dst+1}, v{r+i+2}, v{r+i+3}")
            a(f"v_max3_u32 v{dst}, v{dst}, v{r+14}, v{r+15}")
            a(f"v_max_u32 v{dst}, v{dst}, v{dst+1}")
            a(f"v_cmp_eq_u32 vcc, -1, v{dst}")
        kml(KMA)
        a(f"s_and_b32 s{S_T0}, s{S_WAVE}, 1")
        a(f"s_lshl_b32 s{S_T1}, s{S_T0}, 12")
        a(f"v_add_u32 v{QA}, s{S_T1}, v{L16}")
        for ks in range(4):
            a(f"global_load_dwordx4 {vr(QF+4*ks,4)}, v{QA}, s[{S_Q1}:{S_Q1+1}] offset:{1024*ks} sc1")
        a(f"v_and_b32 v{L15}, 15, v{LN}")
        a(f"s_lshl_b32 s{S_T1}, s{S_T0}, 4")
        a(f"v_add_u32 v{THR}, s{S_T1}, v{L15}")
        a(f"v_lshlrev_b32 v{U}, 2, v{G}")
        a(f"v_sub_u32 v{THR}, v{THR}, v{U}")
        a(f"s_lshl_b32 s{S_T2}, s{S_T2}, 15")
        a(f"v_add_u32 v{KXA}, s{S_T2}, v{FL}")
        a(f"v_lshrrev_b32 v{VXA}, 3, v{L15}")
        a(f"v_lshlrev_b32 v{VXA}, 10, v{VXA}")
        a(f"v_lshl_add_u32 v{VXA}, v{G}, 8, v{VXA}")
        a(f"v_bfe_u32 v{U}, v{L15}, 2, 1")
        a(f"v_lshl_add_u32 v{VXA}, v{U}, 7, v{VXA}")
        a(f"v_and_b32 v{U}, 3, v{L15}")
        a(f"v_lshl_add_u32 v{VXA}, v{U}, 4, v{VXA}")
        a(f"s_add_u32 s{S_T2}, s{S_T2}, {L_FB+8192}")
        a(f"v_add_u32 v{VXA}, s{S_T2}, v{VXA}")
        a(f"v_lshrrev_b32 v{VMA}, 2, v{L15}")
        a(f"v_lshlrev_b32 v{VMA}, 7, v{VMA}")
        a(f"v_lshl_add_u32 v{VMA}, v{U}, 4, v{VMA}")
        a(f"v_and_b32 v{U}, 1, v{G}")
        a(f"v_lshl_add_u32 v{VMA}, v{U}, 3, v{VMA}")
        a(f"v_add_u32 v{T+2}, 2048, v{VMA}")
        a(f"v_mov_b32 v{NEG}, 0xff800000")
        a(f"v_cmp_gt_u32 vcc, 2, v{G}")
        for i in range(4):
            a(f"v_cndmask_b32 v{S+i}, v{NEG}, v{ZERO}, vcc")
        for kt in range(2):
            for i in range(4):
                a(f"v_cmp_le_i32 vcc, {16*kt+i}, v{THR}")
                a(f"v_cndmask_b32 v{S+4+4*kt+i}, v{NEG}, v{ZERO}, vcc")
        a(f"v_mov_b32 v{T+3}, v{KMA}")
        KMA = T + 3
        a("s_waitcnt vmcnt(0)")
        a("s_barrier")
        self.emit(self.fl_flush(0, True))
        q = LdsQ(a)
        for ks in range(4):
            q.issue(f"ds_read_b128 {vr(KX+4*ks,4)}, v{KXA} offset:{1024*ks}", ks)
            q.issue(f"ds_read_b128 {vr(KX+16+4*ks,4)}, v{KXA} offset:{4096+1024*ks}", ks)
        for ks in range(4):
            q.wait(ks)
            a(f"v_mfma_f32_16x16x32_bf16 {vr(S+4,4)}, {vr(KX+4*ks,4)}, {vr(QF+4*ks,4)}, {vr(S+4,4)}")
            a(f"v_mfma_f32_16x16x32_bf16 {vr(S+8,4)}, {vr(KX+16+4*ks,4)}, {vr(QF+4*ks,4)}, {vr(S+8,4)}")
        VX = KX
        for j in range(8):
            a(f"ds_read_b128 {vr(VX+4*j,4)}, v{VXA} offset:{(j>>1)*2048+(j&1)*64}")
        lp = self.lab('fw'); lgo = self.lab('fg')
        a(f"s_mov_b32 s{S_SPIN}, {SPIN_MAX}")
        a.label(lp)
        anysent(T, KM)
        a(f"s_cbranch_vccz {lgo}")
        a("s_mov_b64 exec, vcc")
        kml(KMA)
        a("s_mov_b64 exec, -1")
        self.spin_dec()
        a("s_waitcnt vmcnt(0)")
        a(f"s_branch {lp}")
        a.label(lgo)
        vml(T + 2)
        for ks in range(4):
            a(f"v_mfma_f32_16x16x32_bf16 {vr(S,4)}, {vr(KM+4*ks,4)}, {vr(QF+4*ks,4)}, {vr(S,4)}")
        M = KM
        a(f"v_max3_f32 v{T}, v{S+4}, v{S+5}, v{S+6}")
        a(f"v_max3_f32 v{T+1}, v{S+7}, v{S+8}, v{S+9}")
        a(f"v_max3_f32 v{T}, v{T}, v{S+10}, v{S+11}")
        a(f"v_max_f32 v{T}, v{T}, v{T+1}")
        a(f"v_max3_f32 v{M}, v{T}, v{S}, v{S+1}")
        a(f"v_max3_f32 v{M}, v{M}, v{S+2}, v{S+3}")
        for sw in ('16', '32'):
            a(f"v_mov_b32 v{M+1}, v{M}")
            a(f"v_permlane{sw}_swap_b32 v{M+1}, v{M}")
            a(f"v_max_f32 v{M}, v{M}, v{M+1}")
        a(f"v_mul_f32 v{M}, s{S_C}, v{M}")
        for i in range(6):
            a(f"v_pk_fma_f32 {vr(S+2*i,2)}, {vr(S+2*i,2)}, s[{S_C}:{S_C+1}], {vr(M,2)} op_sel_hi:[1,1,0] neg_lo:[0,0,1] neg_hi:[0,0,1]")
        for i in range(12):
            a(f"v_exp_f32 v{S+i}, v{S+i}")
        a(f"v_pk_add_f32 {vr(M,2)}, {vr(S,2)}, {vr(S+2,2)}")
        a(f"v_pk_add_f32 {vr(M+2,2)}, {vr(S+4,2)}, {vr(S+6,2)}")
        a(f"v_pk_add_f32 {vr(M+4,2)}, {vr(S+8,2)}, {vr(S+10,2)}")
        a(f"v_pk_add_f32 {vr(M,2)}, {vr(M,2)}, {vr(M+2,2)}")
        a(f"v_pk_add_f32 {vr(M,2)}, {vr(M,2)}, {vr(M+4,2)}")
        a(f"v_add_f32 v{M}, v{M}, v{M+1}")
        for sw in ('16', '32'):
            a(f"v_mov_b32 v{M+1}, v{M}")
            a(f"v_permlane{sw}_swap_b32 v{M+1}, v{M}")
            a(f"v_add_f32 v{M}, v{M}, v{M+1}")
        a(f"v_rcp_f32 v{M}, v{M}")
        for i in range(6):
            a(f"v_pk_mul_f32 {vr(S+2*i,2)}, {vr(S+2*i,2)}, {vr(M,2)} op_sel_hi:[1,0]")
        PM, PX = S, S + 4
        a(f"v_cvt_pk_bf16_f32 v{PM}, v{S}, v{S+1}")
        a(f"v_cvt_pk_bf16_f32 v{PM+1}, v{S+2}, v{S+3}")
        for i in range(4):
            a(f"v_cvt_pk_bf16_f32 v{PX+i}, v{S+4+2*i}, v{S+5+2*i}")
        a("s_waitcnt lgkmcnt(0)")
        O = QF
        for j in range(8):
            a(f"v_mfma_f32_16x16x32_bf16 {vr(O+4*j,4)}, {vr(VX+4*j,4)}, {vr(PX,4)}, 0")
        lp = self.lab('vw'); lgo = self.lab('vg')
        a(f"s_mov_b32 s{S_SPIN}, {SPIN_MAX}")
        a.label(lp)
        a("s_waitcnt vmcnt(0)")
        anysent(T, VM)
        a(f"s_cbranch_vccz {lgo}")
        a("s_mov_b64 exec, vcc")
        vml(T + 2)
        a("s_mov_b64 exec, -1")
        self.spin_dec()
        a(f"s_branch {lp}")
        a.label(lgo)
        a(f"s_lshl_b32 s{S_T0}, s{S_RANK}, 13")
        a(f"s_and_b32 s{S_T1}, s{S_WAVE}, 1")
        a(f"s_lshl_b32 s{S_T1}, s{S_T1}, 12")
        a(f"s_add_u32 s{S_T0}, s{S_T0}, s{S_T1}")
        a(f"s_lshr_b32 s{S_T1}, s{S_WAVE}, 1")
        a(f"s_lshl_b32 s{S_T1}, s{S_T1}, 18")
        a(f"s_add_u32 s{S_T0}, s{S_T0}, s{S_T1}")
        a(f"s_add_u32 s{S_T0}, s{S_T0}, s{S_OB}")
        add64(a, S_Q0, S_TS, f"s{S_T0}")
        def ost(kl):
            p = O + 8 * kl
            for u in range(2):
                b = O + 4 * (2 * kl + u)
                a(f"v_cvt_pk_bf16_f32 v{p+2*u}, v{b}, v{b+1}")
                a(f"v_cvt_pk_bf16_f32 v{p+2*u+1}, v{b+2}, v{b+3}")
            a(f"global_store_dwordx4 v{L16}, {vr(p,4)}, s[{S_Q0}:{S_Q0+1}] offset:{1024*kl}{self.sc}")
        for j in range(8):
            a(f"v_mfma_f32_16x16x16_bf16 {vr(O+4*j,4)}, {vr(VM+2*j,2)}, {vr(PM,2)}, {vr(O+4*j,4)}")
            if j in (4, 6):
                ost((j - 4) >> 1)
        ost(2); ost(3)
        a(f"s_branch {ldone}")
        a.label(lskip)
        a("s_waitcnt vmcnt(0)")
        a("s_barrier")
        self.emit(self.fl_flush(0, True))
        a.label(ldone)
        a(f"s_lshl_b32 s{S_T0}, s{S_RANK}, 4")
        a(f"s_lshl_b32 s{S_T1}, s{S_WAVE}, 2")
        a(f"s_add_u32 s{S_T0}, s{S_T0}, s{S_T1}")
        a(f"s_add_u32 s{S_T0}, s{S_T0}, {X_OF}")
        a(f"v_mov_b32 v{T}, s{S_T0}")
        a(f"s_add_u32 s{S_T2}, s{S_K}, 1")
        a(f"v_mov_b32 v{T+1}, s{S_T2}")
        a(f"s_lshl_b32 s{S_T0}, s{S_A}, 6")
        a(f"s_add_u32 s{S_T0}, s{S_T0}, {X_OF}")
        a(f"v_bfe_u32 v{T+2}, v{L16}, 4, 4")
        a(f"v_lshlrev_b32 v{T+2}, 2, v{T+2}")
        a(f"v_add_u32 v{T+2}, s{S_T0}, v{T+2}")
        a("s_waitcnt vmcnt(0)")
        a("s_mov_b64 exec, 1")
        a(f"global_store_dword v{T}, v{T+1}, s[{S_TS}:{S_TS+1}]{self.sc}")
        a("s_mov_b64 exec, -1")
        self.stamp()
        lp = self.lab('of')
        a(f"s_mov_b32 s{S_SPIN}, {SPIN_MAX}")
        a.label(lp)
        a(f"global_load_dword v{T+3}, v{T+2}, s[{S_TS}:{S_TS+1}] sc1")
        self.spin_dec()
        a("s_waitcnt vmcnt(0)")
        a(f"v_cmp_gt_u32 vcc, s{S_T2}, v{T+3}")
        a(f"s_cbranch_vccnz {lp}")

    def ob_ptr(self, dst, slot, half):
        return [f"s_lshl_b32 s{S_T0}, s{S_A}, 15", f"s_add_u32 s{S_T0}, s{S_T0}, s{S_OB}",
                f"s_add_u32 s{S_T0}, s{S_T0}, {slot*256*KB + half*16384}",
                f"s_add_u32 s{dst}, s{S_TS}, s{S_T0}", f"s_addc_u32 s{dst+1}, s{S_TS+1}, 0"]

    def s3_wo(self, slot, Hs, hooks):
        a = self.a
        self.gemm3([6, 7], False, Hs, hooks)
        ACC = W0
        a(f"s_add_u32 s{S_T0}, s{S_PB}, {slot*Q_BUF}")
        add64(a, S_Q3, S_TS, f"s{S_T0}")
        add64(a, S_Q2, S_Q3, 8 * Q_UN)
        a(f"s_sub_u32 s{S_T1}, s{S_K}, {slot*self.DB}")
        a(f"s_bfe_u32 s{S_T1}, s{S_T1}, 0x10001")
        a(f"s_xor_b32 s{S_T1}, s{S_T1}, 1")
        for rt in range(2):
            b0, b1 = ACC + 4 * rt, ACC + 8 + 4 * rt
            a(f"v_cvt_pk_bf16_f32 v{b0}, v{b0}, v{b0+1}")
            a(f"v_cvt_pk_bf16_f32 v{b0+1}, v{b1}, v{b1+1}")
            a(f"v_cvt_pk_bf16_f32 v{b0+2}, v{b0+2}, v{b0+3}")
            a(f"v_cvt_pk_bf16_f32 v{b0+3}, v{b1+2}, v{b1+3}")
            for ih, b in enumerate((b0, b0 + 2)):
                a(f"v_and_or_b32 v{b}, v{b}, -2, s{S_T1}")
                p = (S_Q3, S_Q2)[rt]
                a(f"global_store_dwordx2 v{(PSV, PSV1)[ih]}, {vr(b,2)}, s[{p}:{p+1}]{self.sc}")

    def s3_reduce(self):
        a = self.a
        lsk = self.lab('rd'); lend = self.lab('re')
        LD, T, XR = W0, W0 + 32, W0 + 44
        RX = L_FB + HOFF[0]
        a(f"s_lshr_b32 s{S_T2}, s{S_RANK}, 4")
        a(f"s_cmp_eq_u32 s{S_T2}, 0")
        a(f"s_cselect_b32 s{S_SEG}, s{S_SA}, s{S_SB}")
        a(f"s_cmp_ge_u32 s{S_SEG}, {NSEG}")
        a(f"s_cbranch_scc1 {lsk}")
        a(f"s_and_b32 s{S_SC}, s{S_RANK}, 15")
        a(f"s_mul_i32 s{S_T0}, s{S_SC}, {Q_UN}")
        a(f"s_mul_i32 s{S_T1}, s{S_T2}, {Q_BUF}")
        a(f"s_add_u32 s{S_T0}, s{S_T0}, s{S_T1}")
        a(f"s_lshl_b32 s{S_T1}, s{S_WAVE}, 9")
        a(f"s_add_u32 s{S_T0}, s{S_T0}, s{S_T1}")
        a(f"s_add_u32 s{S_T0}, s{S_T0}, s{S_PB}")
        add64(a, S_Q0, S_TS, f"s{S_T0}")
        RR = LD + 16
        a(f"v_lshrrev_b32 v{T+1}, 1, v{L16}")
        for j in range(1, 4):
            a(f"v_add_u32 v{T+1+j}, {2*Q_SP*j}, v{T+1}")
        def loads():
            for i in range(8):
                a(f"global_load_dwordx2 {vr(RR+2*i,2)}, v{T+1+(i>>1)}, s[{S_Q0}:{S_Q0+1}] offset:{Q_SP*(i&1)} sc1")
        loads()
        a(f"s_lshl_b32 s{S_SC}, s{S_SC}, 1")
        a(f"s_and_b32 s{S_T0}, s{S_WAVE}, 1")
        a(f"s_add_u32 s{S_SC}, s{S_SC}, s{S_T0}")
        a(f"s_lshl_b32 s{S_T0}, s{S_SEG}, 5")
        a(f"s_add_u32 s{S_SC}, s{S_SC}, s{S_T0}")
        a(f"s_lshl_b32 s{S_T0}, s{S_SC}, 10")
        add64(a, S_Q1, S_WS, f"s{S_T0}")
        add64(a, S_Q2, S_X, f"s{S_T0}")
        add64(a, S_Q3, S_Q1, X2_OFF)
        a(f"s_cmp_eq_u32 s{S_T2}, 0")
        a(f"s_cselect_b64 s[{S_Q2}:{S_Q2+1}], s[{S_Q2}:{S_Q2+1}], s[{S_Q3}:{S_Q3+1}]")
        a(f"global_load_dwordx4 {vr(XR,4)}, v{L16}, s[{S_Q2}:{S_Q2+1}] sc1")
        a(f"s_lshl_b32 s{S_T0}, s{S_T2}, 21")
        add64(a, S_Q1, S_Q1, f"s{S_T0}")
        a(f"s_lshl_b32 s{S_T0}, s{S_T2}, 13")
        a(f"s_lshl_b32 s{S_T1}, s{S_SC}, 2")
        a(f"s_add_u32 s{S_T0}, s{S_T0}, s{S_T1}")
        a(f"s_add_u32 s{S_T0}, s{S_T0}, {FX1_OFF[0]}")
        add64(a, S_FP[1], S_WS, f"s{S_T0}")
        C = W0 + 48
        a(f"v_lshrrev_b32 v{T}, 6, v{L16}")
        a(f"v_lshlrev_b32 v{T}, 5, v{T}")
        a(f"v_bfe_u32 v{C}, v{L16}, 4, 2")
        a(f"v_lshl_add_u32 v{T}, v{C}, 2, v{T}")
        a(f"s_lshl_b32 s{S_T0}, s{S_WAVE}, 9")
        a(f"s_add_u32 s{S_T0}, s{S_T0}, {RX}")
        a(f"v_add_u32 v{T}, s{S_T0}, v{T}")
        a(f"s_lshl_b32 s{S_T0}, s{S_WAVE}, 11")
        a(f"s_add_u32 s{S_T0}, s{S_T0}, {RX}")
        a(f"v_lshl_add_u32 v{T+8}, v{L16}, 1, s{S_T0}")
        a(f"s_mul_i32 s{S_T2}, s{S_T2}, {self.DB}")
        a(f"s_sub_u32 s{S_T2}, s{S_K}, s{S_T2}")
        a(f"s_bfe_u32 s{S_T2}, s{S_T2}, 0x10001")
        a(f"s_xor_b32 s{S_T2}, s{S_T2}, 1")
        a(f"s_sub_u32 s{S_T2}, 0, s{S_T2}")
        lp = self.lab('rp'); lgo = self.lab('rg')
        a(f"s_mov_b32 s{S_SPIN}, {SPIN_MAX}")
        a.label(lp)
        a("s_waitcnt vmcnt(0)")
        tt = 0
        for idx in range(8):
            x, y, z = (idx >> 2) & 1, (idx >> 1) & 1, idx & 1
            if (x ^ z) | (y ^ z):
                tt |= 1 << idx
        for i in range(4):
            a(f"v_bitop3_b32 v{C+i}, v{RR+4*i}, v{RR+4*i+2}, s{S_T2} bitop3:0x{tt:02x}")
        a(f"v_or3_b32 v{C}, v{C}, v{C+1}, v{C+2}")
        a(f"v_bitop3_b32 v{C}, v{C}, v{C+3}, 1 bitop3:0xa8")
        a(f"v_cmp_ne_u32 vcc, 0, v{C}")
        a(f"s_cbranch_vccz {lgo}")
        a("s_mov_b64 exec, vcc")
        loads()
        a("s_mov_b64 exec, -1")
        self.spin_dec()
        a(f"s_branch {lp}")
        a.label(lgo)
        def unp(d, r):
            for e in range(2):
                a(f"v_lshlrev_b32 v{d+2*e}, 16, v{r+e}")
                a(f"v_and_b32 v{d+2*e+1}, 0xffff0000, v{r+e}")
        for i in range(4):
            unp(LD + 4 * i, RR + 2 * i)
        for h in range(2):
            for i in range(2):
                unp(RR + 4 * i, RR + 8 + 4 * h + 2 * i)
            for e in range(4):
                a(f"v_pk_add_f32 {vr(LD+8*h+2*e,2)}, {vr(LD+8*h+2*e,2)}, {vr(RR+2*e,2)}")
        for step in (2, 1):
            for s_ in range(step):
                for e in range(2):
                    a(f"v_pk_add_f32 {vr(LD+4*s_+2*e,2)}, {vr(LD+4*s_+2*e,2)}, {vr(LD+4*(s_+step)+2*e,2)}")
        a(f"ds_write2_b32 v{T}, v{LD}, v{LD+2} offset0:0 offset1:4")
        a(f"v_add_u32 v{T+1}, 2048, v{T}")
        a(f"ds_write2_b32 v{T+1}, v{LD+1}, v{LD+3} offset0:0 offset1:4")
        a("s_waitcnt lgkmcnt(0)")
        a("s_barrier")
        a(f"s_cmp_ge_u32 s{S_WAVE}, 2")
        a(f"s_cbranch_scc1 {lend}")
        a(f"ds_read_b128 {vr(LD,4)}, v{T+8}")
        a(f"ds_read_b128 {vr(LD+4,4)}, v{T+8} offset:16")
        a("s_waitcnt lgkmcnt(0)")
        Y = LD
        X = LD + 8; D = LD + 16; P = LD + 24; TT = LD + 28
        self.pack8(P, Y)
        self.unpack8(Y, P)
        self.unpack8(X, XR)
        for e in range(4):
            a(f"v_pk_add_f32 {vr(X+2*e,2)}, {vr(X+2*e,2)}, {vr(Y+2*e,2)}")
        XP = C
        self.pack8(XP, X)
        a(f"v_add_u32 v{T}, {X1_OFF[0]}, v{L16}")
        a(f"global_store_dwordx4 v{T}, {vr(XP,4)}, s[{S_Q1}:{S_Q1+1}] sc1")
        self.unpack8(X, XP)
        self.layernorm(X, D, P, TT)
        a(f"v_add_u32 v{T+2}, {XN1_OFF[0]}, v{L16}")
        a(f"global_store_dwordx4 v{T+2}, {vr(P,4)}, s[{S_Q1}:{S_Q1+1}] sc1")
        a(f"s_bitset1_b32 s{S_FE}, 1")
        a(f"s_branch {lend}")
        a.label(lsk)
        a("s_waitcnt vmcnt(0)")
        a.label(lend)

    def x3_main(self):
        a = self.a
        DB, CA = self.DB, self.CA
        if self.stamps:
            a(f"s_lshl_b32 s{S_T0}, s{S_RANK}, 13")
            a(f"s_lshl_b32 s{S_T1}, s{S_TEAM}, 18")
            a(f"s_add_u32 s{S_T0}, s{S_T0}, s{S_T1}")
            a(f"s_add_u32 s{S_T0}, s{S_T0}, {STAMP_OFF}")
            add64(a, S_ST, S_WS, f"s{S_T0}")
        S_S1, S_S2 = S_P0, S_P0 + 1
        S_NA, S_NB = S_P1, S_P1 + 1
        S_R = S_P2
        a(f"s_mov_b32 s{S_K}, {-CA}")
        a(f"s_mov_b32 s{S_PFM}, 0")
        a(f"s_mov_b32 s{S_FE}, 0")
        for p in S_FP[:2]:
            add64(a, p, S_TS, X_OF + 1024)
        lloop = self.lab('xw')
        a.label(lloop)
        self.nstamp = 0
        a(f"s_mul_i32 s{S_SA}, s{S_K}, {NX}")
        a(f"s_add_u32 s{S_SA}, s{S_SA}, s{S_XT}")
        a(f"s_sub_u32 s{S_SB}, s{S_SA}, {NX*DB}")
        a(f"s_sub_u32 s{S_S1}, s{S_SA}, {NX}")
        a(f"s_add_u32 s{S_S2}, s{S_SA}, {CA*NX}")
        a(f"s_add_u32 s{S_NA}, s{S_SA}, {NX}")
        a(f"s_add_u32 s{S_NB}, s{S_SB}, {NX}")
        a(f"s_bfe_u32 s{S_TAG}, s{S_K}, 0x10001")
        a(f"s_xor_b32 s{S_TAG}, s{S_TAG}, 1")
        a(f"s_and_b32 s{S_T0}, s{S_K}, 1")
        a(f"s_lshl_b32 s{S_OB}, s{S_T0}, 19")
        a(f"s_add_u32 s{S_OB}, s{S_OB}, {X_OB}")
        a(f"s_mul_i32 s{S_PB}, s{S_T0}, {2*Q_BUF}")
        a(f"s_add_u32 s{S_PB}, s{S_PB}, {X_PART}")
        def skip_if_invalid(sreg):
            l = self.lab('g')
            a(f"s_cmp_ge_u32 s{sreg}, {NSEG}")
            a(f"s_cbranch_scc1 {l}")
            return l
        def setbit(bit, sreg):
            return [f"s_cmp_lt_u32 s{sreg}, {NSEG}", f"s_cselect_b32 s{S_T0}, {1 << bit}, 0", f"s_or_b32 s{S_PFM}, s{S_PFM}, s{S_T0}"]
        fx2_addr = [[f"s_lshl_b32 s{S_T0}, s{S_S1}, 7", f"s_lshl_b32 s{S_T1}, s{S_WAVE}, 5", f"s_add_u32 s{S_T0}, s{S_T0}, s{S_T1}",
                     f"s_add_u32 s{S_T0}, s{S_T0}, {FX2_OFF}", f"v_bfe_u32 v{FLA}, v{L16}, 4, 3"],
                    [f"v_lshlrev_b32 v{FLA}, 2, v{FLA}", f"v_add_u32 v{FLA}, s{S_T0}, v{FLA}"]]
        self.stamp()
        a(f"s_min_u32 s{S_T0}, s{S_SA}, s{S_SB}")
        lnoatt = skip_if_invalid(S_T0)
        self.s3_attn()
        a(f"s_mov_b32 s{S_PFM}, 0")
        self.stamp()
        l = self.lab('tg')
        a(f"s_cmp_lt_u32 s{S_SA}, {NSEG}")
        a(f"s_cbranch_scc1 {l}")
        a(f"s_sub_u32 s{S_SC}, s{S_SB}, {2*NX}")
        self.poll_flags32(FX1_OFF[1], S_SC, W0)
        self.emit([self.ob_ptr(S_Q4, 1, 1)]); self.emit(self.dl_lin(S_Q4, 0))
        a.label(l)
        l = skip_if_invalid(S_SA)
        self.emit([self.ob_ptr(S_Q4, 0, 0)]); self.emit(self.dl_lin(S_Q4, 0))
        self.emit([self.ob_ptr(S_Q4, 0, 1)]); self.emit(self.dl_lin(S_Q4, 1))
        a.label(l)
        self.emit([self.ob_ptr(S_Q4, 1, 0)]); self.emit(self.dl_lin(S_Q4, 2))
        l = skip_if_invalid(S_SA)
        a("s_waitcnt vmcnt(8)")
        a("s_barrier")
        self.s3_wo(0, (0, 1), {7: [self.ob_ptr(S_Q4, 1, 1), [f"s_cmp_lt_u32 s{S_SB}, {NSEG}", f"s_cselect_b64 s[{S_MK}:{S_MK+1}], -1, 0"]] + self.dl_lin(S_Q4, 0, S_MK)})
        a.label(l)
        self.stamp()
        l = skip_if_invalid(S_SB)
        lb = self.lab('wb')
        a(f"s_cmp_lt_u32 s{S_SA}, {NSEG}")
        a(f"s_cbranch_scc1 {lb}")
        a("s_waitcnt vmcnt(0)")
        a("s_barrier")
        a.label(lb)
        rq = self.ptr(S_R, S_WS, S_S1, 15, XN2_OFF)
        rc = self.rc_ptr(S_R, S_S2)
        a(f"v_mov_b32 v{FLG}, 0")
        lq = skip_if_invalid(S_S1)
        self.emit(fx2_addr)
        a(f"global_load_dword v{FLG}, v{FLA}, s[{S_WS}:{S_WS+1}] sc1")
        a.label(lq)
        h7 = [[f"v_cmp_eq_u32 vcc, 0, v{FLG}"], rq, ["s_cmp_eq_u64 vcc, 0", f"s_cselect_b32 s{S_T0}, {1 << B_Q}, 0", f"s_or_b32 s{S_PFM}, s{S_PFM}, s{S_T0}"], self.mk(B_Q)] \
             + self.dl_rows(S_R, 0, 1, S_MK) + self.dl_rows(S_R, 1, 2, S_MK)
        self.s3_wo(1, (2, 0), {7: h7})
        a.label(l)
        self.stamp()
        self.s3_reduce()
        a.label(lnoatt)
        self.stamp()
        l = skip_if_invalid(S_S1)
        lpf = self.lab('q1p')
        a(f"s_bitcmp1_b32 s{S_PFM}, {B_Q}")
        a(f"s_cbranch_scc1 {lpf}")
        self.emit(fx2_addr)
        a("s_waitcnt vmcnt(0)")
        self.emit(self.fl_flush(1, False))
        lp = self.lab('pf')
        a(f"s_mov_b32 s{S_SPIN}, {SPIN_MAX}")
        a.label(lp)
        a(f"global_load_dword v{FLG}, v{FLA}, s[{S_WS}:{S_WS+1}] sc1")
        self.spin_dec()
        a("s_waitcnt vmcnt(0)")
        a(f"v_cmp_eq_u32 vcc, 0, v{FLG}")
        a(f"s_cbranch_vccnz {lp}")
        self.emit([rq]); self.emit(self.dl_rows(S_R, 0, 1)); self.emit(self.dl_rows(S_R, 1, 2))
        a("s_waitcnt vmcnt(4)")
        a.label(lpf)
        a("s_barrier")
        self.stamp()
        a(f"s_mov_b32 s{S_SEG}, s{S_S1}")
        self.s3_qkv(1, (1, 2), {self.FX1KS: [["s_waitcnt vmcnt(0)"]] + self.fl_flush(1, False) + [rc, setbit(B_C, S_S2), self.mk(B_C)] + self.dl_rows(S_R, 0, 0, S_MK),
                                7: self.dl_rows(S_R, 1, 1, S_MK)})
        a.label(l)
        self.stamp()
        lc = skip_if_invalid(S_S2)
        lpf = self.lab('cp')
        a(f"s_bitcmp1_b32 s{S_PFM}, {B_C}")
        a(f"s_cbranch_scc1 {lpf}")
        a("s_barrier")
        self.emit([rc]); self.emit(self.dl_rows(S_R, 0, 0)); self.emit(self.dl_rows(S_R, 1, 1))
        a("s_waitcnt vmcnt(4)")
        a.label(lpf)
        a("s_barrier")
        self.stamp()
        a(f"s_mov_b32 s{S_SEG}, s{S_S2}")
        kb = [setbit(B_KB, S_NB), self.mk(B_KB), self.ptr(S_Q4, S_WS, S_NB, 19, KV_OFF[1], 14)] + self.dl_lin(S_Q4, 2, S_MK)
        ka = [setbit(B_KA, S_NA), self.mk(B_KA), self.ptr(S_Q4, S_WS, S_NA, 19, KV_OFF[0], 14)] + self.dl_lin(S_Q4, 0, S_MK)
        fl = self.fl_flush(0, True) + self.fl_flush(1, False)
        if self.KVKS < 7:
            hk = {self.KVKS: [["s_waitcnt vmcnt(0)", "s_barrier"]] + fl, 7: kb + ka}
        else:
            hk = {7: fl + kb + ka}
        self.s3_qkv(0, (0, 1), hk, fwave=0)
        lce = self.lab('ce')
        a(f"s_cmp_ge_i32 s{S_K}, -1")
        a(f"s_cbranch_scc1 {lce}")
        self.kv_sync_flush()
        a(f"s_branch {lce}")
        a.label(lc)
        a("s_waitcnt vmcnt(0)")
        self.emit(self.fl_flush(1, False))
        a("s_barrier")
        self.emit(self.fl_flush(0, True))
        a.label(lce)
        self.stamp()
        if self.stamps:
            ls = self.lab('ns')
            a(f"s_cmp_lg_u32 s{S_WAVE}, 1")
            a(f"s_cbranch_scc1 {ls}")
            a("s_waitcnt lgkmcnt(0)")
            for i in range(self.nstamp):
                a(f"v_writelane_b32 v{W0+90}, s{S_STAMP0+2*i}, {i}")
            for i in (13, 14, 15):
                a(f"v_writelane_b32 v{W0+90}, s{S_STAMP0+2*i}, {i}")
            a(f"v_lshrrev_b32 v{W0+91}, 2, v{L16}")
            a("s_mov_b64 exec, 0xffff")
            a(f"global_store_dword v{W0+91}, v{W0+90}, s[{S_ST}:{S_ST+1}]")
            a("s_mov_b64 exec, -1")
            a.label(ls)
            add64(a, S_ST, S_ST, 128)
        a(f"s_add_u32 s{S_K}, s{S_K}, 1")
        a(f"s_cmp_lt_i32 s{S_K}, {NKW + DB}")
        lend = self.lab('xe')
        a(f"s_cbranch_scc0 {lend}")
        a(f"s_branch {lloop}")
        a.label(lend)
```

```python
import os
import sys, os
from gcommon import *
from gx3 import GenX3 as GenX, HX
from gr2 import GenR, HOMES as HR, R_KV, R_WB, R_SCR
from gf import GenF

TEAM_OFF_SAFE = 192 * MB
OUT = 'interleave_layers__memory_aug_recurrent_mem_tr__dense_activation_gelu__prompt.s'

class Gen(GenBase, GenX, GenR, GenF):
    DB = int(os.environ.get('DB', 3))
    CA = int(os.environ.get('CA', 2))
    def arrive(self, off_text):
        a = self.a
        lskip = self.lab('arr')
        a(f"s_cmp_lg_u32 s{S_WAVE}, 0")
        a(f"s_cbranch_scc1 {lskip}")
        self.dbg_atomic(off_text, False)
        a.label(lskip)

    def prologue(self):
        a = self.a
        a(f"s_cmp_ge_u32 s2, 256")
        a("s_cbranch_scc1 L_end0")
        if self.stamps:
            a("s_memrealtime s[94:95]")
        a(f"s_load_dwordx2 s[{S_WS}:{S_WS+1}], s[0:1], 112")
        a(f"s_load_dwordx2 s[{S_DBG}:{S_DBG+1}], s[0:1], 104")
        a(f"s_getreg_b32 s{S_TEAM}, hwreg(HW_REG_XCC_ID)")
        a(f"s_and_b32 s{S_TEAM}, s{S_TEAM}, 7")
        a("v_lshrrev_b32 v1, 6, v0")
        a(f"v_readfirstlane_b32 s{S_WAVE}, v1")
        a("s_waitcnt lgkmcnt(0)")
        l1 = self.lab('reg'); lpfx = self.lab('pfx')
        a(f"s_cmp_lg_u32 s{S_WAVE}, 0")
        a(f"s_cbranch_scc1 {lpfx}")
        a(f"s_lshl_b32 s{S_T0}, s2, 9")
        a(f"s_add_u32 s{S_T0}, s{S_T0}, {FLAG_OFF}")
        a("v_lshlrev_b32 v5, 3, v0")
        a(f"v_add_u32 v5, s{S_T0}, v5")
        a("v_mov_b32 v6, 0")
        a("v_mov_b32 v7, 0")
        a(f"s_lshl_b32 s{S_T0}, s{S_TEAM}, 2")
        self.dbg_atomic(f"s{S_T0}", True)
        a(f"global_store_dwordx2 v5, v[6:7], s[{S_WS}:{S_WS+1}] sc1")
        a("s_waitcnt vmcnt(1)")
        a("s_mov_b64 exec, 1")
        a(f"v_mov_b32 v1, {L_RED}")
        a("ds_write_b32 v1, v3")
        a("s_waitcnt lgkmcnt(0)")
        a("s_mov_b64 exec, -1")
        a(f"s_branch {l1}")
        a.label(lpfx)
        a(f"s_lshl_b32 s{S_T0}, s{S_WAVE}, 3")
        a(f"s_add_u32 s{S_T0}, s{S_T0}, 8")
        a(f"s_load_dwordx2 s[{S_P0}:{S_P0+1}], s[0:1], s{S_T0}")
        a(f"s_load_dwordx2 s[{S_P1}:{S_P1+1}], s[0:1], 40")
        a(f"s_load_dwordx2 s[{S_P2}:{S_P2+1}], s[0:1], 64")
        a(f"s_load_dwordx2 s[{S_P3}:{S_P3+1}], s[0:1], 80")
        a("v_and_b32 v1, 63, v0")
        a("v_lshlrev_b32 v1, 4, v1")
        a(f"s_lshl_b32 s{S_T0}, s2, 14")
        a(f"v_add_u32 v2, s{S_T0}, v1")
        a("s_waitcnt lgkmcnt(0)")
        for i in range(4):
            for j in range(4):
                a(f"global_load_dwordx4 v[108:111], v2, s[{S_P0}:{S_P0+1}] offset:{1024*j}")
            a("v_add_u32 v2, 4096, v2")
        l3 = self.lab('pf3')
        a(f"s_cmp_eq_u32 s{S_WAVE}, 3")
        a(f"s_cbranch_scc1 {l3}")
        a(f"s_lshl_b32 s{S_T1}, s{S_WAVE}, 13")
        a(f"s_add_u32 s{S_T0}, s{S_T0}, s{S_T1}")
        a(f"s_sub_u32 s{S_T0}, s{S_T0}, 8192")
        a(f"v_add_u32 v2, s{S_T0}, v1")
        for i in range(2):
            for j in range(4):
                a(f"global_load_dwordx4 v[108:111], v2, s[{S_P1}:{S_P1+1}] offset:{1024*j}")
            a("v_add_u32 v2, 4096, v2")
        a(f"s_branch {l1}")
        a.label(l3)
        a(f"s_mul_i32 s{S_T0}, s2, 5120")
        a(f"v_add_u32 v2, s{S_T0}, v1")
        a("v_add_u32 v3, 4096, v2")
        for p in (S_P2, S_P3):
            for j in range(4):
                a(f"global_load_dwordx4 v[108:111], v2, s[{p}:{p+1}] offset:{1024*j}")
            a(f"global_load_dwordx4 v[108:111], v3, s[{p}:{p+1}]")
        TL = int(os.environ.get('TLB', 0))
        if TL:
            a(f"s_lshr_b32 s{S_T0}, s2, 3")
            a(f"s_lshl_b32 s{S_T0}, s{S_T0}, 23")
            a("v_lshlrev_b32 v2, 12, v1")
            a(f"v_add_u32 v2, s{S_T0}, v2")
            a(f"global_load_dword v108, v2, s[{S_WS}:{S_WS+1}]")
            a(f"v_add_u32 v2, {1<<22}, v2")
            a(f"global_load_dword v108, v2, s[{S_WS}:{S_WS+1}]")
        a.label(l1)
        a("s_barrier")
        a(f"v_mov_b32 v1, {L_RED}")
        a("ds_read_b32 v2, v1")
        l2 = self.lab('reg2')
        a(f"s_cmp_lg_u32 s{S_WAVE}, 0")
        a(f"s_cbranch_scc1 {l2}")
        a("s_waitcnt vmcnt(0) lgkmcnt(0)")
        a("v_mov_b32 v4, v2")
        self.dbg_atomic("32", False)
        a("v_mov_b32 v2, v4")
        a.label(l2)
        a("s_waitcnt lgkmcnt(0)")
        a(f"v_readfirstlane_b32 s{S_RANK}, v2")
        a("s_barrier")
        a("s_branch L_start")
        a.label("L_end0")
        a("s_waitcnt vmcnt(0) lgkmcnt(0)")
        a("s_endpgm")
        a.label("L_start")

    def team_base(self, off):
        a = self.a
        a(f"s_lshl_b32 s{S_T0}, s{S_TEAM}, 23")
        a(f"s_add_u32 s{S_T0}, s{S_T0}, {off}")
        add64(a, S_TS, S_WS, f"s{S_T0}")

    stamp_wave = 0
    def wait_global(self, lsafe, L_RED=L_RED):
        a = self.a
        l1 = self.lab('wg'); lp = self.lab('wgp')
        a(f"s_cmp_lg_u32 s{S_WAVE}, 0")
        a(f"s_cbranch_scc1 {l1}")
        a("v_and_b32 v16, 15, v0")
        a("v_lshlrev_b32 v16, 2, v16")
        a("v_mov_b32 v17, 0")
        a(f"s_mov_b32 s{S_SPIN}, {SPIN_MAX}")
        a("s_mov_b64 exec, 0x1ff")
        a.label(lp)
        a(f"global_atomic_add v18, v16, v17, s[{S_DBG}:{S_DBG+1}] sc0 sc1")
        a("s_waitcnt vmcnt(0)")
        a(f"v_readlane_b32 s{S_T0}, v18, 8")
        self.spin_dec()
        a(f"s_cmp_lt_u32 s{S_T0}, 256")
        a(f"s_cbranch_scc1 {lp}")
        a(f"global_atomic_add v18, v16, v17, s[{S_DBG}:{S_DBG+1}] sc0 sc1")
        a("s_waitcnt vmcnt(0)")
        a("s_mov_b64 exec, 0xff")
        a("v_cmp_ne_u32 vcc, 32, v18")
        a("s_mov_b64 exec, -1")
        a("v_mov_b32 v18, vcc_lo")
        if self.force_safe:
            a("v_mov_b32 v18, 1")
        a(f"v_mov_b32 v16, {L_RED}")
        a("ds_write_b32 v16, v18")
        a("s_waitcnt lgkmcnt(0)")
        a.label(l1)
        a("s_barrier")
        a(f"v_mov_b32 v16, {L_RED}")
        a("ds_read_b32 v18, v16")
        a("s_waitcnt lgkmcnt(0)")
        a(f"v_readfirstlane_b32 s{S_T0}, v18")
        a("s_barrier")
        a(f"s_cmp_lg_u32 s{S_T0}, 0")
        a(f"s_cbranch_scc1 {lsafe}")

    R1SLEEP = int(os.environ.get('R1SLEEP', 2))
    FSLEEP = int(os.environ.get('FSLEEP', 2))
    def role(self, kind, safe):
        a = self.a
        cnt = 96 if safe else 64
        self.xcnt = 132 if safe else 128
        self.end = self.lab('end')
        LS = R_SCR if kind == 'r' else L_RED
        def arr():
            a(f"s_lshl_b32 s{S_T0}, s{S_TEAM}, 2")
            a(f"s_add_u32 s{S_T0}, s{S_T0}, {cnt}")
            self.arrive(f"s{S_T0}")
        def rd(dst):
            l = self.lab('rd')
            a(f"s_cmp_lg_u32 s{S_WAVE}, 0")
            a(f"s_cbranch_scc1 {l}")
            a("v_lshlrev_b32 v1, 2, v0")
            a("v_mov_b32 v2, 0")
            a(f"global_atomic_add v{dst}, v1, v2, s[{S_DBG}:{S_DBG+1}] sc0 sc1")
            a.label(l)
        def ev():
            l = self.lab('ev')
            a(f"s_cmp_lg_u32 s{S_WAVE}, 0")
            a(f"s_cbranch_scc1 {l}")
            a("s_waitcnt vmcnt(0)")
            a(f"v_readlane_b32 s{S_T0}, v104, 8")
            a("v_cmp_eq_u32 vcc, 32, v105")
            a(f"s_add_u32 s{S_T1}, s{S_TEAM}, {cnt // 4}")
            a(f"s_lshl_b64 s[{S_P0}:{S_P0+1}], 1, s{S_T1}")
            m = (0 if safe else 0xff)
            a(f"s_or_b32 s{S_P0}, s{S_P0}, {m}")
            if kind == 'x':
                a(f"s_or_b32 s{S_P0+1}, s{S_P0+1}, {1 << (self.xcnt // 4 - 32)}")
            a(f"v_mov_b32 v1, {LS}")
            a("s_nop 1")
            a(f"s_andn2_b64 s[{S_P0}:{S_P0+1}], s[{S_P0}:{S_P0+1}], vcc")
            a(f"s_cselect_b32 s{S_T1}, 1, 0")
            if not safe:
                a(f"s_cmp_lg_u32 s{S_T0}, 256")
                a(f"s_cselect_b32 s{S_T1}, 1, s{S_T1}")
                if self.force_safe:
                    a(f"s_mov_b32 s{S_T1}, 1")
            a(f"v_mov_b32 v2, s{S_T1}")
            a("ds_write_b32 v1, v2")
            a("s_waitcnt lgkmcnt(0)")
            a.label(l)
        mid = {5: arr, 12: lambda: rd(104), 24: lambda: rd(105), 31: ev}
        if self.stamps:
            a("s_memrealtime s[90:91]")
        if kind == 'r':
            self.r_xn0()
            self.r_init()
            self.load_weights(kind, HR, L_KV=R_KV, L_WB=R_WB, rot=True, after_issue=self.r_init2, mid=mid)
        elif kind == 'x':
            self.x_sconsts()
            XS = int(os.environ.get('XS', 0))
            if XS:
                lz = self.lab('xs'); lzz = self.lab('xz')
                a(f"s_sub_u32 s{S_T0}, s{S_TEAM}, 2")
                a.label(lz)
                a(f"s_cmp_eq_u32 s{S_T0}, 0")
                a(f"s_cbranch_scc1 {lzz}")
                a(f"s_sleep {XS}")
                a(f"s_sub_u32 s{S_T0}, s{S_T0}, 1")
                a(f"s_branch {lz}")
                a.label(lzz)
            self.load_weights(kind, HX, after_issue=self.x3_init, mid=mid)
        else:
            self.f_sconsts()
            self.f_init()
            arr()
            for i in range(self.FSLEEP):
                a("s_sleep 127")
            self.x_consts()
            self.f_load_weights()
        if self.stamps:
            a("s_memrealtime s[92:93]")
        lgo = self.lab('go')
        if kind != 'f':
            a(f"v_mov_b32 v16, {LS}")
            a("ds_read_b32 v17, v16")
            a("s_waitcnt lgkmcnt(0)")
            a(f"v_readfirstlane_b32 s{S_T0}, v17")
            a("s_barrier")
            a(f"s_cmp_eq_u32 s{S_T0}, 0")
            a(f"s_cbranch_scc1 {lgo}")
        if not safe:
            self.wait_global('L_safe_far_' + kind, LS)
        a(f"s_lshl_b32 s{S_T1}, s{S_TEAM}, 2")
        a(f"s_add_u32 s{S_T1}, s{S_T1}, {cnt}")
        self.wait_dbg(f"s{S_T1}", 32, 17)
        if kind == 'x':
            self.wait_dbg(str(self.xcnt), 32, 17)
        a.label(lgo)
        if kind == 'r':
            self.r_consts()
            self.r_main()
        elif kind == 'x':
            self.x3_consts()
            self.x3_main()
        else:
            self.f_main()
        a.label(self.end)
        WB = int(os.environ.get('WB', 0))
        if not safe and WB and (kind != 'f' or WB >= 2):
            lw = self.lab('wb')
            a("s_mov_b64 exec, -1")
            a(f"s_cmp_lg_u32 s{S_WAVE}, 0")
            a(f"s_cbranch_scc1 {lw}")
            if WB == 3:
                a(f"s_and_b32 s{S_T0}, s{S_RANK}, 7")
                a(f"s_cmp_lg_u32 s{S_T0}, 0")
                a(f"s_cbranch_scc1 {lw}")
            if kind == 'f':
                a(f"s_cmp_eq_u32 s22, 3")
                a(f"s_cbranch_scc1 {lw}")
            a("s_waitcnt vmcnt(0)")
            a("buffer_wbl2 sc1")
            a("s_waitcnt vmcnt(0)")
            a.label(lw)
        a("s_waitcnt vmcnt(0) lgkmcnt(0)")
        a("s_endpgm")

def gen_full(stamps, force_safe=False):
    g = Gen(stamps=stamps)
    g.force_safe = force_safe
    a = g.a
    g.prologue()
    g.team_base(TEAM_OFF)
    a(f"s_cmp_ge_u32 s{S_RANK}, 32")
    a("s_cbranch_scc1 L_norank")
    a(f"s_cmp_eq_u32 s{S_TEAM}, 7")
    a("s_cbranch_scc1 L_fast_f")
    a(f"s_cmp_ge_u32 s{S_TEAM}, 2")
    a("s_cbranch_scc1 L_fast_x")
    a("s_branch L_fast_r")
    a.label("L_norank")
    g.end = 'L_end0'
    g.wait_global('L_safe_far_r')
    a.label("L_safe_far_r")
    a("s_branch L_safe")
    a.label("L_fast_r")
    g.role('r', False)
    a.label("L_fast_x")
    g.role('x', False)
    a.label("L_fast_f")
    g.role('f', False)
    a.label("L_safe_far_x")
    a.label("L_safe_far_f")
    a.label("L_safe")
    g.sc = ' sc1'
    lq = g.lab('sg')
    a("s_waitcnt vmcnt(0) lgkmcnt(0)")
    a(f"s_cmp_lg_u32 s{S_WAVE}, 0")
    a(f"s_cbranch_scc1 {lq}")
    g.dbg_atomic("36", True)
    a("s_waitcnt vmcnt(0)")
    a("s_mov_b64 exec, 1")
    a(f"v_mov_b32 v1, {L_RED}")
    a("ds_write_b32 v1, v3")
    a("s_waitcnt lgkmcnt(0)")
    a("s_mov_b64 exec, -1")
    a.label(lq)
    a("s_barrier")
    a(f"v_mov_b32 v1, {L_RED}")
    a("ds_read_b32 v2, v1")
    a("s_waitcnt lgkmcnt(0)")
    a(f"v_readfirstlane_b32 s{S_GRANK}, v2")
    a("s_barrier")
    a(f"s_lshr_b32 s{S_TEAM}, s{S_GRANK}, 5")
    a(f"s_and_b32 s{S_RANK}, s{S_GRANK}, 31")
    g.team_base(TEAM_OFF_SAFE)
    a(f"s_cmp_eq_u32 s{S_TEAM}, 7")
    a("s_cbranch_scc1 L_safe_f")
    a(f"s_cmp_ge_u32 s{S_TEAM}, 2")
    a("s_cbranch_scc1 L_safe_x")
    g.role('r', True)
    a.label("L_safe_x")
    g.role('x', True)
    a.label("L_safe_f")
    g.role('f', True)
    return g.finish(f"; @launch grid=(256,1,1) block=(256,1,1) lds={LDS_BYTES}")

if __name__ == '__main__':
    mode = sys.argv[1]
    if mode == 'final':
        open(OUT, 'w').write(gen_full(stamps=False))
    elif mode == 'stamps':
        open('full.s', 'w').write(gen_full(stamps=True))
    elif mode == 'plain':
        open('plain.s', 'w').write(gen_full(stamps=False))
    elif mode == 'safe':
        open('fullsafe.s', 'w').write(gen_full(stamps=False, force_safe=True))
```
